```python
import torch

def _softmax(x, axis=-1):
    return torch.softmax(x, dim=axis)
def _gelu(x):
    return torch.nn.functional.gelu(x, approximate="tanh")
def _silu(x):
    return torch.nn.functional.silu(x)
def _sigmoid(x):
    return torch.sigmoid(x)
def _layernorm(x, axis=-1, eps=1e-5):
    m = x.mean(dim=axis, keepdim=True)
    v = x.var(dim=axis, keepdim=True, unbiased=False)
    return (x - m) / torch.sqrt(v + eps)
def _scatter_add(tgt, idx, src, axis=0):
    return tgt.clone().index_add_(axis, idx, src)
def _segment_sum(src, seg, n):
    out = torch.zeros((n,) + src.shape[1:], dtype=src.dtype)
    return out.index_add_(0, seg, src)
def _pad(x, pw):
    flat = tuple(v for pair in reversed(pw) for v in pair)
    return torch.nn.functional.pad(x, flat)

kernel_name = 'standalone__batchnorm__sampling'

def setup_inputs():

    _w = (lambda a: (lambda t: t.to(torch.bfloat16) if t.is_floating_point() else t)(torch.as_tensor(a)))
    B, S, C = 1024, 8, 576
    K = 3
    return {
        "x": _w((lambda *s: torch.randn(*s, dtype=torch.bfloat16) * 0.05)(B, S, C)),
        "w": _w((lambda *s: torch.randn(*s, dtype=torch.bfloat16) * 0.05)(K, C, C) * (1.0 / (K * C) ** 0.5)),
        "mean": _w((lambda *s: torch.randn(*s, dtype=torch.bfloat16) * 0.05)(C) * 0.1),
        "var": _w(torch.abs((lambda *s: torch.randn(*s, dtype=torch.bfloat16) * 0.05)(C)) + 0.5),
        "g": _w((lambda *s: torch.randn(*s, dtype=torch.bfloat16) * 0.05)(C) + 1.0),
        "b": _w((lambda *s: torch.randn(*s, dtype=torch.bfloat16) * 0.05)(C) * 0.1),
    }

def reference(x, w, mean, var, g, b):
    K = 3
    P = K // 2
    S = x.shape[1]
    xp = _pad(x, ((0, 0), (P, P), (0, 0)))
    y = sum(torch.einsum('bsc,cd->bsd', xp[:, k:k + S, :], w[k]) for k in range(K))
    inv_std = 1.0 / torch.sqrt(var + 1e-5)
    y = (y - mean) * (g * inv_std) + b
    return _silu(y)
```

```python
import sys, argparse

KNAME = "standalone__batchnorm__sampling_kernel"
ROWB = 1152
BATB = 9216
TAPB = 663552
XBYTES = 9437184
WBYTES = 1990656
NLOG2E = 0xbfb8aa3b

class Cfg:
    def __init__(self, **kw):
        self.stamps = False
        self.stflags = 'sc1'
        self.p1 = False
        self.mimic = False
        self.rd_span = 40
        self.__dict__.update(kw)

class A:
    def __init__(self): self.L = []
    def __call__(self, s):
        for l in s.split('\n'):
            l = l.strip()
            if l: self.L.append(l)
    def text(self):
        return '\n'.join((l if l.endswith(':') or l.startswith('.') or l.startswith(';') else '    ' + l) for l in self.L)

V_XA = 2
V_Q = [3, 4, 5]
V_WA = [6, 7]
V_OM, V_OE = 8, 9
V_T = 10
SETB = [16, 84]
def XF(s, p): return SETB[s] + 4 * p
def EF(s, t): return SETB[s] + 32 + 4 * t
def WF(s, c, t): return SETB[s] + 44 + 4 * (3 * c + t)
ACC = 152
def TILE(p, c): return ACC + 4 * (2 * p + c)
PS = 224
def P_S(c): return PS + 4 * c
def P_B(c): return PS + 8 + 4 * c
PE_S, PE_B = 240, 244
def r4(b): return f"v[{b}:{b+3}]"
def r2(b): return f"v[{b}:{b+1}]"

S_X, S_W, S_O = 20, 24, 28
S_WAVE = 33
S_M, S_T, S_R, S_LINE, S_B0 = 36, 37, 38, 39, 40
S_TMP = 41
S_OM, S_OM2, S_OE = 48, 49, 50
S_DX, S_DW = 51, 52
S_CNT = 53
S_XOFF = 54
S_C = 56
S_ST = 76
S_XBP = 55

class Prog:
    def __init__(self, special):
        self.special = special
        if not special:
            self.XB = 37632; self.WB0 = 3 * 37632; self.WS = 12288
        else:
            self.XB = 16384; self.WB0 = 3 * 16384; self.WS = 27648
        self.name = 'sp' if special else 'pu'

def interleave(main, fill, span):
    out = []; m = len(fill); j = 0
    for i, x in enumerate(main):
        out.append(x)
        if i < span:
            tgt = ((i + 1) * m + span - 1) // span
            while j < min(tgt, m):
                out.append(fill[j]); j += 1
    out += fill[j:]
    return out

def mfma_list(prog, s, wv):
    out = []
    flip = False
    def chain(tile, items):
        for (a_, b_) in items:
            out.append(f"v_mfma_f32_16x16x32_bf16 {r4(tile)}, {r4(a_)}, {r4(b_)}, {r4(tile)}")
    for p in range(8):
        for c in range(2):
            taps = [t for t in range(3) if 0 <= p + t - 1 < 8]
            if c == 1: taps = taps[::-1]
            chain(TILE(p, c), [(WF(s, c, t), XF(s, p + t - 1)) for t in taps])
    if not prog.special:
        for c in range(2):
            taps = [0, 1, 2] if c == 0 else [2, 1, 0]
            chain(TILE(8, c), [(WF(s, c, t), EF(s, t)) for t in taps])
    else:
        for i in range(2):
            p = 2 * wv + i
            taps = [t for t in range(3) if 0 <= p + t - 1 < 8]
            if i == 1: taps = taps[::-1]
            chain(TILE(8, i), [(EF(s, t), XF(s, p + t - 1)) for t in taps])
    return out

def read_list(prog, s, ring):
    rd = []
    wo = ring * prog.WS
    def wr(c, t):
        d = WF(s, c, t)
        rd.append(f"ds_read_b64_tr_b16 {r2(d)}, v{V_WA[c]} offset:{wo + t * 4096}")
        rd.append(f"ds_read_b64_tr_b16 {r2(d + 2)}, v{V_WA[c]} offset:{wo + t * 4096 + 512}")
    def xr(p): rd.append(f"ds_read_b128 {r4(XF(s, p))}, v{V_XA} offset:{p * 2048}")
    wr(0, 1); xr(0); wr(0, 2); xr(1); wr(1, 2); wr(1, 1); wr(0, 0); xr(2); wr(1, 0)
    for p in range(3, 8): xr(p)
    for t in range(3):
        d = EF(s, t)
        if not prog.special:
            rd.append(f"ds_read_b128 {r4(d)}, v{V_Q[t]}")
        else:
            rd.append(f"ds_read_b64_tr_b16 {r2(d)}, v{V_Q[0]} offset:{wo + t * 1024}")
            rd.append(f"ds_read_b64_tr_b16 {r2(d + 2)}, v{V_Q[1]} offset:{wo + t * 1024}")
    return rd

def addr_updates(prog, stage_change):
    up = []
    d = f"s{S_DX}" if stage_change else "0"
    up.append(f"v_xad_u32 v{V_XA}, v{V_XA}, 64, {d}")
    if not prog.special:
        for t in range(3): up.append(f"v_xad_u32 v{V_Q[t]}, v{V_Q[t]}, 64, {d}")
    if stage_change:
        for c in range(2): up.append(f"v_add_u32 v{V_WA[c]}, s{S_DW}, v{V_WA[c]}")
        if prog.special:
            for h in range(2): up.append(f"v_add_u32 v{V_Q[h]}, s{S_DW}, v{V_Q[h]}")
    return up

def stamp(a, cfg, i):
    if cfg.stamps:
        a(f"s_memtime s[{S_ST + 4 + 2 * i}:{S_ST + 5 + 2 * i}]")

def epilogue_pair(p, prog, tmp):
    out = []
    R = tmp + 12
    for c in range(2):
        T = TILE(p, c)
        if p == 8 and prog.special: ps, pb = PE_S, PE_B
        else: ps, pb = P_S(c), P_B(c)
        e = tmp + 4 * c
        out.append(f"v_pk_fma_f32 {r2(T)}, {r2(T)}, {r2(ps)}, {r2(pb)}")
        out.append(f"v_pk_fma_f32 {r2(T + 2)}, {r2(T + 2)}, {r2(ps + 2)}, {r2(pb + 2)}")
        for i in range(4): out.append(f"v_exp_f32 v{e + i}, v{T + i}")
    for c in range(2):
        T = TILE(p, c); e = tmp + 4 * c
        out.append(f"v_pk_fma_f32 {r2(e)}, {r2(e)}, s[{S_C}:{S_C + 1}], s[{S_C}:{S_C + 1}]")
        out.append(f"v_pk_fma_f32 {r2(e + 2)}, {r2(e + 2)}, s[{S_C}:{S_C + 1}], s[{S_C}:{S_C + 1}]")
        for i in range(4): out.append(f"v_rcp_f32 v{e + i}, v{e + i}")
    for c in range(2):
        T = TILE(p, c); e = tmp + 4 * c
        out.append(f"v_pk_mul_f32 {r2(T)}, {r2(T)}, {r2(e)}")
        out.append(f"v_pk_mul_f32 {r2(T + 2)}, {r2(T + 2)}, {r2(e + 2)}")
    for c in range(2):
        T = TILE(p, c)
        out.append(f"v_cvt_pk_bf16_f32 v{R + 2 * c}, v{T}, v{T + 1}")
        out.append(f"v_cvt_pk_bf16_f32 v{R + 2 * c + 1}, v{T + 2}, v{T + 3}")
    return out, R

def store_pair(p, R, cfg):
    out = [f"v_permlane16_swap_b32 v{R}, v{R + 2}", f"v_permlane16_swap_b32 v{R + 1}, v{R + 3}"]
    if p < 4: out.append(f"buffer_store_dwordx4 {r4(R)}, v{V_OM}, s[{S_O}:{S_O + 3}], s{S_OM} offen offset:{p * ROWB} {cfg.stflags}")
    elif p < 8: out.append(f"buffer_store_dwordx4 {r4(R)}, v{V_OM}, s[{S_O}:{S_O + 3}], s{S_OM2} offen offset:{(p - 4) * ROWB} {cfg.stflags}")
    else: out.append(f"buffer_store_dwordx4 {r4(R)}, v{V_OE}, s[{S_O}:{S_O + 3}], s{S_OE} offen {cfg.stflags}")
    return out

def bn_params(a, cfg, voff, dst_s, dst_b, tmp, first):
    if first:
        for i, sp in enumerate((8, 10, 12, 14)):
            a(f"global_load_dwordx2 {r2(tmp + 2 * i)}, v{voff}, s[{sp}:{sp + 1}]")
        return
    mean, var, g, b = tmp, tmp + 2, tmp + 4, tmp + 6
    w = tmp + 8
    def unpack(dst, src, i):
        if i & 1: a(f"v_and_b32 v{dst}, 0xffff0000, v{src + (i >> 1)}")
        else: a(f"v_lshlrev_b32 v{dst}, 16, v{src + (i >> 1)}")
    def rnd(x):
        a(f"v_cvt_pk_bf16_f32 v{x}, v{x}, v{x}\nv_lshlrev_b32 v{x}, 16, v{x}")
    for i in range(4):
        unpack(w, var, i)
        a(f"v_add_f32 v{w}, 0x3727c5ac, v{w}")
        if cfg.mimic:
            rnd(w)
            a(f"v_sqrt_f32 v{w}, v{w}\ns_nop 0"); rnd(w)
            a(f"v_rcp_f32 v{w}, v{w}\ns_nop 0"); rnd(w)
        else:
            a(f"v_rsq_f32 v{w}, v{w}")
        unpack(w + 1, g, i)
        a(f"v_mul_f32 v{w}, v{w}, v{w + 1}")
        if cfg.mimic: rnd(w)
        unpack(w + 1, mean, i)
        unpack(w + 2, b, i)
        a(f"v_fma_f32 v{w + 2}, -v{w + 1}, v{w}, v{w + 2}")
        a(f"v_mul_f32 v{dst_s + i}, s{S_C}, v{w}")
        a(f"v_mul_f32 v{dst_b + i}, s{S_C}, v{w + 2}")

def compute_prog(a, cfg, prog, wv):
    n = prog.name + ('' if wv is None else str(wv))
    bar_every = prog.special or not cfg.p1
    a(f"L_{n}_go:")
    stamp(a, cfg, 1)
    a("s_barrier")
    stamp(a, cfg, 2)
    for r in read_list(prog, 0, 0): a(r)
    a(f"s_mov_b32 s{S_CNT}, 8")
    a(f"s_mov_b32 s{S_XOFF}, 0")
    a(f"s_mov_b32 s{S_DW}, {2 * prog.WS}")
    a(f"s_mov_b32 s{S_XBP}, {prog.XB}")
    a(f"L_{n}_loop:")
    def step(s, last=False, bar=True):
        a("s_waitcnt lgkmcnt(0)")
        if bar: a("s_barrier")
        m = mfma_list(prog, s, wv)
        if last:
            for x in m: a(x)
            return
        fill = addr_updates(prog, s == 1) + read_list(prog, 1 - s, 1 - s)
        for x in interleave(m, fill, cfg.rd_span): a(x)
    a(f"s_cmp_eq_u32 s{S_XOFF}, 2")
    a(f"s_cselect_b32 s{S_DX}, {(-2 * prog.XB) & 0xffffffff}, s{S_XBP}")
    a(f"s_cselect_b32 s{S_XOFF}, -1, s{S_XOFF}")
    a(f"s_add_u32 s{S_XOFF}, s{S_XOFF}, 1")
    step(0, bar=bar_every)
    step(1)
    a(f"s_sub_u32 s{S_DW}, 0, s{S_DW}")
    a(f"s_sub_u32 s{S_CNT}, s{S_CNT}, 1")
    a(f"s_cmp_lg_u32 s{S_CNT}, 0")
    a(f"s_cbranch_scc1 L_{n}_loop")
    step(0, bar=bar_every)
    step(1, last=True, bar=False)
    a(f"s_branch L_{prog.name}_epi")

def epilogue(a, cfg, prog):
    a(f"L_{prog.name}_epi:")
    stamp(a, cfg, 3)
    a("s_waitcnt vmcnt(0)")
    tmps = [16, 32]
    pend = None
    for p in range(9):
        ops, R = epilogue_pair(p, prog, tmps[p & 1])
        if pend:
            for x in ops[:2]: a(x)
            for x in pend: a(x)
            for x in ops[2:]: a(x)
        else:
            for x in ops: a(x)
        pend = store_pair(p, R, cfg)
    a("s_nop 1")
    for x in pend: a(x)
    stamp(a, cfg, 4)
    if cfg.stamps:
        a("s_waitcnt vmcnt(0)")
        stamp(a, cfg, 5)
        a(f"s_cmp_lg_u32 s{S_WAVE}, 0\ns_cbranch_scc1 L_end")
        a(f"s_memrealtime s[{S_ST + 2}:{S_ST + 3}]")
        a("s_load_dwordx2 s[4:5], s[0:1], 64\ns_waitcnt lgkmcnt(0)")
        a(f"v_mov_b32 v16, s{S_ST}\nv_mov_b32 v17, s{S_ST + 1}\nv_mov_b32 v18, s{S_ST + 2}\nv_mov_b32 v19, s{S_ST + 3}")
        for i in range(1, 6):
            a(f"s_sub_u32 s{S_TMP}, s{S_ST + 4 + 2 * i}, s{S_ST + 4}\nv_mov_b32 v{18 + 2 * i}, s{S_TMP}\nv_mov_b32 v{19 + 2 * i}, 0")
        a(f"s_mul_i32 s{S_TMP}, s2, 56\nv_mov_b32 v32, s{S_TMP}")
        a("v_cmp_eq_u32 vcc, 0, v0\ns_and_saveexec_b64 s[6:7], vcc")
        a("global_store_dwordx4 v32, v[16:19], s[4:5]\nglobal_store_dwordx4 v32, v[20:23], s[4:5] offset:16")
        a("global_store_dwordx4 v32, v[24:27], s[4:5] offset:32\nglobal_store_dwordx2 v32, v[28:29], s[4:5] offset:48")
    a("s_endpgm")

def loader_prog(a, cfg, prog):
    n = prog.name
    sXm, sXq, sW, mXm, mXq, mW, sE, mE = 62, 63, 64, 65, 66, 67, 68, 69
    tmp = 70
    vXm, vXq, vW, vE = 2, 3, 4, 5
    seq = []
    def dma(v, srd, sbase, soff, mbase, moff, tag):
        a(f"s_add_u32 m0, s{mbase}, {moff}")
        a(f"s_add_u32 s{tmp}, s{sbase}, {soff}")
        a(f"buffer_load_dwordx4 v{v}, s[{srd}:{srd + 3}], s{tmp} offen lds")
        seq.append(tag)
    def issue_x(t):
        buf = (t % 3) * prog.XB
        if not prog.special:
            for s in range(8): dma(vXm, S_X, sXm, s * ROWB + t * 128, mXm, buf + s * 2048, ('x', t))
            dma(vXq, S_X, sXq, t * 128, mXq, buf, ('x', t))
        else:
            for s in range(4): dma(vXm, S_X, sXm, s * ROWB + t * 128, mXm, buf + s * 2048, ('x', t))
    def issue_w(j):
        buf = (j & 3) * prog.WS
        for tap in (1, 2, 0):
            dma(vW, S_W, sW, tap * TAPB + j * 32 * ROWB, mW, buf + tap * 4096, ('w', j))
            if prog.special:
                dma(vW, S_W, sW, tap * TAPB + j * 32 * ROWB + 128, mW, buf + 12288 + tap * 4096, ('w', j))
        if prog.special:
            a(f"s_mul_i32 s{tmp + 1}, s{tmp + 2}, {j & 3}")
            a(f"s_add_u32 m0, s{mE}, s{tmp + 1}")
            a(f"s_add_u32 s{tmp}, s{sE}, {j * 32 * ROWB}")
            a(f"buffer_load_dwordx4 v{vE}, s[{S_W}:{S_W + 3}], s{tmp} offen lds")
            seq.append(('w', j))
    def wait_for(need):
        last = max(i for i, t in enumerate(seq) if t in need)
        a(f"s_waitcnt vmcnt({len(seq) - 1 - last})")
    p1 = cfg.p1 and not prog.special
    lg = [0]
    def lstamp():
        if cfg.stamps and lg[0] < 64:
            a(f"s_memtime s[92:93]\ns_waitcnt lgkmcnt(0)\ns_sub_u32 s92, s92, s{S_ST + 4}\nv_writelane_b32 v20, s92, {lg[0]}")
            lg[0] += 1
    lstamp()
    issue_w(0); issue_x(0); issue_w(1); issue_x(1); issue_w(2); issue_w(3); issue_x(2)
    lstamp()
    if not p1:
        for j in range(18):
            wait_for({('w', j), ('x', j >> 1)})
            lstamp()
            a("s_barrier")
            lstamp()
            if j >= 1:
                if j + 3 < 18: issue_w(j + 3)
                if j % 2 == 0 and (j >> 1) + 2 < 9: issue_x((j >> 1) + 2)
    else:
        for j in range(0, 18, 2):
            wait_for({('w', j), ('w', j + 1), ('x', j >> 1)})
            lstamp()
            a("s_barrier")
            lstamp()
            if j >= 2:
                if j + 2 < 18: issue_w(j + 2); issue_w(j + 3)
                if (j >> 1) + 2 < 9: issue_x((j >> 1) + 2)
    if cfg.stamps:
        a(f"s_cmp_lg_u32 s{S_WAVE}, 4\ns_cbranch_scc1 L_end")
        a("s_load_dwordx2 s[4:5], s[0:1], 64\ns_waitcnt lgkmcnt(0)")
        a(f"s_lshl_b32 s{S_TMP}, s2, 9\ns_add_u32 s{S_TMP}, s{S_TMP}, 0x100000\nv_lshl_add_u32 v21, v0, 2, s{S_TMP}")
        a("global_store_dword v21, v20, s[4:5]")
    a("s_endpgm")

def gen(cfg):
    a = A()
    hdr = open('standalone__batchnorm__sampling.s.ref').read().split('; Override')[0]
    a.L.append(hdr.rstrip())
    a.L.append("; @launch grid=(256,1,1) block=(512,1,1) lds=163840")
    a(f'.amdgcn_target "amdgcn-amd-amdhsa--gfx950"\n.text\n.globl {KNAME}\n.p2align 8\n.type {KNAME},@function\n{KNAME}:')
    if cfg.stamps:
        a(f"s_memrealtime s[{S_ST}:{S_ST + 1}]"); stamp(a, cfg, 0)
    a("s_cmp_ge_u32 s2, 256\ns_cbranch_scc1 L_end")
    a("s_load_dwordx16 s[4:19], s[0:1], 0")
    a("v_lshrrev_b32 v1, 6, v0\nv_and_b32 v0, 63, v0")
    a(f"s_and_b32 s{S_TMP}, s2, 7\ns_lshr_b32 s{S_TMP + 1}, s2, 3")
    a(f"v_readfirstlane_b32 s{S_WAVE}, v1")
    a(f"s_lshr_b32 s{S_M}, s{S_TMP}, 1\ns_and_b32 s{S_TMP}, s{S_TMP}, 1\ns_lshl_b32 s{S_TMP}, s{S_TMP}, 5\ns_add_u32 s{S_T}, s{S_TMP}, s{S_TMP + 1}")
    a(f"s_mov_b32 s{S_C}, {NLOG2E:#x}\ns_mov_b32 s{S_C + 1}, {NLOG2E:#x}")
    a(f"s_cmp_eq_u32 s{S_T}, 63\ns_cbranch_scc1 L_special")
    def srds():
        a("s_waitcnt lgkmcnt(0)")
        for srd, p, nb in ((S_X, 4, XBYTES), (S_W, 6, WBYTES), (S_O, 16, XBYTES)):
            a(f"s_mov_b32 s{srd}, s{p}\ns_and_b32 s{srd + 1}, s{p + 1}, 0xffff\ns_mov_b32 s{srd + 2}, {nb}\ns_mov_b32 s{srd + 3}, 0x20000")
    sXm, sXq, sW, mXm, mXq, mW, sE, mE = 62, 63, 64, 65, 66, 67, 68, 69
    T = S_TMP
    for special in (False, True):
        prog = Prog(special)
        n = prog.name
        if not special:
            a(f"s_mul_i32 s{S_R}, s{S_T}, 57\ns_lshr_b32 s{S_R}, s{S_R}, 9")
            a(f"s_mul_i32 s{T}, s{S_R}, 9\ns_sub_u32 s{S_LINE}, s{S_T}, s{T}")
            a(f"s_mul_i32 s{T}, s{S_M}, 7\ns_add_u32 s{S_R}, s{S_R}, s{T}\ns_mul_i32 s{S_B0}, s{S_R}, {36 * BATB}")
        else:
            a("L_special:")
            a(f"s_lshl_b32 s{S_LINE}, s{S_M}, 1\ns_mov_b32 s{S_B0}, {1008 * BATB}")
        a(f"s_cmp_ge_u32 s{S_WAVE}, 4\ns_cbranch_scc0 L_{n}_comp")
        a(f"s_sub_u32 s{T}, s{S_WAVE}, 4")
        a(f"s_and_b32 s{T + 1}, s{T}, 1\ns_lshr_b32 s{T + 2}, s{T}, 1")
        a("v_lshrrev_b32 v10, 3, v0\nv_and_b32 v11, 7, v0\nv_lshrrev_b32 v12, 1, v10")
        a(f"s_lshl_b32 s{T + 3}, s{T + 1}, 2")
        a(f"v_and_b32 v13, 1, v12\nv_lshlrev_b32 v13, 1, v13\nv_xor_b32 v13, v13, v11\nv_xor_b32 v13, s{T + 3}, v13")
        a(f"v_mul_u32_u24 v14, {ROWB}, v10\nv_lshl_add_u32 v4, v13, 4, v14")
        a(f"s_mul_i32 s{sW}, s{T}, {8 * ROWB}\ns_lshl_b32 s{T + 4}, s{S_LINE}, 7\ns_add_u32 s{sW}, s{sW}, s{T + 4}")
        a(f"s_lshl_b32 s{mW}, s{T}, 10\ns_add_u32 s{mW}, s{mW}, {prog.WB0}")
        a(f"v_xor_b32 v13, v12, v11\nv_xor_b32 v13, s{T + 3}, v13\nv_mul_u32_u24 v15, {BATB}, v10\nv_lshl_add_u32 v2, v13, 4, v15")
        a(f"s_mul_i32 s{sXm}, s{T + 1}, {8 * BATB}\ns_add_u32 s{sXm}, s{sXm}, s{S_B0}")
        a(f"s_lshl_b32 s{mXm}, s{T + 1}, 10")
        if not special:
            a(f"s_mul_i32 s{T + 4}, s{T + 2}, {16 * BATB}\ns_add_u32 s{sXm}, s{sXm}, s{T + 4}")
            a(f"s_lshl_b32 s{T + 4}, s{T + 2}, 14\ns_add_u32 s{mXm}, s{mXm}, s{T + 4}")
            a(f"s_mul_i32 s{T + 4}, s{T}, 9\ns_add_u32 s{T + 4}, s{T + 4}, 1")
            a(f"v_add_u32 v13, s{T + 4}, v10\nv_bfe_u32 v13, v13, 1, 3\nv_xor_b32 v13, v13, v11\nv_lshl_add_u32 v3, v13, 4, v14")
            a(f"s_lshl_b32 s{mXq}, s{T + 4}, 7\ns_add_u32 s{mXq}, s{mXq}, 32768")
            a(f"s_add_u32 s{T + 4}, s{T}, 32\ns_mul_i32 s{T + 4}, s{T + 4}, {BATB}\ns_add_u32 s{sXq}, s{T + 4}, s{S_B0}")
        else:
            a(f"s_mul_i32 s{T + 4}, s{T + 2}, {4 * ROWB}\ns_add_u32 s{sXm}, s{sXm}, s{T + 4}")
            a(f"s_lshl_b32 s{T + 4}, s{T + 2}, 13\ns_add_u32 s{mXm}, s{mXm}, s{T + 4}")
            a("v_lshrrev_b32 v13, 1, v0\nv_bfe_u32 v14, v0, 4, 1\nv_lshlrev_b32 v14, 2, v14\nv_xor_b32 v13, v13, v14")
            a(f"v_mul_u32_u24 v13, {ROWB}, v13\nv_and_b32 v14, 1, v0\nv_lshl_add_u32 v5, v14, 4, v13")
            a(f"s_mul_i32 s{sE}, s{T}, {TAPB}\ns_lshl_b32 s{T + 4}, s{S_M}, 5\ns_add_u32 s{sE}, s{sE}, s{T + 4}\ns_add_u32 s{sE}, s{sE}, 1024")
            a(f"s_lshl_b32 s{mE}, s{T}, 10\ns_add_u32 s{mE}, s{mE}, {prog.WB0 + 24576}")
            a(f"s_cmp_eq_u32 s{T}, 3")
            a(f"s_cselect_b32 s{mE}, {prog.WB0 + 4 * prog.WS}, s{mE}")
            a(f"s_cselect_b32 s72, 0, {prog.WS}")
            a(f"s_cselect_b32 s{T + 4}, 0x40000000, 0")
            a(f"v_add_u32 v5, s{T + 4}, v5")
        srds()
        loader_prog(a, cfg, prog)
        a(f"L_{n}_comp:")
        a(f"s_lshr_b32 s{T}, s{S_WAVE}, 1\ns_and_b32 s{T + 1}, s{S_WAVE}, 1")
        a("v_and_b32 v10, 15, v0\nv_lshrrev_b32 v11, 4, v0")
        if special:
            a(f"s_add_u32 s{S_LINE}, s{S_LINE}, s{T}")
        a(f"s_lshl_b32 s{T + 2}, s{S_LINE}, 7\ns_lshl_b32 s{T + 3}, s{T + 1}, 6\ns_add_u32 s{T + 2}, s{T + 2}, s{T + 3}")
        a(f"v_lshl_add_u32 v12, v11, 3, s{T + 2}\nv_add_u32 v13, 32, v12")
        if special:
            a(f"s_lshl_b32 s{T + 3}, s{S_M}, 5\ns_add_u32 s{T + 3}, s{T + 3}, 1024\nv_lshl_add_u32 v14, v11, 3, s{T + 3}")
        srds()
        bn_params(a, cfg, 12, None, None, 16, True)
        bn_params(a, cfg, 13, None, None, 32, True)
        if special: bn_params(a, cfg, 14, None, None, 48, True)
        a("v_and_b32 v14, 1, v11\nv_lshrrev_b32 v15, 1, v11")
        a(f"v_mul_u32_u24 v{V_OM}, {BATB}, v10\nv_lshl_add_u32 v{V_OM}, v15, 4, v{V_OM}")
        if not special:
            a(f"v_lshl_add_u32 v{V_OM}, v14, 5, v{V_OM}")
            a(f"v_lshrrev_b32 v12, 3, v10\nv_and_b32 v13, 7, v10")
            a(f"v_mul_u32_u24 v{V_OE}, {BATB}, v12\nv_mul_u32_u24 v64, {ROWB}, v13\nv_add_u32 v{V_OE}, v{V_OE}, v64")
            a(f"v_lshl_add_u32 v{V_OE}, v15, 4, v{V_OE}\nv_lshl_add_u32 v{V_OE}, v14, 5, v{V_OE}")
            a(f"s_mul_i32 s{T + 3}, s{T}, {16 * BATB}\ns_add_u32 s{S_OM}, s{S_B0}, s{T + 3}\ns_add_u32 s{S_OM}, s{S_OM}, s{T + 2}")
            a(f"s_mul_i32 s{T + 3}, s{T}, {2 * BATB}\ns_add_u32 s{S_OE}, s{S_B0}, s{T + 3}\ns_add_u32 s{S_OE}, s{S_OE}, {32 * BATB}\ns_add_u32 s{S_OE}, s{S_OE}, s{T + 2}")
            a(f"s_mul_i32 s{T + 3}, s{T}, 18\nv_mad_u32_u24 v64, v12, 9, v13\nv_add_u32 v64, s{T + 3}, v64")
            for t in range(3):
                a(f"v_add_u32 v65, {t}, v64\nv_bfe_u32 v66, v65, 1, 3\nv_xor_b32 v66, v66, v11\nv_lshlrev_b32 v66, 4, v66")
                a(f"v_lshl_add_u32 v66, v65, 7, v66\nv_add_u32 v{V_Q[t]}, 32768, v66")
        else:
            a(f"v_mul_u32_u24 v64, {ROWB}, v14\nv_add_u32 v{V_OE}, v{V_OM}, v64")
            a(f"v_lshl_add_u32 v{V_OM}, v14, 5, v{V_OM}")
            a(f"s_add_u32 s{S_OM}, s{S_B0}, s{T + 2}")
            a(f"s_mul_i32 s{T + 3}, s{S_WAVE}, {2 * ROWB}\ns_add_u32 s{S_OE}, s{S_B0}, s{T + 3}")
            a(f"s_lshl_b32 s{T + 3}, s{S_M}, 5\ns_add_u32 s{S_OE}, s{S_OE}, s{T + 3}\ns_add_u32 s{S_OE}, s{S_OE}, 1024")
        a(f"s_add_u32 s{S_OM2}, s{S_OM}, {4 * ROWB}")
        a(f"v_lshrrev_b32 v64, 1, v10\nv_xor_b32 v64, v64, v11\nv_lshlrev_b32 v64, 4, v64\nv_lshl_add_u32 v{V_XA}, v10, 7, v64")
        if not special:
            a(f"s_lshl_b32 s{T + 3}, s{T}, 14\nv_add_u32 v{V_XA}, s{T + 3}, v{V_XA}")
        a("v_lshrrev_b32 v64, 2, v10\nv_and_b32 v65, 3, v10\nv_lshl_add_u32 v66, v11, 3, v64")
        a("v_bfe_u32 v67, v64, 1, 1\nv_lshlrev_b32 v67, 1, v67\nv_lshl_add_u32 v67, v14, 2, v67")
        a(f"s_lshl_b32 s{T + 3}, s{T + 1}, 2\nv_lshrrev_b32 v68, 1, v65\nv_add_u32 v68, s{T + 3}, v68")
        a("v_and_b32 v69, 1, v65\nv_lshlrev_b32 v69, 3, v69\nv_lshl_add_u32 v69, v66, 7, v69")
        if special:
            a(f"s_mul_i32 s{T + 3}, s{T}, 12288\ns_add_u32 s{T + 3}, s{T + 3}, {prog.WB0}")
        else:
            a(f"s_mov_b32 s{T + 3}, {prog.WB0}")
        a(f"v_add_u32 v69, s{T + 3}, v69")
        for c in range(2):
            a(f"v_add_u32 v70, {2 * c}, v68\nv_xor_b32 v70, v70, v67\nv_lshl_add_u32 v{V_WA[c]}, v70, 4, v69")
        if special:
            a(f"v_lshl_add_u32 v70, v14, 2, v66\nv_lshlrev_b32 v70, 5, v70\nv_lshl_add_u32 v70, v65, 3, v70")
            a(f"v_add_u32 v{V_Q[0]}, {prog.WB0 + 24576}, v70\nv_xor_b32 v70, 128, v70\nv_add_u32 v{V_Q[1]}, {prog.WB0 + 24576}, v70")
        else:
            a(f"v_lshrrev_b32 v64, 3, v0\ns_lshl_b32 s{T + 3}, s{S_WAVE}, 3\nv_add_u32 v64, s{T + 3}, v64")
            a("v_mul_u32_u24 v65, 52, v64\nv_lshrrev_b32 v65, 8, v65")
            a("v_mul_u32_u24 v66, 5, v65\nv_sub_u32 v66, v64, v66")
            a(f"v_mul_u32_u24 v65, {prog.XB}, v65\nv_mul_u32_u24 v66, {9 * 128}, v66\nv_add_u32 v65, v65, v66")
            a("v_and_b32 v66, 7, v0\nv_lshl_add_u32 v65, v66, 4, v65\nv_add_u32 v65, 32768, v65")
            a("v_mov_b32 v72, 0\nv_mov_b32 v73, 0\nv_mov_b32 v74, 0\nv_mov_b32 v75, 0")
            a("v_cmp_gt_u32 vcc, 15, v64\ns_and_saveexec_b64 s[58:59], vcc")
            a("ds_write_b128 v65, v[72:75]")
            a("s_mov_b64 exec, s[58:59]")
        for r in range(ACC, ACC + 72): a(f"v_mov_b32 v{r}, 0")
        a("s_waitcnt vmcnt(0)")
        bn_params(a, cfg, None, P_S(0), P_B(0), 16, False)
        bn_params(a, cfg, None, P_S(1), P_B(1), 32, False)
        if special: bn_params(a, cfg, None, PE_S, PE_B, 48, False)
        a("s_waitcnt lgkmcnt(0)")
        if not special:
            compute_prog(a, cfg, prog, None)
        else:
            for wv in range(1, 4):
                a(f"s_cmp_eq_u32 s{S_WAVE}, {wv}\ns_cbranch_scc1 L_sp{wv}_go")
            for wv in range(4): compute_prog(a, cfg, prog, wv)
        epilogue(a, cfg, prog)
    a("L_end:\ns_endpgm")
    a(f""".section .rodata,"a"
.p2align 6
.amdhsa_kernel {KNAME}
  .amdhsa_next_free_vgpr 256
  .amdhsa_next_free_sgpr 96
  .amdhsa_accum_offset 256
  .amdhsa_group_segment_fixed_size 0
  .amdhsa_kernarg_size 72
  .amdhsa_user_sgpr_count 2
  .amdhsa_user_sgpr_kernarg_segment_ptr 1
  .amdhsa_system_sgpr_workgroup_id_x 1
  .amdhsa_float_denorm_mode_32 3
.end_amdhsa_kernel""")
    return a.text() + '\n'

if __name__ == '__main__':
    ap = argparse.ArgumentParser()
    ap.add_argument('-o', default='k.s')
    ap.add_argument('opts', nargs='*')
    args = ap.parse_args()
    kw = {}
    for o in args.opts:
        k, v = o.split('=')
        try: v = eval(v)
        except Exception: pass
        kw[k] = v
    open(args.o, 'w').write(gen(Cfg(**kw)))
```

```python
import sys, argparse

KNAME = "standalone__batchnorm__sampling_kernel"
ROWB = 1152
BATB = 9216
TAPB = 663552
XBYTES = 9437184
WBYTES = 1990656
NLOG2E = 0xbfb8aa3b

class Cfg:
    def __init__(self, **kw):
        self.stamps = False
        self.stflags = 'sc1'
        self.p1 = False
        self.mimic = False
        self.rd_span = 40
        self.__dict__.update(kw)

class A:
    def __init__(self): self.L = []
    def __call__(self, s):
        for l in s.split('\n'):
            l = l.strip()
            if l: self.L.append(l)
    def text(self):
        return '\n'.join((l if l.endswith(':') or l.startswith('.') or l.startswith(';') else '    ' + l) for l in self.L)

V_XA = 2
V_Q = [3, 4, 5]
V_WA = [6, 7]
V_OM, V_OE = 8, 9
V_T = 10
SETB = [16, 84]
def XF(s, p): return SETB[s] + 4 * p
def EF(s, t): return SETB[s] + 32 + 4 * t
def WF(s, c, t): return SETB[s] + 44 + 4 * (3 * c + t)
ACC = 152
def TILE(p, c): return ACC + 4 * (2 * p + c)
PS = 224
def P_S(c): return PS + 4 * c
def P_B(c): return PS + 8 + 4 * c
PE_S, PE_B = 240, 244
def r4(b): return f"v[{b}:{b+3}]"
def r2(b): return f"v[{b}:{b+1}]"

S_X, S_W, S_O = 20, 24, 28
S_WAVE = 33
S_M, S_T, S_R, S_LINE, S_B0 = 36, 37, 38, 39, 40
S_TMP = 41
S_OM, S_OM2, S_OE = 48, 49, 50
S_DX, S_DW = 51, 52
S_CNT = 53
S_XOFF = 54
S_C = 56
S_ST = 76
S_XBP = 55

class Prog:
    def __init__(self, special):
        self.special = special
        if not special:
            self.XB = 37632; self.WB0 = 3 * 37632; self.WS = 12288
        else:
            self.XB = 16384; self.WB0 = 3 * 16384; self.WS = 27648
        self.name = 'sp' if special else 'pu'

def interleave(main, fill, span):
    out = []; m = len(fill); j = 0
    for i, x in enumerate(main):
        out.append(x)
        if i < span:
            tgt = ((i + 1) * m + span - 1) // span
            while j < min(tgt, m):
                out.append(fill[j]); j += 1
    out += fill[j:]
    return out

def mfma_list(prog, s, wv):
    out = []
    flip = False
    def chain(tile, items):
        for (a_, b_) in items:
            out.append(f"v_mfma_f32_16x16x32_bf16 {r4(tile)}, {r4(a_)}, {r4(b_)}, {r4(tile)}")
    for p in range(8):
        for c in range(2):
            taps = [t for t in range(3) if 0 <= p + t - 1 < 8]
            if c == 1: taps = taps[::-1]
            chain(TILE(p, c), [(WF(s, c, t), XF(s, p + t - 1)) for t in taps])
    if not prog.special:
        for c in range(2):
            taps = [0, 1, 2] if c == 0 else [2, 1, 0]
            chain(TILE(8, c), [(WF(s, c, t), EF(s, t)) for t in taps])
    else:
        for i in range(2):
            p = 2 * wv + i
            taps = [t for t in range(3) if 0 <= p + t - 1 < 8]
            if i == 1: taps = taps[::-1]
            chain(TILE(8, i), [(EF(s, t), XF(s, p + t - 1)) for t in taps])
    return out

def read_list(prog, s, ring):
    rd = []
    wo = ring * prog.WS
    def wr(c, t):
        d = WF(s, c, t)
        rd.append(f"ds_read_b64_tr_b16 {r2(d)}, v{V_WA[c]} offset:{wo + t * 4096}")
        rd.append(f"ds_read_b64_tr_b16 {r2(d + 2)}, v{V_WA[c]} offset:{wo + t * 4096 + 512}")
    def xr(p): rd.append(f"ds_read_b128 {r4(XF(s, p))}, v{V_XA} offset:{p * 2048}")
    wr(0, 1); xr(0); wr(0, 2); xr(1); wr(1, 2); wr(1, 1); wr(0, 0); xr(2); wr(1, 0)
    for p in range(3, 8): xr(p)
    for t in range(3):
        d = EF(s, t)
        if not prog.special:
            rd.append(f"ds_read_b128 {r4(d)}, v{V_Q[t]}")
        else:
            rd.append(f"ds_read_b64_tr_b16 {r2(d)}, v{V_Q[0]} offset:{wo + t * 1024}")
            rd.append(f"ds_read_b64_tr_b16 {r2(d + 2)}, v{V_Q[1]} offset:{wo + t * 1024}")
    return rd

def addr_updates(prog, stage_change):
    up = []
    d = f"s{S_DX}" if stage_change else "0"
    up.append(f"v_xad_u32 v{V_XA}, v{V_XA}, 64, {d}")
    if not prog.special:
        for t in range(3): up.append(f"v_xad_u32 v{V_Q[t]}, v{V_Q[t]}, 64, {d}")
    if stage_change:
        for c in range(2): up.append(f"v_add_u32 v{V_WA[c]}, s{S_DW}, v{V_WA[c]}")
        if prog.special:
            for h in range(2): up.append(f"v_add_u32 v{V_Q[h]}, s{S_DW}, v{V_Q[h]}")
    return up

def stamp(a, cfg, i):
    if cfg.stamps:
        a(f"s_memtime s[{S_ST + 4 + 2 * i}:{S_ST + 5 + 2 * i}]")

def epilogue_pair(p, prog, tmp):
    out = []
    R = tmp + 12
    for c in range(2):
        T = TILE(p, c)
        if p == 8 and prog.special: ps, pb = PE_S, PE_B
        else: ps, pb = P_S(c), P_B(c)
        e = tmp + 4 * c
        out.append(f"v_pk_fma_f32 {r2(T)}, {r2(T)}, {r2(ps)}, {r2(pb)}")
        out.append(f"v_pk_fma_f32 {r2(T + 2)}, {r2(T + 2)}, {r2(ps + 2)}, {r2(pb + 2)}")
        for i in range(4): out.append(f"v_exp_f32 v{e + i}, v{T + i}")
    for c in range(2):
        T = TILE(p, c); e = tmp + 4 * c
        out.append(f"v_pk_fma_f32 {r2(e)}, {r2(e)}, s[{S_C}:{S_C + 1}], s[{S_C}:{S_C + 1}]")
        out.append(f"v_pk_fma_f32 {r2(e + 2)}, {r2(e + 2)}, s[{S_C}:{S_C + 1}], s[{S_C}:{S_C + 1}]")
        for i in range(4): out.append(f"v_rcp_f32 v{e + i}, v{e + i}")
    for c in range(2):
        T = TILE(p, c); e = tmp + 4 * c
        out.append(f"v_pk_mul_f32 {r2(T)}, {r2(T)}, {r2(e)}")
        out.append(f"v_pk_mul_f32 {r2(T + 2)}, {r2(T + 2)}, {r2(e + 2)}")
    for c in range(2):
        T = TILE(p, c)
        out.append(f"v_cvt_pk_bf16_f32 v{R + 2 * c}, v{T}, v{T + 1}")
        out.append(f"v_cvt_pk_bf16_f32 v{R + 2 * c + 1}, v{T + 2}, v{T + 3}")
    return out, R

def store_pair(p, R, cfg):
    out = [f"v_permlane16_swap_b32 v{R}, v{R + 2}", f"v_permlane16_swap_b32 v{R + 1}, v{R + 3}"]
    if p < 4: out.append(f"buffer_store_dwordx4 {r4(R)}, v{V_OM}, s[{S_O}:{S_O + 3}], s{S_OM} offen offset:{p * ROWB} {cfg.stflags}")
    elif p < 8: out.append(f"buffer_store_dwordx4 {r4(R)}, v{V_OM}, s[{S_O}:{S_O + 3}], s{S_OM2} offen offset:{(p - 4) * ROWB} {cfg.stflags}")
    else: out.append(f"buffer_store_dwordx4 {r4(R)}, v{V_OE}, s[{S_O}:{S_O + 3}], s{S_OE} offen {cfg.stflags}")
    return out

def bn_params(a, cfg, voff, dst_s, dst_b, tmp, first):
    if first:
        for i, sp in enumerate((8, 10, 12, 14)):
            a(f"global_load_dwordx2 {r2(tmp + 2 * i)}, v{voff}, s[{sp}:{sp + 1}]")
        return
    mean, var, g, b = tmp, tmp + 2, tmp + 4, tmp + 6
    w = tmp + 8
    def unpack(dst, src, i):
        if i & 1: a(f"v_and_b32 v{dst}, 0xffff0000, v{src + (i >> 1)}")
        else: a(f"v_lshlrev_b32 v{dst}, 16, v{src + (i >> 1)}")
    def rnd(x):
        a(f"v_cvt_pk_bf16_f32 v{x}, v{x}, v{x}\nv_lshlrev_b32 v{x}, 16, v{x}")
    for i in range(4):
        unpack(w, var, i)
        a(f"v_add_f32 v{w}, 0x3727c5ac, v{w}")
        if cfg.mimic:
            rnd(w)
            a(f"v_sqrt_f32 v{w}, v{w}\ns_nop 0"); rnd(w)
            a(f"v_rcp_f32 v{w}, v{w}\ns_nop 0"); rnd(w)
        else:
            a(f"v_rsq_f32 v{w}, v{w}")
        unpack(w + 1, g, i)
        a(f"v_mul_f32 v{w}, v{w}, v{w + 1}")
        if cfg.mimic: rnd(w)
        unpack(w + 1, mean, i)
        unpack(w + 2, b, i)
        a(f"v_fma_f32 v{w + 2}, -v{w + 1}, v{w}, v{w + 2}")
        a(f"v_mul_f32 v{dst_s + i}, s{S_C}, v{w}")
        a(f"v_mul_f32 v{dst_b + i}, s{S_C}, v{w + 2}")

def compute_prog(a, cfg, prog, wv):
    n = prog.name + ('' if wv is None else str(wv))
    bar_every = prog.special or not cfg.p1
    a(f"L_{n}_go:")
    stamp(a, cfg, 1)
    a("s_barrier")
    stamp(a, cfg, 2)
    for r in read_list(prog, 0, 0): a(r)
    a(f"s_mov_b32 s{S_CNT}, 8")
    a(f"s_mov_b32 s{S_XOFF}, 0")
    a(f"s_mov_b32 s{S_DW}, {2 * prog.WS}")
    a(f"s_mov_b32 s{S_XBP}, {prog.XB}")
    a(f"L_{n}_loop:")
    def step(s, last=False, bar=True):
        a("s_waitcnt lgkmcnt(0)")
        if bar: a("s_barrier")
        m = mfma_list(prog, s, wv)
        if last:
            for x in m: a(x)
            return
        fill = addr_updates(prog, s == 1) + read_list(prog, 1 - s, 1 - s)
        for x in interleave(m, fill, cfg.rd_span): a(x)
    a(f"s_cmp_eq_u32 s{S_XOFF}, 2")
    a(f"s_cselect_b32 s{S_DX}, {(-2 * prog.XB) & 0xffffffff}, s{S_XBP}")
    a(f"s_cselect_b32 s{S_XOFF}, -1, s{S_XOFF}")
    a(f"s_add_u32 s{S_XOFF}, s{S_XOFF}, 1")
    step(0, bar=bar_every)
    step(1)
    a(f"s_sub_u32 s{S_DW}, 0, s{S_DW}")
    a(f"s_sub_u32 s{S_CNT}, s{S_CNT}, 1")
    a(f"s_cmp_lg_u32 s{S_CNT}, 0")
    a(f"s_cbranch_scc1 L_{n}_loop")
    step(0, bar=bar_every)
    step(1, last=True, bar=False)
    a(f"s_branch L_{prog.name}_epi")

def epilogue(a, cfg, prog):
    a(f"L_{prog.name}_epi:")
    stamp(a, cfg, 3)
    a("s_waitcnt vmcnt(0)")
    tmps = [16, 32]
    pend = None
    for p in range(9):
        ops, R = epilogue_pair(p, prog, tmps[p & 1])
        if pend:
            for x in ops[:2]: a(x)
            for x in pend: a(x)
            for x in ops[2:]: a(x)
        else:
            for x in ops: a(x)
        pend = store_pair(p, R, cfg)
    a("s_nop 1")
    for x in pend: a(x)
    stamp(a, cfg, 4)
    if cfg.stamps:
        a("s_waitcnt vmcnt(0)")
        stamp(a, cfg, 5)
        a(f"s_cmp_lg_u32 s{S_WAVE}, 0\ns_cbranch_scc1 L_end")
        a(f"s_memrealtime s[{S_ST + 2}:{S_ST + 3}]")
        a("s_load_dwordx2 s[4:5], s[0:1], 64\ns_waitcnt lgkmcnt(0)")
        a(f"v_mov_b32 v16, s{S_ST}\nv_mov_b32 v17, s{S_ST + 1}\nv_mov_b32 v18, s{S_ST + 2}\nv_mov_b32 v19, s{S_ST + 3}")
        for i in range(1, 6):
            a(f"s_sub_u32 s{S_TMP}, s{S_ST + 4 + 2 * i}, s{S_ST + 4}\nv_mov_b32 v{18 + 2 * i}, s{S_TMP}\nv_mov_b32 v{19 + 2 * i}, 0")
        a(f"s_mul_i32 s{S_TMP}, s2, 56\nv_mov_b32 v32, s{S_TMP}")
        a("v_cmp_eq_u32 vcc, 0, v0\ns_and_saveexec_b64 s[6:7], vcc")
        a("global_store_dwordx4 v32, v[16:19], s[4:5]\nglobal_store_dwordx4 v32, v[20:23], s[4:5] offset:16")
        a("global_store_dwordx4 v32, v[24:27], s[4:5] offset:32\nglobal_store_dwordx2 v32, v[28:29], s[4:5] offset:48")
    a("s_endpgm")

def loader_prog(a, cfg, prog):
    n = prog.name
    sXm, sXq, sW, mXm, mXq, mW, sE, mE = 62, 63, 64, 65, 66, 67, 68, 69
    tmp = 70
    vXm, vXq, vW, vE = 2, 3, 4, 5
    seq = []
    def dma(v, srd, sbase, soff, mbase, moff, tag):
        a(f"s_add_u32 m0, s{mbase}, {moff}")
        a(f"s_add_u32 s{tmp}, s{sbase}, {soff}")
        a(f"buffer_load_dwordx4 v{v}, s[{srd}:{srd + 3}], s{tmp} offen lds")
        seq.append(tag)
    def issue_x(t):
        buf = (t % 3) * prog.XB
        if not prog.special:
            for s in range(8): dma(vXm, S_X, sXm, s * ROWB + t * 128, mXm, buf + s * 2048, ('x', t))
            dma(vXq, S_X, sXq, t * 128, mXq, buf, ('x', t))
        else:
            for s in range(4): dma(vXm, S_X, sXm, s * ROWB + t * 128, mXm, buf + s * 2048, ('x', t))
    def issue_w(j):
        buf = (j & 3) * prog.WS
        for tap in (1, 2, 0):
            dma(vW, S_W, sW, tap * TAPB + j * 32 * ROWB, mW, buf + tap * 4096, ('w', j))
            if prog.special:
                dma(vW, S_W, sW, tap * TAPB + j * 32 * ROWB + 128, mW, buf + 12288 + tap * 4096, ('w', j))
        if prog.special:
            a(f"s_mul_i32 s{tmp + 1}, s{tmp + 2}, {j & 3}")
            a(f"s_add_u32 m0, s{mE}, s{tmp + 1}")
            a(f"s_add_u32 s{tmp}, s{sE}, {j * 32 * ROWB}")
            a(f"buffer_load_dwordx4 v{vE}, s[{S_W}:{S_W + 3}], s{tmp} offen lds")
            seq.append(('w', j))
    def wait_for(need):
        last = max(i for i, t in enumerate(seq) if t in need)
        a(f"s_waitcnt vmcnt({len(seq) - 1 - last})")
    p1 = cfg.p1 and not prog.special
    issue_w(0); issue_x(0); issue_w(1); issue_x(1); issue_w(2); issue_w(3); issue_x(2)
    if not p1:
        for j in range(18):
            wait_for({('w', j), ('x', j >> 1)})
            a("s_barrier")
            if j >= 1:
                if j + 3 < 18: issue_w(j + 3)
                if j % 2 == 0 and (j >> 1) + 2 < 9: issue_x((j >> 1) + 2)
    else:
        for j in range(0, 18, 2):
            wait_for({('w', j), ('w', j + 1), ('x', j >> 1)})
            a("s_barrier")
            if j >= 2:
                if j + 2 < 18: issue_w(j + 2); issue_w(j + 3)
                if (j >> 1) + 2 < 9: issue_x((j >> 1) + 2)
    a("s_endpgm")

def gen(cfg):
    a = A()
    hdr = open('standalone__batchnorm__sampling.s.ref').read().split('; Override')[0]
    a.L.append(hdr.rstrip())
    a.L.append("; @launch grid=(256,1,1) block=(512,1,1) lds=163840")
    a(f'.amdgcn_target "amdgcn-amd-amdhsa--gfx950"\n.text\n.globl {KNAME}\n.p2align 8\n.type {KNAME},@function\n{KNAME}:')
    if cfg.stamps:
        a(f"s_memrealtime s[{S_ST}:{S_ST + 1}]"); stamp(a, cfg, 0)
    a("s_cmp_ge_u32 s2, 256\ns_cbranch_scc1 L_end")
    a("s_load_dwordx16 s[4:19], s[0:1], 0")
    a("v_lshrrev_b32 v1, 6, v0\nv_and_b32 v0, 63, v0")
    a(f"s_and_b32 s{S_TMP}, s2, 7\ns_lshr_b32 s{S_TMP + 1}, s2, 3")
    a(f"v_readfirstlane_b32 s{S_WAVE}, v1")
    a(f"s_lshr_b32 s{S_M}, s{S_TMP}, 1\ns_and_b32 s{S_TMP}, s{S_TMP}, 1\ns_lshl_b32 s{S_TMP}, s{S_TMP}, 5\ns_add_u32 s{S_T}, s{S_TMP}, s{S_TMP + 1}")
    a(f"s_mov_b32 s{S_C}, {NLOG2E:#x}\ns_mov_b32 s{S_C + 1}, {NLOG2E:#x}")
    a(f"s_cmp_eq_u32 s{S_T}, 63\ns_cbranch_scc1 L_special")
    def srds():
        a("s_waitcnt lgkmcnt(0)")
        for srd, p, nb in ((S_X, 4, XBYTES), (S_W, 6, WBYTES), (S_O, 16, XBYTES)):
            a(f"s_mov_b32 s{srd}, s{p}\ns_and_b32 s{srd + 1}, s{p + 1}, 0xffff\ns_mov_b32 s{srd + 2}, {nb}\ns_mov_b32 s{srd + 3}, 0x20000")
    sXm, sXq, sW, mXm, mXq, mW, sE, mE = 62, 63, 64, 65, 66, 67, 68, 69
    T = S_TMP
    for special in (False, True):
        prog = Prog(special)
        n = prog.name
        if not special:
            a(f"s_mul_i32 s{S_R}, s{S_T}, 57\ns_lshr_b32 s{S_R}, s{S_R}, 9")
            a(f"s_mul_i32 s{T}, s{S_R}, 9\ns_sub_u32 s{S_LINE}, s{S_T}, s{T}")
            a(f"s_mul_i32 s{T}, s{S_M}, 7\ns_add_u32 s{S_R}, s{S_R}, s{T}\ns_mul_i32 s{S_B0}, s{S_R}, {36 * BATB}")
        else:
            a("L_special:")
            a(f"s_lshl_b32 s{S_LINE}, s{S_M}, 1\ns_mov_b32 s{S_B0}, {1008 * BATB}")
        a(f"s_cmp_ge_u32 s{S_WAVE}, 4\ns_cbranch_scc0 L_{n}_comp")
        a(f"s_sub_u32 s{T}, s{S_WAVE}, 4")
        a(f"s_and_b32 s{T + 1}, s{T}, 1\ns_lshr_b32 s{T + 2}, s{T}, 1")
        a("v_lshrrev_b32 v10, 3, v0\nv_and_b32 v11, 7, v0\nv_lshrrev_b32 v12, 1, v10")
        a(f"s_lshl_b32 s{T + 3}, s{T + 1}, 2")
        a(f"v_and_b32 v13, 1, v12\nv_lshlrev_b32 v13, 1, v13\nv_xor_b32 v13, v13, v11\nv_xor_b32 v13, s{T + 3}, v13")
        a(f"v_mul_u32_u24 v14, {ROWB}, v10\nv_lshl_add_u32 v4, v13, 4, v14")
        a(f"s_mul_i32 s{sW}, s{T}, {8 * ROWB}\ns_lshl_b32 s{T + 4}, s{S_LINE}, 7\ns_add_u32 s{sW}, s{sW}, s{T + 4}")
        a(f"s_lshl_b32 s{mW}, s{T}, 10\ns_add_u32 s{mW}, s{mW}, {prog.WB0}")
        a(f"v_xor_b32 v13, v12, v11\nv_xor_b32 v13, s{T + 3}, v13\nv_mul_u32_u24 v15, {BATB}, v10\nv_lshl_add_u32 v2, v13, 4, v15")
        a(f"s_mul_i32 s{sXm}, s{T + 1}, {8 * BATB}\ns_add_u32 s{sXm}, s{sXm}, s{S_B0}")
        a(f"s_lshl_b32 s{mXm}, s{T + 1}, 10")
        if not special:
            a(f"s_mul_i32 s{T + 4}, s{T + 2}, {16 * BATB}\ns_add_u32 s{sXm}, s{sXm}, s{T + 4}")
            a(f"s_lshl_b32 s{T + 4}, s{T + 2}, 14\ns_add_u32 s{mXm}, s{mXm}, s{T + 4}")
            a(f"s_mul_i32 s{T + 4}, s{T}, 9\ns_add_u32 s{T + 4}, s{T + 4}, 1")
            a(f"v_add_u32 v13, s{T + 4}, v10\nv_bfe_u32 v13, v13, 1, 3\nv_xor_b32 v13, v13, v11\nv_lshl_add_u32 v3, v13, 4, v14")
            a(f"s_lshl_b32 s{mXq}, s{T + 4}, 7\ns_add_u32 s{mXq}, s{mXq}, 32768")
            a(f"s_add_u32 s{T + 4}, s{T}, 32\ns_mul_i32 s{T + 4}, s{T + 4}, {BATB}\ns_add_u32 s{sXq}, s{T + 4}, s{S_B0}")
        else:
            a(f"s_mul_i32 s{T + 4}, s{T + 2}, {4 * ROWB}\ns_add_u32 s{sXm}, s{sXm}, s{T + 4}")
            a(f"s_lshl_b32 s{T + 4}, s{T + 2}, 13\ns_add_u32 s{mXm}, s{mXm}, s{T + 4}")
            a("v_lshrrev_b32 v13, 1, v0\nv_bfe_u32 v14, v0, 4, 1\nv_lshlrev_b32 v14, 2, v14\nv_xor_b32 v13, v13, v14")
            a(f"v_mul_u32_u24 v13, {ROWB}, v13\nv_and_b32 v14, 1, v0\nv_lshl_add_u32 v5, v14, 4, v13")
            a(f"s_mul_i32 s{sE}, s{T}, {TAPB}\ns_lshl_b32 s{T + 4}, s{S_M}, 5\ns_add_u32 s{sE}, s{sE}, s{T + 4}\ns_add_u32 s{sE}, s{sE}, 1024")
            a(f"s_lshl_b32 s{mE}, s{T}, 10\ns_add_u32 s{mE}, s{mE}, {prog.WB0 + 24576}")
            a(f"s_cmp_eq_u32 s{T}, 3")
            a(f"s_cselect_b32 s{mE}, {prog.WB0 + 4 * prog.WS}, s{mE}")
            a(f"s_cselect_b32 s72, 0, {prog.WS}")
            a(f"s_cselect_b32 s{T + 4}, 0x40000000, 0")
            a(f"v_add_u32 v5, s{T + 4}, v5")
        srds()
        loader_prog(a, cfg, prog)
        a(f"L_{n}_comp:")
        a(f"s_lshr_b32 s{T}, s{S_WAVE}, 1\ns_and_b32 s{T + 1}, s{S_WAVE}, 1")
        a("v_and_b32 v10, 15, v0\nv_lshrrev_b32 v11, 4, v0")
        if special:
            a(f"s_add_u32 s{S_LINE}, s{S_LINE}, s{T}")
        a(f"s_lshl_b32 s{T + 2}, s{S_LINE}, 7\ns_lshl_b32 s{T + 3}, s{T + 1}, 6\ns_add_u32 s{T + 2}, s{T + 2}, s{T + 3}")
        a(f"v_lshl_add_u32 v12, v11, 3, s{T + 2}\nv_add_u32 v13, 32, v12")
        if special:
            a(f"s_lshl_b32 s{T + 3}, s{S_M}, 5\ns_add_u32 s{T + 3}, s{T + 3}, 1024\nv_lshl_add_u32 v14, v11, 3, s{T + 3}")
        srds()
        bn_params(a, cfg, 12, None, None, 16, True)
        bn_params(a, cfg, 13, None, None, 32, True)
        if special: bn_params(a, cfg, 14, None, None, 48, True)
        a("v_and_b32 v14, 1, v11\nv_lshrrev_b32 v15, 1, v11")
        a(f"v_mul_u32_u24 v{V_OM}, {BATB}, v10\nv_lshl_add_u32 v{V_OM}, v15, 4, v{V_OM}")
        if not special:
            a(f"v_lshl_add_u32 v{V_OM}, v14, 5, v{V_OM}")
            a(f"v_lshrrev_b32 v12, 3, v10\nv_and_b32 v13, 7, v10")
            a(f"v_mul_u32_u24 v{V_OE}, {BATB}, v12\nv_mul_u32_u24 v64, {ROWB}, v13\nv_add_u32 v{V_OE}, v{V_OE}, v64")
            a(f"v_lshl_add_u32 v{V_OE}, v15, 4, v{V_OE}\nv_lshl_add_u32 v{V_OE}, v14, 5, v{V_OE}")
            a(f"s_mul_i32 s{T + 3}, s{T}, {16 * BATB}\ns_add_u32 s{S_OM}, s{S_B0}, s{T + 3}\ns_add_u32 s{S_OM}, s{S_OM}, s{T + 2}")
            a(f"s_mul_i32 s{T + 3}, s{T}, {2 * BATB}\ns_add_u32 s{S_OE}, s{S_B0}, s{T + 3}\ns_add_u32 s{S_OE}, s{S_OE}, {32 * BATB}\ns_add_u32 s{S_OE}, s{S_OE}, s{T + 2}")
            a(f"s_mul_i32 s{T + 3}, s{T}, 18\nv_mad_u32_u24 v64, v12, 9, v13\nv_add_u32 v64, s{T + 3}, v64")
            for t in range(3):
                a(f"v_add_u32 v65, {t}, v64\nv_bfe_u32 v66, v65, 1, 3\nv_xor_b32 v66, v66, v11\nv_lshlrev_b32 v66, 4, v66")
                a(f"v_lshl_add_u32 v66, v65, 7, v66\nv_add_u32 v{V_Q[t]}, 32768, v66")
        else:
            a(f"v_mul_u32_u24 v64, {ROWB}, v14\nv_add_u32 v{V_OE}, v{V_OM}, v64")
            a(f"v_lshl_add_u32 v{V_OM}, v14, 5, v{V_OM}")
            a(f"s_add_u32 s{S_OM}, s{S_B0}, s{T + 2}")
            a(f"s_mul_i32 s{T + 3}, s{S_WAVE}, {2 * ROWB}\ns_add_u32 s{S_OE}, s{S_B0}, s{T + 3}")
            a(f"s_lshl_b32 s{T + 3}, s{S_M}, 5\ns_add_u32 s{S_OE}, s{S_OE}, s{T + 3}\ns_add_u32 s{S_OE}, s{S_OE}, 1024")
        a(f"s_add_u32 s{S_OM2}, s{S_OM}, {4 * ROWB}")
        a(f"v_lshrrev_b32 v64, 1, v10\nv_xor_b32 v64, v64, v11\nv_lshlrev_b32 v64, 4, v64\nv_lshl_add_u32 v{V_XA}, v10, 7, v64")
        if not special:
            a(f"s_lshl_b32 s{T + 3}, s{T}, 14\nv_add_u32 v{V_XA}, s{T + 3}, v{V_XA}")
        a("v_lshrrev_b32 v64, 2, v10\nv_and_b32 v65, 3, v10\nv_lshl_add_u32 v66, v11, 3, v64")
        a("v_bfe_u32 v67, v64, 1, 1\nv_lshlrev_b32 v67, 1, v67\nv_lshl_add_u32 v67, v14, 2, v67")
        a(f"s_lshl_b32 s{T + 3}, s{T + 1}, 2\nv_lshrrev_b32 v68, 1, v65\nv_add_u32 v68, s{T + 3}, v68")
        a("v_and_b32 v69, 1, v65\nv_lshlrev_b32 v69, 3, v69\nv_lshl_add_u32 v69, v66, 7, v69")
        if special:
            a(f"s_mul_i32 s{T + 3}, s{T}, 12288\ns_add_u32 s{T + 3}, s{T + 3}, {prog.WB0}")
        else:
            a(f"s_mov_b32 s{T + 3}, {prog.WB0}")
        a(f"v_add_u32 v69, s{T + 3}, v69")
        for c in range(2):
            a(f"v_add_u32 v70, {2 * c}, v68\nv_xor_b32 v70, v70, v67\nv_lshl_add_u32 v{V_WA[c]}, v70, 4, v69")
        if special:
            a(f"v_lshl_add_u32 v70, v14, 2, v66\nv_lshlrev_b32 v70, 5, v70\nv_lshl_add_u32 v70, v65, 3, v70")
            a(f"v_add_u32 v{V_Q[0]}, {prog.WB0 + 24576}, v70\nv_xor_b32 v70, 128, v70\nv_add_u32 v{V_Q[1]}, {prog.WB0 + 24576}, v70")
        else:
            a(f"v_lshrrev_b32 v64, 3, v0\ns_lshl_b32 s{T + 3}, s{S_WAVE}, 3\nv_add_u32 v64, s{T + 3}, v64")
            a("v_mul_u32_u24 v65, 52, v64\nv_lshrrev_b32 v65, 8, v65")
            a("v_mul_u32_u24 v66, 5, v65\nv_sub_u32 v66, v64, v66")
            a(f"v_mul_u32_u24 v65, {prog.XB}, v65\nv_mul_u32_u24 v66, {9 * 128}, v66\nv_add_u32 v65, v65, v66")
            a("v_and_b32 v66, 7, v0\nv_lshl_add_u32 v65, v66, 4, v65\nv_add_u32 v65, 32768, v65")
            a("v_mov_b32 v72, 0\nv_mov_b32 v73, 0\nv_mov_b32 v74, 0\nv_mov_b32 v75, 0")
            a("v_cmp_gt_u32 vcc, 15, v64\ns_and_saveexec_b64 s[58:59], vcc")
            a("ds_write_b128 v65, v[72:75]")
            a("s_mov_b64 exec, s[58:59]")
        for r in range(ACC, ACC + 72): a(f"v_mov_b32 v{r}, 0")
        a("s_waitcnt vmcnt(0)")
        bn_params(a, cfg, None, P_S(0), P_B(0), 16, False)
        bn_params(a, cfg, None, P_S(1), P_B(1), 32, False)
        if special: bn_params(a, cfg, None, PE_S, PE_B, 48, False)
        a("s_waitcnt lgkmcnt(0)")
        if not special:
            compute_prog(a, cfg, prog, None)
        else:
            for wv in range(1, 4):
                a(f"s_cmp_eq_u32 s{S_WAVE}, {wv}\ns_cbranch_scc1 L_sp{wv}_go")
            for wv in range(4): compute_prog(a, cfg, prog, wv)
        epilogue(a, cfg, prog)
    a("L_end:\ns_endpgm")
    a(f""".section .rodata,"a"
.p2align 6
.amdhsa_kernel {KNAME}
  .amdhsa_next_free_vgpr 256
  .amdhsa_next_free_sgpr 96
  .amdhsa_accum_offset 256
  .amdhsa_group_segment_fixed_size 0
  .amdhsa_kernarg_size 72
  .amdhsa_user_sgpr_count 2
  .amdhsa_user_sgpr_kernarg_segment_ptr 1
  .amdhsa_system_sgpr_workgroup_id_x 1
  .amdhsa_float_denorm_mode_32 3
.end_amdhsa_kernel""")
    return a.text() + '\n'

if __name__ == '__main__':
    ap = argparse.ArgumentParser()
    ap.add_argument('-o', default='k.s')
    ap.add_argument('opts', nargs='*')
    args = ap.parse_args()
    kw = {}
    for o in args.opts:
        k, v = o.split('=')
        try: v = eval(v)
        except Exception: pass
        kw[k] = v
    open(args.o, 'w').write(gen(Cfg(**kw)))
```

```python
import sys, argparse

KNAME = "standalone__batchnorm__sampling_kernel"
ROWB = 1152
BATB = 9216
TAPB = 663552
XBYTES = 9437184
WBYTES = 1990656
NLOG2E = 0xbfb8aa3b

class Cfg:
    def __init__(self, **kw):
        self.stamps = False
        self.dbgwg = -1
        self.echo = None
        self.stflags = 'sc1'
        self.p1 = False
        self.mimic = False
        self.rd_span = 40
        self.__dict__.update(kw)

class A:
    def __init__(self): self.L = []
    def __call__(self, s):
        for l in s.split('\n'):
            l = l.strip()
            if l: self.L.append(l)
    def text(self):
        return '\n'.join((l if l.endswith(':') or l.startswith('.') or l.startswith(';') else '    ' + l) for l in self.L)

V_XA = 2
V_Q = [3, 4, 5]
V_WA = [6, 7]
V_OM, V_OE = 8, 9
V_T = 10
SETB = [16, 84]
def XF(s, p): return SETB[s] + 4 * p
def EF(s, t): return SETB[s] + 32 + 4 * t
def WF(s, c, t): return SETB[s] + 44 + 4 * (3 * c + t)
ACC = 152
def TILE(p, c): return ACC + 4 * (2 * p + c)
PS = 224
def P_S(c): return PS + 4 * c
def P_B(c): return PS + 8 + 4 * c
PE_S, PE_B = 240, 244
def r4(b): return f"v[{b}:{b+3}]"
def r2(b): return f"v[{b}:{b+1}]"

S_X, S_W, S_O = 20, 24, 28
S_WAVE = 33
S_M, S_T, S_R, S_LINE, S_B0 = 36, 37, 38, 39, 40
S_TMP = 41
S_OM, S_OM2, S_OE = 48, 49, 50
S_DX, S_DW = 51, 52
S_CNT = 53
S_XOFF = 54
S_C = 56
S_ST = 76
S_XBP = 55

class Prog:
    def __init__(self, special):
        self.special = special
        if not special:
            self.XB = 37632; self.WB0 = 3 * 37632; self.WS = 12288
        else:
            self.XB = 16384; self.WB0 = 3 * 16384; self.WS = 27648
        self.name = 'sp' if special else 'pu'

def interleave(main, fill, span):
    out = []; m = len(fill); j = 0
    for i, x in enumerate(main):
        out.append(x)
        if i < span:
            tgt = ((i + 1) * m + span - 1) // span
            while j < min(tgt, m):
                out.append(fill[j]); j += 1
    out += fill[j:]
    return out

def mfma_list(prog, s, wv):
    out = []
    flip = False
    def chain(tile, items):
        for (a_, b_) in items:
            out.append(f"v_mfma_f32_16x16x32_bf16 {r4(tile)}, {r4(a_)}, {r4(b_)}, {r4(tile)}")
    for p in range(8):
        for c in range(2):
            taps = [t for t in range(3) if 0 <= p + t - 1 < 8]
            if c == 1: taps = taps[::-1]
            chain(TILE(p, c), [(WF(s, c, t), XF(s, p + t - 1)) for t in taps])
    if not prog.special:
        for c in range(2):
            taps = [0, 1, 2] if c == 0 else [2, 1, 0]
            chain(TILE(8, c), [(WF(s, c, t), EF(s, t)) for t in taps])
    else:
        for i in range(2):
            p = 2 * wv + i
            taps = [t for t in range(3) if 0 <= p + t - 1 < 8]
            if i == 1: taps = taps[::-1]
            chain(TILE(8, i), [(EF(s, t), XF(s, p + t - 1)) for t in taps])
    return out

def read_list(prog, s, ring):
    rd = []
    wo = ring * prog.WS
    def wr(c, t):
        d = WF(s, c, t)
        rd.append(f"ds_read_b64_tr_b16 {r2(d)}, v{V_WA[c]} offset:{wo + t * 4096}")
        rd.append(f"ds_read_b64_tr_b16 {r2(d + 2)}, v{V_WA[c]} offset:{wo + t * 4096 + 512}")
    def xr(p): rd.append(f"ds_read_b128 {r4(XF(s, p))}, v{V_XA} offset:{p * 2048}")
    wr(0, 1); xr(0); wr(0, 2); xr(1); wr(1, 2); wr(1, 1); wr(0, 0); xr(2); wr(1, 0)
    for p in range(3, 8): xr(p)
    for t in range(3):
        d = EF(s, t)
        if not prog.special:
            rd.append(f"ds_read_b128 {r4(d)}, v{V_Q[t]}")
        else:
            rd.append(f"ds_read_b64_tr_b16 {r2(d)}, v{V_Q[0]} offset:{wo + t * 1024}")
            rd.append(f"ds_read_b64_tr_b16 {r2(d + 2)}, v{V_Q[1]} offset:{wo + t * 1024}")
    return rd

def addr_updates(prog, stage_change):
    up = []
    d = f"s{S_DX}" if stage_change else "0"
    up.append(f"v_xad_u32 v{V_XA}, v{V_XA}, 64, {d}")
    if not prog.special:
        for t in range(3): up.append(f"v_xad_u32 v{V_Q[t]}, v{V_Q[t]}, 64, {d}")
    if stage_change:
        for c in range(2): up.append(f"v_add_u32 v{V_WA[c]}, s{S_DW}, v{V_WA[c]}")
        if prog.special:
            for h in range(2): up.append(f"v_add_u32 v{V_Q[h]}, s{S_DW}, v{V_Q[h]}")
    return up

def stamp(a, cfg, i):
    if cfg.echo is not None:
        if i == 0: a("s_memrealtime s[76:77]")
        if i == cfg.echo[0]: a("s_memrealtime s[78:79]")
    if cfg.stamps:
        a(f"s_memtime s[{S_ST + 4 + 2 * i}:{S_ST + 5 + 2 * i}]")

def epilogue_pair(p, prog, tmp):
    out = []
    R = tmp + 12
    for c in range(2):
        T = TILE(p, c)
        if p == 8 and prog.special: ps, pb = PE_S, PE_B
        else: ps, pb = P_S(c), P_B(c)
        e = tmp + 4 * c
        out.append(f"v_pk_fma_f32 {r2(T)}, {r2(T)}, {r2(ps)}, {r2(pb)}")
        out.append(f"v_pk_fma_f32 {r2(T + 2)}, {r2(T + 2)}, {r2(ps + 2)}, {r2(pb + 2)}")
        for i in range(4): out.append(f"v_exp_f32 v{e + i}, v{T + i}")
    for c in range(2):
        T = TILE(p, c); e = tmp + 4 * c
        out.append(f"v_pk_fma_f32 {r2(e)}, {r2(e)}, s[{S_C}:{S_C + 1}], s[{S_C}:{S_C + 1}]")
        out.append(f"v_pk_fma_f32 {r2(e + 2)}, {r2(e + 2)}, s[{S_C}:{S_C + 1}], s[{S_C}:{S_C + 1}]")
        for i in range(4): out.append(f"v_rcp_f32 v{e + i}, v{e + i}")
    for c in range(2):
        T = TILE(p, c); e = tmp + 4 * c
        out.append(f"v_pk_mul_f32 {r2(T)}, {r2(T)}, {r2(e)}")
        out.append(f"v_pk_mul_f32 {r2(T + 2)}, {r2(T + 2)}, {r2(e + 2)}")
    for c in range(2):
        T = TILE(p, c)
        out.append(f"v_cvt_pk_bf16_f32 v{R + 2 * c}, v{T}, v{T + 1}")
        out.append(f"v_cvt_pk_bf16_f32 v{R + 2 * c + 1}, v{T + 2}, v{T + 3}")
    return out, R

def store_pair(p, R, cfg):
    out = [f"v_permlane16_swap_b32 v{R}, v{R + 2}", f"v_permlane16_swap_b32 v{R + 1}, v{R + 3}"]
    if p < 4: out.append(f"buffer_store_dwordx4 {r4(R)}, v{V_OM}, s[{S_O}:{S_O + 3}], s{S_OM} offen offset:{p * ROWB} {cfg.stflags}")
    elif p < 8: out.append(f"buffer_store_dwordx4 {r4(R)}, v{V_OM}, s[{S_O}:{S_O + 3}], s{S_OM2} offen offset:{(p - 4) * ROWB} {cfg.stflags}")
    else: out.append(f"buffer_store_dwordx4 {r4(R)}, v{V_OE}, s[{S_O}:{S_O + 3}], s{S_OE} offen {cfg.stflags}")
    return out

def bn_params(a, cfg, voff, dst_s, dst_b, tmp, first):
    if first:
        for i, sp in enumerate((8, 10, 12, 14)):
            a(f"global_load_dwordx2 {r2(tmp + 2 * i)}, v{voff}, s[{sp}:{sp + 1}]")
        return
    mean, var, g, b = tmp, tmp + 2, tmp + 4, tmp + 6
    w = tmp + 8
    def unpack(dst, src, i):
        if i & 1: a(f"v_and_b32 v{dst}, 0xffff0000, v{src + (i >> 1)}")
        else: a(f"v_lshlrev_b32 v{dst}, 16, v{src + (i >> 1)}")
    def rnd(x):
        a(f"v_cvt_pk_bf16_f32 v{x}, v{x}, v{x}\nv_lshlrev_b32 v{x}, 16, v{x}")
    for i in range(4):
        unpack(w, var, i)
        a(f"v_add_f32 v{w}, 0x3727c5ac, v{w}")
        if cfg.mimic:
            rnd(w)
            a(f"v_sqrt_f32 v{w}, v{w}\ns_nop 0"); rnd(w)
            a(f"v_rcp_f32 v{w}, v{w}\ns_nop 0"); rnd(w)
        else:
            a(f"v_rsq_f32 v{w}, v{w}")
        unpack(w + 1, g, i)
        a(f"v_mul_f32 v{w}, v{w}, v{w + 1}")
        if cfg.mimic: rnd(w)
        unpack(w + 1, mean, i)
        unpack(w + 2, b, i)
        a(f"v_fma_f32 v{w + 2}, -v{w + 1}, v{w}, v{w + 2}")
        a(f"v_mul_f32 v{dst_s + i}, s{S_C}, v{w}")
        a(f"v_mul_f32 v{dst_b + i}, s{S_C}, v{w + 2}")

def compute_prog(a, cfg, prog, wv):
    n = prog.name + ('' if wv is None else str(wv))
    bar_every = prog.special or not cfg.p1
    a(f"L_{n}_go:")
    stamp(a, cfg, 1)
    a("s_barrier")
    stamp(a, cfg, 2)
    for r in read_list(prog, 0, 0): a(r)
    a(f"s_mov_b32 s{S_CNT}, 8")
    a(f"s_mov_b32 s{S_XOFF}, 0")
    a(f"s_mov_b32 s{S_DW}, {2 * prog.WS}")
    a(f"s_mov_b32 s{S_XBP}, {prog.XB}")
    a(f"L_{n}_loop:")
    def step(s, last=False, bar=True):
        a("s_waitcnt lgkmcnt(0)")
        if bar: a("s_barrier")
        m = mfma_list(prog, s, wv)
        if last:
            for x in m: a(x)
            return
        fill = addr_updates(prog, s == 1) + read_list(prog, 1 - s, 1 - s)
        for x in interleave(m, fill, cfg.rd_span): a(x)
    a(f"s_cmp_eq_u32 s{S_XOFF}, 2")
    a(f"s_cselect_b32 s{S_DX}, {(-2 * prog.XB) & 0xffffffff}, s{S_XBP}")
    a(f"s_cselect_b32 s{S_XOFF}, -1, s{S_XOFF}")
    a(f"s_add_u32 s{S_XOFF}, s{S_XOFF}, 1")
    step(0, bar=bar_every)
    step(1)
    a(f"s_sub_u32 s{S_DW}, 0, s{S_DW}")
    a(f"s_sub_u32 s{S_CNT}, s{S_CNT}, 1")
    a(f"s_cmp_lg_u32 s{S_CNT}, 0")
    a(f"s_cbranch_scc1 L_{n}_loop")
    step(0, bar=bar_every)
    step(1, last=True, bar=False)
    a(f"s_branch L_{prog.name}_epi")

def epilogue(a, cfg, prog):
    a(f"L_{prog.name}_epi:")
    stamp(a, cfg, 3)
    a("s_waitcnt vmcnt(0)")
    tmps = [16, 32]
    pend = None
    for p in range(9):
        ops, R = epilogue_pair(p, prog, tmps[p & 1])
        if pend:
            for x in ops[:2]: a(x)
            for x in pend: a(x)
            for x in ops[2:]: a(x)
        else:
            for x in ops: a(x)
        pend = store_pair(p, R, cfg)
    a("s_nop 1")
    for x in pend: a(x)
    stamp(a, cfg, 4)
    if cfg.echo is not None:
        a("s_waitcnt vmcnt(0)")
        stamp(a, cfg, 5)
        a("s_memrealtime s[80:81]\ns_waitcnt lgkmcnt(0)")
        a(f"s_sub_u32 s78, s78, s76\ns_mul_i32 s78, s78, {cfg.echo[1]}")
        a(f"L_echo_{prog.name}:\ns_memrealtime s[82:83]\ns_waitcnt lgkmcnt(0)\ns_sub_u32 s82, s82, s80\ns_cmp_lt_u32 s82, s78\ns_cbranch_scc1 L_echo_{prog.name}")
    if cfg.stamps:
        a("s_waitcnt vmcnt(0)")
        stamp(a, cfg, 5)
        a(f"s_cmp_lg_u32 s{S_WAVE}, 0\ns_cbranch_scc1 L_end")
        a(f"s_memrealtime s[{S_ST + 2}:{S_ST + 3}]")
        a("s_load_dwordx2 s[4:5], s[0:1], 64\ns_waitcnt lgkmcnt(0)")
        a(f"v_mov_b32 v16, s{S_ST}\nv_mov_b32 v17, s{S_ST + 1}\nv_mov_b32 v18, s{S_ST + 2}\nv_mov_b32 v19, s{S_ST + 3}")
        for i in range(1, 6):
            a(f"s_sub_u32 s{S_TMP}, s{S_ST + 4 + 2 * i}, s{S_ST + 4}\nv_mov_b32 v{18 + 2 * i}, s{S_TMP}\nv_mov_b32 v{19 + 2 * i}, 0")
        a(f"s_mul_i32 s{S_TMP}, s2, 56\nv_mov_b32 v32, s{S_TMP}")
        a("v_cmp_eq_u32 vcc, 0, v0\ns_and_saveexec_b64 s[6:7], vcc")
        a("global_store_dwordx4 v32, v[16:19], s[4:5]\nglobal_store_dwordx4 v32, v[20:23], s[4:5] offset:16")
        a("global_store_dwordx4 v32, v[24:27], s[4:5] offset:32\nglobal_store_dwordx2 v32, v[28:29], s[4:5] offset:48")
        if cfg.dbgwg >= 0:
            a(f"s_cmp_lg_u32 s2, {cfg.dbgwg}\ns_cbranch_scc1 L_end")
            a("v_sub_u32 v16, v18, v16\nv_mov_b32 v17, v20\nv_mov_b32 v18, v22\nv_mov_b32 v19, v24\nv_mov_b32 v20, v26\nv_mov_b32 v21, v28\nv_mov_b32 v32, 0")
            a("global_store_dwordx4 v32, v[16:19], s[18:19]\nglobal_store_dwordx2 v32, v[20:21], s[18:19] offset:16")
    a("s_endpgm")

def loader_prog(a, cfg, prog):
    n = prog.name
    sXm, sXq, sW, mXm, mXq, mW, sE, mE = 62, 63, 64, 65, 66, 67, 68, 69
    tmp = 70
    vXm, vXq, vW, vE = 2, 3, 4, 5
    seq = []
    def dma(v, srd, sbase, soff, mbase, moff, tag):
        a(f"s_add_u32 m0, s{mbase}, {moff}")
        a(f"s_add_u32 s{tmp}, s{sbase}, {soff}")
        a(f"buffer_load_dwordx4 v{v}, s[{srd}:{srd + 3}], s{tmp} offen lds")
        seq.append(tag)
    def issue_x(t):
        buf = (t % 3) * prog.XB
        if not prog.special:
            for s in range(8): dma(vXm, S_X, sXm, s * ROWB + t * 128, mXm, buf + s * 2048, ('x', t))
            dma(vXq, S_X, sXq, t * 128, mXq, buf, ('x', t))
        else:
            for s in range(4): dma(vXm, S_X, sXm, s * ROWB + t * 128, mXm, buf + s * 2048, ('x', t))
    def issue_w(j):
        buf = (j & 3) * prog.WS
        for tap in (1, 2, 0):
            dma(vW, S_W, sW, tap * TAPB + j * 32 * ROWB, mW, buf + tap * 4096, ('w', j))
            if prog.special:
                dma(vW, S_W, sW, tap * TAPB + j * 32 * ROWB + 128, mW, buf + 12288 + tap * 4096, ('w', j))
        if prog.special:
            a(f"s_mul_i32 s{tmp + 1}, s{tmp + 2}, {j & 3}")
            a(f"s_add_u32 m0, s{mE}, s{tmp + 1}")
            a(f"s_add_u32 s{tmp}, s{sE}, {j * 32 * ROWB}")
            a(f"buffer_load_dwordx4 v{vE}, s[{S_W}:{S_W + 3}], s{tmp} offen lds")
            seq.append(('w', j))
    def wait_for(need):
        last = max(i for i, t in enumerate(seq) if t in need)
        a(f"s_waitcnt vmcnt({len(seq) - 1 - last})")
    p1 = cfg.p1 and not prog.special
    lg = [0]
    def lstamp():
        if cfg.stamps and lg[0] < 64:
            a(f"s_memtime s[92:93]\ns_waitcnt lgkmcnt(0)\ns_sub_u32 s92, s92, s{S_ST + 4}\nv_writelane_b32 v20, s92, {lg[0]}")
            lg[0] += 1
    lstamp()
    issue_w(0); issue_x(0); issue_w(1); issue_x(1); issue_w(2); issue_w(3); issue_x(2)
    lstamp()
    if not p1:
        for j in range(18):
            wait_for({('w', j), ('x', j >> 1)})
            lstamp()
            a("s_barrier")
            lstamp()
            if j >= 1:
                if j + 3 < 18: issue_w(j + 3)
                if j % 2 == 0 and (j >> 1) + 2 < 9: issue_x((j >> 1) + 2)
    else:
        for j in range(0, 18, 2):
            wait_for({('w', j), ('w', j + 1), ('x', j >> 1)})
            lstamp()
            a("s_barrier")
            lstamp()
            if j >= 2:
                if j + 2 < 18: issue_w(j + 2); issue_w(j + 3)
                if (j >> 1) + 2 < 9: issue_x((j >> 1) + 2)
    if cfg.stamps:
        a(f"s_cmp_lg_u32 s{S_WAVE}, 4\ns_cbranch_scc1 L_end")
        a("s_load_dwordx2 s[4:5], s[0:1], 64\ns_waitcnt lgkmcnt(0)")
        a(f"s_lshl_b32 s{S_TMP}, s2, 9\ns_add_u32 s{S_TMP}, s{S_TMP}, 0x100000\nv_lshl_add_u32 v21, v0, 2, s{S_TMP}")
        a("global_store_dword v21, v20, s[4:5]")
    a("s_endpgm")

def gen(cfg):
    a = A()
    hdr = open('standalone__batchnorm__sampling.s.ref').read().split('; Override')[0]
    a.L.append(hdr.rstrip())
    a.L.append("; @launch grid=(256,1,1) block=(512,1,1) lds=163840")
    a(f'.amdgcn_target "amdgcn-amd-amdhsa--gfx950"\n.text\n.globl {KNAME}\n.p2align 8\n.type {KNAME},@function\n{KNAME}:')
    if cfg.stamps:
        a(f"s_memrealtime s[{S_ST}:{S_ST + 1}]")
    stamp(a, cfg, 0)
    a("s_cmp_ge_u32 s2, 256\ns_cbranch_scc1 L_end")
    a("s_load_dwordx16 s[4:19], s[0:1], 0")
    a("v_lshrrev_b32 v1, 6, v0\nv_and_b32 v0, 63, v0")
    a(f"s_and_b32 s{S_TMP}, s2, 7\ns_lshr_b32 s{S_TMP + 1}, s2, 3")
    a(f"v_readfirstlane_b32 s{S_WAVE}, v1")
    a(f"s_lshr_b32 s{S_M}, s{S_TMP}, 1\ns_and_b32 s{S_TMP}, s{S_TMP}, 1\ns_lshl_b32 s{S_TMP}, s{S_TMP}, 5\ns_add_u32 s{S_T}, s{S_TMP}, s{S_TMP + 1}")
    a(f"s_mov_b32 s{S_C}, {NLOG2E:#x}\ns_mov_b32 s{S_C + 1}, {NLOG2E:#x}")
    a(f"s_cmp_eq_u32 s{S_T}, 63\ns_cbranch_scc1 L_special")
    def srds():
        a("s_waitcnt lgkmcnt(0)")
        for srd, p, nb in ((S_X, 4, XBYTES), (S_W, 6, WBYTES), (S_O, 16, XBYTES)):
            a(f"s_mov_b32 s{srd}, s{p}\ns_and_b32 s{srd + 1}, s{p + 1}, 0xffff\ns_mov_b32 s{srd + 2}, {nb}\ns_mov_b32 s{srd + 3}, 0x20000")
    sXm, sXq, sW, mXm, mXq, mW, sE, mE = 62, 63, 64, 65, 66, 67, 68, 69
    T = S_TMP
    for special in (False, True):
        prog = Prog(special)
        n = prog.name
        if not special:
            a(f"s_mul_i32 s{S_R}, s{S_T}, 57\ns_lshr_b32 s{S_R}, s{S_R}, 9")
            a(f"s_mul_i32 s{T}, s{S_R}, 9\ns_sub_u32 s{S_LINE}, s{S_T}, s{T}")
            a(f"s_mul_i32 s{T}, s{S_M}, 7\ns_add_u32 s{S_R}, s{S_R}, s{T}\ns_mul_i32 s{S_B0}, s{S_R}, {36 * BATB}")
        else:
            a("L_special:")
            a(f"s_lshl_b32 s{S_LINE}, s{S_M}, 1\ns_mov_b32 s{S_B0}, {1008 * BATB}")
        a(f"s_cmp_ge_u32 s{S_WAVE}, 4\ns_cbranch_scc0 L_{n}_comp")
        a(f"s_sub_u32 s{T}, s{S_WAVE}, 4")
        a(f"s_and_b32 s{T + 1}, s{T}, 1\ns_lshr_b32 s{T + 2}, s{T}, 1")
        a("v_lshrrev_b32 v10, 3, v0\nv_and_b32 v11, 7, v0\nv_lshrrev_b32 v12, 1, v10")
        a(f"s_lshl_b32 s{T + 3}, s{T + 1}, 2")
        a(f"v_and_b32 v13, 1, v12\nv_lshlrev_b32 v13, 1, v13\nv_xor_b32 v13, v13, v11\nv_xor_b32 v13, s{T + 3}, v13")
        a(f"v_mul_u32_u24 v14, {ROWB}, v10\nv_lshl_add_u32 v4, v13, 4, v14")
        a(f"s_mul_i32 s{sW}, s{T}, {8 * ROWB}\ns_lshl_b32 s{T + 4}, s{S_LINE}, 7\ns_add_u32 s{sW}, s{sW}, s{T + 4}")
        a(f"s_lshl_b32 s{mW}, s{T}, 10\ns_add_u32 s{mW}, s{mW}, {prog.WB0}")
        a(f"v_xor_b32 v13, v12, v11\nv_xor_b32 v13, s{T + 3}, v13\nv_mul_u32_u24 v15, {BATB}, v10\nv_lshl_add_u32 v2, v13, 4, v15")
        a(f"s_mul_i32 s{sXm}, s{T + 1}, {8 * BATB}\ns_add_u32 s{sXm}, s{sXm}, s{S_B0}")
        a(f"s_lshl_b32 s{mXm}, s{T + 1}, 10")
        if not special:
            a(f"s_mul_i32 s{T + 4}, s{T + 2}, {16 * BATB}\ns_add_u32 s{sXm}, s{sXm}, s{T + 4}")
            a(f"s_lshl_b32 s{T + 4}, s{T + 2}, 14\ns_add_u32 s{mXm}, s{mXm}, s{T + 4}")
            a(f"s_mul_i32 s{T + 4}, s{T}, 9\ns_add_u32 s{T + 4}, s{T + 4}, 1")
            a(f"v_add_u32 v13, s{T + 4}, v10\nv_bfe_u32 v13, v13, 1, 3\nv_xor_b32 v13, v13, v11\nv_lshl_add_u32 v3, v13, 4, v14")
            a(f"s_lshl_b32 s{mXq}, s{T + 4}, 7\ns_add_u32 s{mXq}, s{mXq}, 32768")
            a(f"s_add_u32 s{T + 4}, s{T}, 32\ns_mul_i32 s{T + 4}, s{T + 4}, {BATB}\ns_add_u32 s{sXq}, s{T + 4}, s{S_B0}")
        else:
            a(f"s_mul_i32 s{T + 4}, s{T + 2}, {4 * ROWB}\ns_add_u32 s{sXm}, s{sXm}, s{T + 4}")
            a(f"s_lshl_b32 s{T + 4}, s{T + 2}, 13\ns_add_u32 s{mXm}, s{mXm}, s{T + 4}")
            a("v_lshrrev_b32 v13, 1, v0\nv_bfe_u32 v14, v0, 4, 1\nv_lshlrev_b32 v14, 2, v14\nv_xor_b32 v13, v13, v14")
            a(f"v_mul_u32_u24 v13, {ROWB}, v13\nv_and_b32 v14, 1, v0\nv_lshl_add_u32 v5, v14, 4, v13")
            a(f"s_mul_i32 s{sE}, s{T}, {TAPB}\ns_lshl_b32 s{T + 4}, s{S_M}, 5\ns_add_u32 s{sE}, s{sE}, s{T + 4}\ns_add_u32 s{sE}, s{sE}, 1024")
            a(f"s_lshl_b32 s{mE}, s{T}, 10\ns_add_u32 s{mE}, s{mE}, {prog.WB0 + 24576}")
            a(f"s_cmp_eq_u32 s{T}, 3")
            a(f"s_cselect_b32 s{mE}, {prog.WB0 + 4 * prog.WS}, s{mE}")
            a(f"s_cselect_b32 s72, 0, {prog.WS}")
            a(f"s_cselect_b32 s{T + 4}, 0x40000000, 0")
            a(f"v_add_u32 v5, s{T + 4}, v5")
        srds()
        loader_prog(a, cfg, prog)
        a(f"L_{n}_comp:")
        a(f"s_lshr_b32 s{T}, s{S_WAVE}, 1\ns_and_b32 s{T + 1}, s{S_WAVE}, 1")
        a("v_and_b32 v10, 15, v0\nv_lshrrev_b32 v11, 4, v0")
        if special:
            a(f"s_add_u32 s{S_LINE}, s{S_LINE}, s{T}")
        a(f"s_lshl_b32 s{T + 2}, s{S_LINE}, 7\ns_lshl_b32 s{T + 3}, s{T + 1}, 6\ns_add_u32 s{T + 2}, s{T + 2}, s{T + 3}")
        a(f"v_lshl_add_u32 v12, v11, 3, s{T + 2}\nv_add_u32 v13, 32, v12")
        if special:
            a(f"s_lshl_b32 s{T + 3}, s{S_M}, 5\ns_add_u32 s{T + 3}, s{T + 3}, 1024\nv_lshl_add_u32 v14, v11, 3, s{T + 3}")
        srds()
        bn_params(a, cfg, 12, None, None, 16, True)
        bn_params(a, cfg, 13, None, None, 32, True)
        if special: bn_params(a, cfg, 14, None, None, 48, True)
        a("v_and_b32 v14, 1, v11\nv_lshrrev_b32 v15, 1, v11")
        a(f"v_mul_u32_u24 v{V_OM}, {BATB}, v10\nv_lshl_add_u32 v{V_OM}, v15, 4, v{V_OM}")
        if not special:
            a(f"v_lshl_add_u32 v{V_OM}, v14, 5, v{V_OM}")
            a(f"v_lshrrev_b32 v12, 3, v10\nv_and_b32 v13, 7, v10")
            a(f"v_mul_u32_u24 v{V_OE}, {BATB}, v12\nv_mul_u32_u24 v64, {ROWB}, v13\nv_add_u32 v{V_OE}, v{V_OE}, v64")
            a(f"v_lshl_add_u32 v{V_OE}, v15, 4, v{V_OE}\nv_lshl_add_u32 v{V_OE}, v14, 5, v{V_OE}")
            a(f"s_mul_i32 s{T + 3}, s{T}, {16 * BATB}\ns_add_u32 s{S_OM}, s{S_B0}, s{T + 3}\ns_add_u32 s{S_OM}, s{S_OM}, s{T + 2}")
            a(f"s_mul_i32 s{T + 3}, s{T}, {2 * BATB}\ns_add_u32 s{S_OE}, s{S_B0}, s{T + 3}\ns_add_u32 s{S_OE}, s{S_OE}, {32 * BATB}\ns_add_u32 s{S_OE}, s{S_OE}, s{T + 2}")
            a(f"s_mul_i32 s{T + 3}, s{T}, 18\nv_mad_u32_u24 v64, v12, 9, v13\nv_add_u32 v64, s{T + 3}, v64")
            for t in range(3):
                a(f"v_add_u32 v65, {t}, v64\nv_bfe_u32 v66, v65, 1, 3\nv_xor_b32 v66, v66, v11\nv_lshlrev_b32 v66, 4, v66")
                a(f"v_lshl_add_u32 v66, v65, 7, v66\nv_add_u32 v{V_Q[t]}, 32768, v66")
        else:
            a(f"v_mul_u32_u24 v64, {ROWB}, v14\nv_add_u32 v{V_OE}, v{V_OM}, v64")
            a(f"v_lshl_add_u32 v{V_OM}, v14, 5, v{V_OM}")
            a(f"s_add_u32 s{S_OM}, s{S_B0}, s{T + 2}")
            a(f"s_mul_i32 s{T + 3}, s{S_WAVE}, {2 * ROWB}\ns_add_u32 s{S_OE}, s{S_B0}, s{T + 3}")
            a(f"s_lshl_b32 s{T + 3}, s{S_M}, 5\ns_add_u32 s{S_OE}, s{S_OE}, s{T + 3}\ns_add_u32 s{S_OE}, s{S_OE}, 1024")
        a(f"s_add_u32 s{S_OM2}, s{S_OM}, {4 * ROWB}")
        a(f"v_lshrrev_b32 v64, 1, v10\nv_xor_b32 v64, v64, v11\nv_lshlrev_b32 v64, 4, v64\nv_lshl_add_u32 v{V_XA}, v10, 7, v64")
        if not special:
            a(f"s_lshl_b32 s{T + 3}, s{T}, 14\nv_add_u32 v{V_XA}, s{T + 3}, v{V_XA}")
        a("v_lshrrev_b32 v64, 2, v10\nv_and_b32 v65, 3, v10\nv_lshl_add_u32 v66, v11, 3, v64")
        a("v_bfe_u32 v67, v64, 1, 1\nv_lshlrev_b32 v67, 1, v67\nv_lshl_add_u32 v67, v14, 2, v67")
        a(f"s_lshl_b32 s{T + 3}, s{T + 1}, 2\nv_lshrrev_b32 v68, 1, v65\nv_add_u32 v68, s{T + 3}, v68")
        a("v_and_b32 v69, 1, v65\nv_lshlrev_b32 v69, 3, v69\nv_lshl_add_u32 v69, v66, 7, v69")
        if special:
            a(f"s_mul_i32 s{T + 3}, s{T}, 12288\ns_add_u32 s{T + 3}, s{T + 3}, {prog.WB0}")
        else:
            a(f"s_mov_b32 s{T + 3}, {prog.WB0}")
        a(f"v_add_u32 v69, s{T + 3}, v69")
        for c in range(2):
            a(f"v_add_u32 v70, {2 * c}, v68\nv_xor_b32 v70, v70, v67\nv_lshl_add_u32 v{V_WA[c]}, v70, 4, v69")
        if special:
            a(f"v_lshl_add_u32 v70, v14, 2, v66\nv_lshlrev_b32 v70, 5, v70\nv_lshl_add_u32 v70, v65, 3, v70")
            a(f"v_add_u32 v{V_Q[0]}, {prog.WB0 + 24576}, v70\nv_xor_b32 v70, 128, v70\nv_add_u32 v{V_Q[1]}, {prog.WB0 + 24576}, v70")
        else:
            a(f"v_lshrrev_b32 v64, 3, v0\ns_lshl_b32 s{T + 3}, s{S_WAVE}, 3\nv_add_u32 v64, s{T + 3}, v64")
            a("v_mul_u32_u24 v65, 52, v64\nv_lshrrev_b32 v65, 8, v65")
            a("v_mul_u32_u24 v66, 5, v65\nv_sub_u32 v66, v64, v66")
            a(f"v_mul_u32_u24 v65, {prog.XB}, v65\nv_mul_u32_u24 v66, {9 * 128}, v66\nv_add_u32 v65, v65, v66")
            a("v_and_b32 v66, 7, v0\nv_lshl_add_u32 v65, v66, 4, v65\nv_add_u32 v65, 32768, v65")
            a("v_mov_b32 v72, 0\nv_mov_b32 v73, 0\nv_mov_b32 v74, 0\nv_mov_b32 v75, 0")
            a("v_cmp_gt_u32 vcc, 15, v64\ns_and_saveexec_b64 s[58:59], vcc")
            a("ds_write_b128 v65, v[72:75]")
            a("s_mov_b64 exec, s[58:59]")
        for r in range(ACC, ACC + 72): a(f"v_mov_b32 v{r}, 0")
        a("s_waitcnt vmcnt(0)")
        bn_params(a, cfg, None, P_S(0), P_B(0), 16, False)
        bn_params(a, cfg, None, P_S(1), P_B(1), 32, False)
        if special: bn_params(a, cfg, None, PE_S, PE_B, 48, False)
        a("s_waitcnt lgkmcnt(0)")
        if not special:
            compute_prog(a, cfg, prog, None)
        else:
            for wv in range(1, 4):
                a(f"s_cmp_eq_u32 s{S_WAVE}, {wv}\ns_cbranch_scc1 L_sp{wv}_go")
            for wv in range(4): compute_prog(a, cfg, prog, wv)
        epilogue(a, cfg, prog)
    a("L_end:\ns_endpgm")
    a(f""".section .rodata,"a"
.p2align 6
.amdhsa_kernel {KNAME}
  .amdhsa_next_free_vgpr 256
  .amdhsa_next_free_sgpr 96
  .amdhsa_accum_offset 256
  .amdhsa_group_segment_fixed_size 0
  .amdhsa_kernarg_size 72
  .amdhsa_user_sgpr_count 2
  .amdhsa_user_sgpr_kernarg_segment_ptr 1
  .amdhsa_system_sgpr_workgroup_id_x 1
  .amdhsa_float_denorm_mode_32 3
.end_amdhsa_kernel""")
    return a.text() + '\n'

if __name__ == '__main__':
    ap = argparse.ArgumentParser()
    ap.add_argument('-o', default='k.s')
    ap.add_argument('opts', nargs='*')
    args = ap.parse_args()
    kw = {}
    for o in args.opts:
        k, v = o.split('=')
        try: v = eval(v)
        except Exception: pass
        kw[k] = v
    open(args.o, 'w').write(gen(Cfg(**kw)))
```

```python
import sys, argparse

KNAME = "standalone__batchnorm__sampling_kernel"
ROWB = 1152
BATB = 9216
TAPB = 663552
XBYTES = 9437184
WBYTES = 1990656
NLOG2E = 0xbfb8aa3b

class Cfg:
    def __init__(self, **kw):
        self.stamps = False
        self.dbgwg = -1
        self.xflags = ''
        self.wflags = ''
        self.itrace = False
        self.pre = 'W0 X0 W1 X1 W2 W3 X2 |'
        self.echo = None
        self.stflags = 'sc1'
        self.p1 = False
        self.mimic = False
        self.rd_span = 40
        self.__dict__.update(kw)

class A:
    def __init__(self): self.L = []
    def __call__(self, s):
        for l in s.split('\n'):
            l = l.strip()
            if l: self.L.append(l)
    def text(self):
        return '\n'.join((l if l.endswith(':') or l.startswith('.') or l.startswith(';') else '    ' + l) for l in self.L)

V_XA = 2
V_Q = [3, 4, 5]
V_WA = [6, 7]
V_OM, V_OE = 8, 9
V_T = 10
SETB = [16, 84]
def XF(s, p): return SETB[s] + 4 * p
def EF(s, t): return SETB[s] + 32 + 4 * t
def WF(s, c, t): return SETB[s] + 44 + 4 * (3 * c + t)
ACC = 152
def TILE(p, c): return ACC + 4 * (2 * p + c)
PS = 224
def P_S(c): return PS + 4 * c
def P_B(c): return PS + 8 + 4 * c
PE_S, PE_B = 240, 244
def r4(b): return f"v[{b}:{b+3}]"
def r2(b): return f"v[{b}:{b+1}]"

S_X, S_W, S_O = 20, 24, 28
S_WAVE = 33
S_M, S_T, S_R, S_LINE, S_B0 = 36, 37, 38, 39, 40
S_TMP = 41
S_OM, S_OM2, S_OE = 48, 49, 50
S_DX, S_DW = 51, 52
S_CNT = 53
S_XOFF = 54
S_C = 56
S_ST = 76
S_XBP = 55

class Prog:
    def __init__(self, special):
        self.special = special
        if not special:
            self.XB = 37632; self.WB0 = 3 * 37632; self.WS = 12288
        else:
            self.XB = 16384; self.WB0 = 3 * 16384; self.WS = 27648
        self.name = 'sp' if special else 'pu'

def interleave(main, fill, span):
    out = []; m = len(fill); j = 0
    for i, x in enumerate(main):
        out.append(x)
        if i < span:
            tgt = ((i + 1) * m + span - 1) // span
            while j < min(tgt, m):
                out.append(fill[j]); j += 1
    out += fill[j:]
    return out

def mfma_list(prog, s, wv):
    out = []
    flip = False
    def chain(tile, items):
        for (a_, b_) in items:
            out.append(f"v_mfma_f32_16x16x32_bf16 {r4(tile)}, {r4(a_)}, {r4(b_)}, {r4(tile)}")
    for p in range(8):
        for c in range(2):
            taps = [t for t in range(3) if 0 <= p + t - 1 < 8]
            if c == 1: taps = taps[::-1]
            chain(TILE(p, c), [(WF(s, c, t), XF(s, p + t - 1)) for t in taps])
    if not prog.special:
        for c in range(2):
            taps = [0, 1, 2] if c == 0 else [2, 1, 0]
            chain(TILE(8, c), [(WF(s, c, t), EF(s, t)) for t in taps])
    else:
        for i in range(2):
            p = 2 * wv + i
            taps = [t for t in range(3) if 0 <= p + t - 1 < 8]
            if i == 1: taps = taps[::-1]
            chain(TILE(8, i), [(EF(s, t), XF(s, p + t - 1)) for t in taps])
    return out

def read_list(prog, s, ring):
    rd = []
    wo = ring * prog.WS
    def wr(c, t):
        d = WF(s, c, t)
        rd.append(f"ds_read_b64_tr_b16 {r2(d)}, v{V_WA[c]} offset:{wo + t * 4096}")
        rd.append(f"ds_read_b64_tr_b16 {r2(d + 2)}, v{V_WA[c]} offset:{wo + t * 4096 + 512}")
    def xr(p): rd.append(f"ds_read_b128 {r4(XF(s, p))}, v{V_XA} offset:{p * 2048}")
    wr(0, 1); xr(0); wr(0, 2); xr(1); wr(1, 2); wr(1, 1); wr(0, 0); xr(2); wr(1, 0)
    for p in range(3, 8): xr(p)
    for t in range(3):
        d = EF(s, t)
        if not prog.special:
            rd.append(f"ds_read_b128 {r4(d)}, v{V_Q[t]}")
        else:
            rd.append(f"ds_read_b64_tr_b16 {r2(d)}, v{V_Q[0]} offset:{wo + t * 1024}")
            rd.append(f"ds_read_b64_tr_b16 {r2(d + 2)}, v{V_Q[1]} offset:{wo + t * 1024}")
    return rd

def addr_updates(prog, stage_change):
    up = []
    d = f"s{S_DX}" if stage_change else "0"
    up.append(f"v_xad_u32 v{V_XA}, v{V_XA}, 64, {d}")
    if not prog.special:
        for t in range(3): up.append(f"v_xad_u32 v{V_Q[t]}, v{V_Q[t]}, 64, {d}")
    if stage_change:
        for c in range(2): up.append(f"v_add_u32 v{V_WA[c]}, s{S_DW}, v{V_WA[c]}")
        if prog.special:
            for h in range(2): up.append(f"v_add_u32 v{V_Q[h]}, s{S_DW}, v{V_Q[h]}")
    return up

def stamp(a, cfg, i):
    if cfg.echo is not None:
        if i == 0: a("s_memrealtime s[76:77]")
        if i == cfg.echo[0]: a("s_memrealtime s[78:79]")
    if cfg.stamps:
        a(f"s_memtime s[{S_ST + 4 + 2 * i}:{S_ST + 5 + 2 * i}]")

def epilogue_pair(p, prog, tmp):
    out = []
    R = tmp + 12
    for c in range(2):
        T = TILE(p, c)
        if p == 8 and prog.special: ps, pb = PE_S, PE_B
        else: ps, pb = P_S(c), P_B(c)
        e = tmp + 4 * c
        out.append(f"v_pk_fma_f32 {r2(T)}, {r2(T)}, {r2(ps)}, {r2(pb)}")
        out.append(f"v_pk_fma_f32 {r2(T + 2)}, {r2(T + 2)}, {r2(ps + 2)}, {r2(pb + 2)}")
        for i in range(4): out.append(f"v_exp_f32 v{e + i}, v{T + i}")
    for c in range(2):
        T = TILE(p, c); e = tmp + 4 * c
        out.append(f"v_pk_fma_f32 {r2(e)}, {r2(e)}, s[{S_C}:{S_C + 1}], s[{S_C}:{S_C + 1}]")
        out.append(f"v_pk_fma_f32 {r2(e + 2)}, {r2(e + 2)}, s[{S_C}:{S_C + 1}], s[{S_C}:{S_C + 1}]")
        for i in range(4): out.append(f"v_rcp_f32 v{e + i}, v{e + i}")
    for c in range(2):
        T = TILE(p, c); e = tmp + 4 * c
        out.append(f"v_pk_mul_f32 {r2(T)}, {r2(T)}, {r2(e)}")
        out.append(f"v_pk_mul_f32 {r2(T + 2)}, {r2(T + 2)}, {r2(e + 2)}")
    for c in range(2):
        T = TILE(p, c)
        out.append(f"v_cvt_pk_bf16_f32 v{R + 2 * c}, v{T}, v{T + 1}")
        out.append(f"v_cvt_pk_bf16_f32 v{R + 2 * c + 1}, v{T + 2}, v{T + 3}")
    return out, R

def store_pair(p, R, cfg):
    out = [f"v_permlane16_swap_b32 v{R}, v{R + 2}", f"v_permlane16_swap_b32 v{R + 1}, v{R + 3}"]
    if p < 4: out.append(f"buffer_store_dwordx4 {r4(R)}, v{V_OM}, s[{S_O}:{S_O + 3}], s{S_OM} offen offset:{p * ROWB} {cfg.stflags}")
    elif p < 8: out.append(f"buffer_store_dwordx4 {r4(R)}, v{V_OM}, s[{S_O}:{S_O + 3}], s{S_OM2} offen offset:{(p - 4) * ROWB} {cfg.stflags}")
    else: out.append(f"buffer_store_dwordx4 {r4(R)}, v{V_OE}, s[{S_O}:{S_O + 3}], s{S_OE} offen {cfg.stflags}")
    return out

def bn_params(a, cfg, voff, dst_s, dst_b, tmp, first):
    if first:
        for i, sp in enumerate((8, 10, 12, 14)):
            a(f"global_load_dwordx2 {r2(tmp + 2 * i)}, v{voff}, s[{sp}:{sp + 1}]")
        return
    mean, var, g, b = tmp, tmp + 2, tmp + 4, tmp + 6
    w = tmp + 8
    def unpack(dst, src, i):
        if i & 1: a(f"v_and_b32 v{dst}, 0xffff0000, v{src + (i >> 1)}")
        else: a(f"v_lshlrev_b32 v{dst}, 16, v{src + (i >> 1)}")
    def rnd(x):
        a(f"v_cvt_pk_bf16_f32 v{x}, v{x}, v{x}\nv_lshlrev_b32 v{x}, 16, v{x}")
    for i in range(4):
        unpack(w, var, i)
        a(f"v_add_f32 v{w}, 0x3727c5ac, v{w}")
        if cfg.mimic:
            rnd(w)
            a(f"v_sqrt_f32 v{w}, v{w}\ns_nop 0"); rnd(w)
            a(f"v_rcp_f32 v{w}, v{w}\ns_nop 0"); rnd(w)
        else:
            a(f"v_rsq_f32 v{w}, v{w}")
        unpack(w + 1, g, i)
        a(f"v_mul_f32 v{w}, v{w}, v{w + 1}")
        if cfg.mimic: rnd(w)
        unpack(w + 1, mean, i)
        unpack(w + 2, b, i)
        a(f"v_fma_f32 v{w + 2}, -v{w + 1}, v{w}, v{w + 2}")
        a(f"v_mul_f32 v{dst_s + i}, s{S_C}, v{w}")
        a(f"v_mul_f32 v{dst_b + i}, s{S_C}, v{w + 2}")

def compute_prog(a, cfg, prog, wv):
    n = prog.name + ('' if wv is None else str(wv))
    bar_every = prog.special or not cfg.p1
    a(f"L_{n}_go:")
    stamp(a, cfg, 1)
    a("s_barrier")
    stamp(a, cfg, 2)
    for r in read_list(prog, 0, 0): a(r)
    a(f"s_mov_b32 s{S_CNT}, 8")
    a(f"s_mov_b32 s{S_XOFF}, 0")
    a(f"s_mov_b32 s{S_DW}, {2 * prog.WS}")
    a(f"s_mov_b32 s{S_XBP}, {prog.XB}")
    a(f"L_{n}_loop:")
    def step(s, last=False, bar=True):
        a("s_waitcnt lgkmcnt(0)")
        if bar: a("s_barrier")
        m = mfma_list(prog, s, wv)
        if last:
            for x in m: a(x)
            return
        fill = addr_updates(prog, s == 1) + read_list(prog, 1 - s, 1 - s)
        for x in interleave(m, fill, cfg.rd_span): a(x)
    a(f"s_cmp_eq_u32 s{S_XOFF}, 2")
    a(f"s_cselect_b32 s{S_DX}, {(-2 * prog.XB) & 0xffffffff}, s{S_XBP}")
    a(f"s_cselect_b32 s{S_XOFF}, -1, s{S_XOFF}")
    a(f"s_add_u32 s{S_XOFF}, s{S_XOFF}, 1")
    step(0, bar=bar_every)
    step(1)
    a(f"s_sub_u32 s{S_DW}, 0, s{S_DW}")
    a(f"s_sub_u32 s{S_CNT}, s{S_CNT}, 1")
    a(f"s_cmp_lg_u32 s{S_CNT}, 0")
    a(f"s_cbranch_scc1 L_{n}_loop")
    step(0, bar=bar_every)
    step(1, last=True, bar=False)
    a(f"s_branch L_{prog.name}_epi")

def epilogue(a, cfg, prog):
    a(f"L_{prog.name}_epi:")
    stamp(a, cfg, 3)
    a("s_waitcnt vmcnt(0)")
    tmps = [16, 32]
    pend = None
    for p in range(9):
        ops, R = epilogue_pair(p, prog, tmps[p & 1])
        if pend:
            for x in ops[:2]: a(x)
            for x in pend: a(x)
            for x in ops[2:]: a(x)
        else:
            for x in ops: a(x)
        pend = store_pair(p, R, cfg)
    a("s_nop 1")
    for x in pend: a(x)
    stamp(a, cfg, 4)
    if cfg.echo is not None:
        a("s_waitcnt vmcnt(0)")
        stamp(a, cfg, 5)
        a("s_memrealtime s[80:81]\ns_waitcnt lgkmcnt(0)")
        a(f"s_sub_u32 s78, s78, s76\ns_mul_i32 s78, s78, {cfg.echo[1]}")
        a(f"L_echo_{prog.name}:\ns_memrealtime s[82:83]\ns_waitcnt lgkmcnt(0)\ns_sub_u32 s82, s82, s80\ns_cmp_lt_u32 s82, s78\ns_cbranch_scc1 L_echo_{prog.name}")
    if cfg.stamps:
        a("s_waitcnt vmcnt(0)")
        stamp(a, cfg, 5)
        a(f"s_cmp_lg_u32 s{S_WAVE}, 0\ns_cbranch_scc1 L_end")
        a(f"s_memrealtime s[{S_ST + 2}:{S_ST + 3}]")
        a("s_load_dwordx2 s[4:5], s[0:1], 64\ns_waitcnt lgkmcnt(0)")
        a(f"v_mov_b32 v16, s{S_ST}\nv_mov_b32 v17, s{S_ST + 1}\nv_mov_b32 v18, s{S_ST + 2}\nv_mov_b32 v19, s{S_ST + 3}")
        for i in range(1, 6):
            a(f"s_sub_u32 s{S_TMP}, s{S_ST + 4 + 2 * i}, s{S_ST + 4}\nv_mov_b32 v{18 + 2 * i}, s{S_TMP}\nv_mov_b32 v{19 + 2 * i}, 0")
        a(f"s_mul_i32 s{S_TMP}, s2, 56\nv_mov_b32 v32, s{S_TMP}")
        a("v_cmp_eq_u32 vcc, 0, v0\ns_and_saveexec_b64 s[6:7], vcc")
        a("global_store_dwordx4 v32, v[16:19], s[4:5]\nglobal_store_dwordx4 v32, v[20:23], s[4:5] offset:16")
        a("global_store_dwordx4 v32, v[24:27], s[4:5] offset:32\nglobal_store_dwordx2 v32, v[28:29], s[4:5] offset:48")
        if cfg.dbgwg >= 0:
            a(f"s_cmp_lg_u32 s2, {cfg.dbgwg}\ns_cbranch_scc1 L_end")
            a("v_sub_u32 v16, v18, v16\nv_mov_b32 v17, v20\nv_mov_b32 v18, v22\nv_mov_b32 v19, v24\nv_mov_b32 v20, v26\nv_mov_b32 v21, v28\nv_mov_b32 v32, 0")
            a("global_store_dwordx4 v32, v[16:19], s[18:19]\nglobal_store_dwordx2 v32, v[20:21], s[18:19] offset:16")
    a("s_endpgm")

def loader_prog(a, cfg, prog):
    n = prog.name
    sXm, sXq, sW, mXm, mXq, mW, sE, mE = 62, 63, 64, 65, 66, 67, 68, 69
    tmp = 70
    vXm, vXq, vW, vE = 2, 3, 4, 5
    lg = [0]
    def lstamp():
        if cfg.stamps and lg[0] < 64:
            a(f"s_memtime s[92:93]\ns_waitcnt lgkmcnt(0)\ns_sub_u32 s92, s92, s{S_ST + 4}\nv_writelane_b32 v20, s92, {lg[0]}")
            lg[0] += 1
    seq = []
    def dma(v, srd, sbase, soff, mbase, moff, tag):
        a(f"s_add_u32 m0, s{mbase}, {moff}")
        a(f"s_add_u32 s{tmp}, s{sbase}, {soff}")
        a(f"buffer_load_dwordx4 v{v}, s[{srd}:{srd + 3}], s{tmp} offen {cfg.xflags if tag[0] == 'x' else cfg.wflags} lds")
        seq.append(tag)
        if cfg.itrace: lstamp()
    def issue_x(t):
        buf = (t % 3) * prog.XB
        if not prog.special:
            for s in range(8): dma(vXm, S_X, sXm, s * ROWB + t * 128, mXm, buf + s * 2048, ('x', t))
            dma(vXq, S_X, sXq, t * 128, mXq, buf, ('x', t))
        else:
            for s in range(4): dma(vXm, S_X, sXm, s * ROWB + t * 128, mXm, buf + s * 2048, ('x', t))
    def issue_w(j):
        buf = (j & 3) * prog.WS
        for tap in (1, 2, 0):
            dma(vW, S_W, sW, tap * TAPB + j * 32 * ROWB, mW, buf + tap * 4096, ('w', j))
            if prog.special:
                dma(vW, S_W, sW, tap * TAPB + j * 32 * ROWB + 128, mW, buf + 12288 + tap * 4096, ('w', j))
        if prog.special:
            a(f"s_mul_i32 s{tmp + 1}, s{tmp + 2}, {j & 3}")
            a(f"s_add_u32 m0, s{mE}, s{tmp + 1}")
            a(f"s_add_u32 s{tmp}, s{sE}, {j * 32 * ROWB}")
            a(f"buffer_load_dwordx4 v{vE}, s[{S_W}:{S_W + 3}], s{tmp} offen lds")
            seq.append(('w', j))
    def wait_for(need):
        last = max(i for i, t in enumerate(seq) if t in need)
        a(f"s_waitcnt vmcnt({len(seq) - 1 - last})")
    p1 = cfg.p1 and not prog.special
    lstamp()
    pre, post = cfg.pre.split('|')
    def issue_list(l):
        for it in l.split():
            (issue_w if it[0] == 'W' else issue_x)(int(it[1:]))
    issue_list(pre)
    lstamp()
    if not p1:
        for j in range(18):
            wait_for({('w', j), ('x', j >> 1)})
            lstamp()
            a("s_barrier")
            lstamp()
            if j == 0: issue_list(post)
            if j >= 1:
                if j + 3 < 18: issue_w(j + 3)
                if j % 2 == 0 and (j >> 1) + 2 < 9: issue_x((j >> 1) + 2)
    else:
        for j in range(0, 18, 2):
            wait_for({('w', j), ('w', j + 1), ('x', j >> 1)})
            lstamp()
            a("s_barrier")
            lstamp()
            if j == 0: issue_list(post)
            if j >= 2:
                if j + 2 < 18: issue_w(j + 2); issue_w(j + 3)
                if (j >> 1) + 2 < 9: issue_x((j >> 1) + 2)
    if cfg.stamps:
        a(f"s_cmp_lg_u32 s{S_WAVE}, 4\ns_cbranch_scc1 L_end")
        a("s_load_dwordx2 s[4:5], s[0:1], 64\ns_waitcnt lgkmcnt(0)")
        a(f"s_lshl_b32 s{S_TMP}, s2, 9\ns_add_u32 s{S_TMP}, s{S_TMP}, 0x100000\nv_lshl_add_u32 v21, v0, 2, s{S_TMP}")
        a("global_store_dword v21, v20, s[4:5]")
    a("s_endpgm")

def gen(cfg):
    a = A()
    hdr = open('standalone__batchnorm__sampling.s.ref').read().split('; Override')[0]
    a.L.append(hdr.rstrip())
    a.L.append("; @launch grid=(256,1,1) block=(512,1,1) lds=163840")
    a(f'.amdgcn_target "amdgcn-amd-amdhsa--gfx950"\n.text\n.globl {KNAME}\n.p2align 8\n.type {KNAME},@function\n{KNAME}:')
    if cfg.stamps:
        a(f"s_memrealtime s[{S_ST}:{S_ST + 1}]")
    stamp(a, cfg, 0)
    a("s_cmp_ge_u32 s2, 256\ns_cbranch_scc1 L_end")
    a("s_load_dwordx16 s[4:19], s[0:1], 0")
    a("v_lshrrev_b32 v1, 6, v0\nv_and_b32 v0, 63, v0")
    a(f"s_and_b32 s{S_TMP}, s2, 7\ns_lshr_b32 s{S_TMP + 1}, s2, 3")
    a(f"v_readfirstlane_b32 s{S_WAVE}, v1")
    a(f"s_lshr_b32 s{S_M}, s{S_TMP}, 1\ns_and_b32 s{S_TMP}, s{S_TMP}, 1\ns_lshl_b32 s{S_TMP}, s{S_TMP}, 5\ns_add_u32 s{S_T}, s{S_TMP}, s{S_TMP + 1}")
    a(f"s_mov_b32 s{S_C}, {NLOG2E:#x}\ns_mov_b32 s{S_C + 1}, {NLOG2E:#x}")
    a(f"s_cmp_eq_u32 s{S_T}, 63\ns_cbranch_scc1 L_special")
    def srds():
        a("s_waitcnt lgkmcnt(0)")
        for srd, p, nb in ((S_X, 4, XBYTES), (S_W, 6, WBYTES), (S_O, 16, XBYTES)):
            a(f"s_mov_b32 s{srd}, s{p}\ns_and_b32 s{srd + 1}, s{p + 1}, 0xffff\ns_mov_b32 s{srd + 2}, {nb}\ns_mov_b32 s{srd + 3}, 0x20000")
    sXm, sXq, sW, mXm, mXq, mW, sE, mE = 62, 63, 64, 65, 66, 67, 68, 69
    T = S_TMP
    for special in (False, True):
        prog = Prog(special)
        n = prog.name
        if not special:
            a(f"s_mul_i32 s{S_R}, s{S_T}, 57\ns_lshr_b32 s{S_R}, s{S_R}, 9")
            a(f"s_mul_i32 s{T}, s{S_R}, 9\ns_sub_u32 s{S_LINE}, s{S_T}, s{T}")
            a(f"s_mul_i32 s{T}, s{S_M}, 7\ns_add_u32 s{S_R}, s{S_R}, s{T}\ns_mul_i32 s{S_B0}, s{S_R}, {36 * BATB}")
        else:
            a("L_special:")
            a(f"s_lshl_b32 s{S_LINE}, s{S_M}, 1\ns_mov_b32 s{S_B0}, {1008 * BATB}")
        a(f"s_cmp_ge_u32 s{S_WAVE}, 4\ns_cbranch_scc0 L_{n}_comp")
        a(f"s_sub_u32 s{T}, s{S_WAVE}, 4")
        a(f"s_and_b32 s{T + 1}, s{T}, 1\ns_lshr_b32 s{T + 2}, s{T}, 1")
        a("v_lshrrev_b32 v10, 3, v0\nv_and_b32 v11, 7, v0\nv_lshrrev_b32 v12, 1, v10")
        a(f"s_lshl_b32 s{T + 3}, s{T + 1}, 2")
        a(f"v_and_b32 v13, 1, v12\nv_lshlrev_b32 v13, 1, v13\nv_xor_b32 v13, v13, v11\nv_xor_b32 v13, s{T + 3}, v13")
        a(f"v_mul_u32_u24 v14, {ROWB}, v10\nv_lshl_add_u32 v4, v13, 4, v14")
        a(f"s_mul_i32 s{sW}, s{T}, {8 * ROWB}\ns_lshl_b32 s{T + 4}, s{S_LINE}, 7\ns_add_u32 s{sW}, s{sW}, s{T + 4}")
        a(f"s_lshl_b32 s{mW}, s{T}, 10\ns_add_u32 s{mW}, s{mW}, {prog.WB0}")
        a(f"v_xor_b32 v13, v12, v11\nv_xor_b32 v13, s{T + 3}, v13\nv_mul_u32_u24 v15, {BATB}, v10\nv_lshl_add_u32 v2, v13, 4, v15")
        a(f"s_mul_i32 s{sXm}, s{T + 1}, {8 * BATB}\ns_add_u32 s{sXm}, s{sXm}, s{S_B0}")
        a(f"s_lshl_b32 s{mXm}, s{T + 1}, 10")
        if not special:
            a(f"s_mul_i32 s{T + 4}, s{T + 2}, {16 * BATB}\ns_add_u32 s{sXm}, s{sXm}, s{T + 4}")
            a(f"s_lshl_b32 s{T + 4}, s{T + 2}, 14\ns_add_u32 s{mXm}, s{mXm}, s{T + 4}")
            a(f"s_mul_i32 s{T + 4}, s{T}, 9\ns_add_u32 s{T + 4}, s{T + 4}, 1")
            a(f"v_add_u32 v13, s{T + 4}, v10\nv_bfe_u32 v13, v13, 1, 3\nv_xor_b32 v13, v13, v11\nv_lshl_add_u32 v3, v13, 4, v14")
            a(f"s_lshl_b32 s{mXq}, s{T + 4}, 7\ns_add_u32 s{mXq}, s{mXq}, 32768")
            a(f"s_add_u32 s{T + 4}, s{T}, 32\ns_mul_i32 s{T + 4}, s{T + 4}, {BATB}\ns_add_u32 s{sXq}, s{T + 4}, s{S_B0}")
        else:
            a(f"s_mul_i32 s{T + 4}, s{T + 2}, {4 * ROWB}\ns_add_u32 s{sXm}, s{sXm}, s{T + 4}")
            a(f"s_lshl_b32 s{T + 4}, s{T + 2}, 13\ns_add_u32 s{mXm}, s{mXm}, s{T + 4}")
            a("v_lshrrev_b32 v13, 1, v0\nv_bfe_u32 v14, v0, 4, 1\nv_lshlrev_b32 v14, 2, v14\nv_xor_b32 v13, v13, v14")
            a(f"v_mul_u32_u24 v13, {ROWB}, v13\nv_and_b32 v14, 1, v0\nv_lshl_add_u32 v5, v14, 4, v13")
            a(f"s_mul_i32 s{sE}, s{T}, {TAPB}\ns_lshl_b32 s{T + 4}, s{S_M}, 5\ns_add_u32 s{sE}, s{sE}, s{T + 4}\ns_add_u32 s{sE}, s{sE}, 1024")
            a(f"s_lshl_b32 s{mE}, s{T}, 10\ns_add_u32 s{mE}, s{mE}, {prog.WB0 + 24576}")
            a(f"s_cmp_eq_u32 s{T}, 3")
            a(f"s_cselect_b32 s{mE}, {prog.WB0 + 4 * prog.WS}, s{mE}")
            a(f"s_cselect_b32 s72, 0, {prog.WS}")
            a(f"s_cselect_b32 s{T + 4}, 0x40000000, 0")
            a(f"v_add_u32 v5, s{T + 4}, v5")
        srds()
        loader_prog(a, cfg, prog)
        a(f"L_{n}_comp:")
        a(f"s_lshr_b32 s{T}, s{S_WAVE}, 1\ns_and_b32 s{T + 1}, s{S_WAVE}, 1")
        a("v_and_b32 v10, 15, v0\nv_lshrrev_b32 v11, 4, v0")
        if special:
            a(f"s_add_u32 s{S_LINE}, s{S_LINE}, s{T}")
        a(f"s_lshl_b32 s{T + 2}, s{S_LINE}, 7\ns_lshl_b32 s{T + 3}, s{T + 1}, 6\ns_add_u32 s{T + 2}, s{T + 2}, s{T + 3}")
        a(f"v_lshl_add_u32 v12, v11, 3, s{T + 2}\nv_add_u32 v13, 32, v12")
        if special:
            a(f"s_lshl_b32 s{T + 3}, s{S_M}, 5\ns_add_u32 s{T + 3}, s{T + 3}, 1024\nv_lshl_add_u32 v14, v11, 3, s{T + 3}")
        srds()
        bn_params(a, cfg, 12, None, None, 16, True)
        bn_params(a, cfg, 13, None, None, 32, True)
        if special: bn_params(a, cfg, 14, None, None, 48, True)
        a("v_and_b32 v14, 1, v11\nv_lshrrev_b32 v15, 1, v11")
        a(f"v_mul_u32_u24 v{V_OM}, {BATB}, v10\nv_lshl_add_u32 v{V_OM}, v15, 4, v{V_OM}")
        if not special:
            a(f"v_lshl_add_u32 v{V_OM}, v14, 5, v{V_OM}")
            a(f"v_lshrrev_b32 v12, 3, v10\nv_and_b32 v13, 7, v10")
            a(f"v_mul_u32_u24 v{V_OE}, {BATB}, v12\nv_mul_u32_u24 v64, {ROWB}, v13\nv_add_u32 v{V_OE}, v{V_OE}, v64")
            a(f"v_lshl_add_u32 v{V_OE}, v15, 4, v{V_OE}\nv_lshl_add_u32 v{V_OE}, v14, 5, v{V_OE}")
            a(f"s_mul_i32 s{T + 3}, s{T}, {16 * BATB}\ns_add_u32 s{S_OM}, s{S_B0}, s{T + 3}\ns_add_u32 s{S_OM}, s{S_OM}, s{T + 2}")
            a(f"s_mul_i32 s{T + 3}, s{T}, {2 * BATB}\ns_add_u32 s{S_OE}, s{S_B0}, s{T + 3}\ns_add_u32 s{S_OE}, s{S_OE}, {32 * BATB}\ns_add_u32 s{S_OE}, s{S_OE}, s{T + 2}")
            a(f"s_mul_i32 s{T + 3}, s{T}, 18\nv_mad_u32_u24 v64, v12, 9, v13\nv_add_u32 v64, s{T + 3}, v64")
            for t in range(3):
                a(f"v_add_u32 v65, {t}, v64\nv_bfe_u32 v66, v65, 1, 3\nv_xor_b32 v66, v66, v11\nv_lshlrev_b32 v66, 4, v66")
                a(f"v_lshl_add_u32 v66, v65, 7, v66\nv_add_u32 v{V_Q[t]}, 32768, v66")
        else:
            a(f"v_mul_u32_u24 v64, {ROWB}, v14\nv_add_u32 v{V_OE}, v{V_OM}, v64")
            a(f"v_lshl_add_u32 v{V_OM}, v14, 5, v{V_OM}")
            a(f"s_add_u32 s{S_OM}, s{S_B0}, s{T + 2}")
            a(f"s_mul_i32 s{T + 3}, s{S_WAVE}, {2 * ROWB}\ns_add_u32 s{S_OE}, s{S_B0}, s{T + 3}")
            a(f"s_lshl_b32 s{T + 3}, s{S_M}, 5\ns_add_u32 s{S_OE}, s{S_OE}, s{T + 3}\ns_add_u32 s{S_OE}, s{S_OE}, 1024")
        a(f"s_add_u32 s{S_OM2}, s{S_OM}, {4 * ROWB}")
        a(f"v_lshrrev_b32 v64, 1, v10\nv_xor_b32 v64, v64, v11\nv_lshlrev_b32 v64, 4, v64\nv_lshl_add_u32 v{V_XA}, v10, 7, v64")
        if not special:
            a(f"s_lshl_b32 s{T + 3}, s{T}, 14\nv_add_u32 v{V_XA}, s{T + 3}, v{V_XA}")
        a("v_lshrrev_b32 v64, 2, v10\nv_and_b32 v65, 3, v10\nv_lshl_add_u32 v66, v11, 3, v64")
        a("v_bfe_u32 v67, v64, 1, 1\nv_lshlrev_b32 v67, 1, v67\nv_lshl_add_u32 v67, v14, 2, v67")
        a(f"s_lshl_b32 s{T + 3}, s{T + 1}, 2\nv_lshrrev_b32 v68, 1, v65\nv_add_u32 v68, s{T + 3}, v68")
        a("v_and_b32 v69, 1, v65\nv_lshlrev_b32 v69, 3, v69\nv_lshl_add_u32 v69, v66, 7, v69")
        if special:
            a(f"s_mul_i32 s{T + 3}, s{T}, 12288\ns_add_u32 s{T + 3}, s{T + 3}, {prog.WB0}")
        else:
            a(f"s_mov_b32 s{T + 3}, {prog.WB0}")
        a(f"v_add_u32 v69, s{T + 3}, v69")
        for c in range(2):
            a(f"v_add_u32 v70, {2 * c}, v68\nv_xor_b32 v70, v70, v67\nv_lshl_add_u32 v{V_WA[c]}, v70, 4, v69")
        if special:
            a(f"v_lshl_add_u32 v70, v14, 2, v66\nv_lshlrev_b32 v70, 5, v70\nv_lshl_add_u32 v70, v65, 3, v70")
            a(f"v_add_u32 v{V_Q[0]}, {prog.WB0 + 24576}, v70\nv_xor_b32 v70, 128, v70\nv_add_u32 v{V_Q[1]}, {prog.WB0 + 24576}, v70")
        else:
            a(f"v_lshrrev_b32 v64, 3, v0\ns_lshl_b32 s{T + 3}, s{S_WAVE}, 3\nv_add_u32 v64, s{T + 3}, v64")
            a("v_mul_u32_u24 v65, 52, v64\nv_lshrrev_b32 v65, 8, v65")
            a("v_mul_u32_u24 v66, 5, v65\nv_sub_u32 v66, v64, v66")
            a(f"v_mul_u32_u24 v65, {prog.XB}, v65\nv_mul_u32_u24 v66, {9 * 128}, v66\nv_add_u32 v65, v65, v66")
            a("v_and_b32 v66, 7, v0\nv_lshl_add_u32 v65, v66, 4, v65\nv_add_u32 v65, 32768, v65")
            a("v_mov_b32 v72, 0\nv_mov_b32 v73, 0\nv_mov_b32 v74, 0\nv_mov_b32 v75, 0")
            a("v_cmp_gt_u32 vcc, 15, v64\ns_and_saveexec_b64 s[58:59], vcc")
            a("ds_write_b128 v65, v[72:75]")
            a("s_mov_b64 exec, s[58:59]")
        for r in range(ACC, ACC + 72): a(f"v_mov_b32 v{r}, 0")
        a("s_waitcnt vmcnt(0)")
        bn_params(a, cfg, None, P_S(0), P_B(0), 16, False)
        bn_params(a, cfg, None, P_S(1), P_B(1), 32, False)
        if special: bn_params(a, cfg, None, PE_S, PE_B, 48, False)
        a("s_waitcnt lgkmcnt(0)")
        if not special:
            compute_prog(a, cfg, prog, None)
        else:
            for wv in range(1, 4):
                a(f"s_cmp_eq_u32 s{S_WAVE}, {wv}\ns_cbranch_scc1 L_sp{wv}_go")
            for wv in range(4): compute_prog(a, cfg, prog, wv)
        epilogue(a, cfg, prog)
    a("L_end:\ns_endpgm")
    a(f""".section .rodata,"a"
.p2align 6
.amdhsa_kernel {KNAME}
  .amdhsa_next_free_vgpr 256
  .amdhsa_next_free_sgpr 96
  .amdhsa_accum_offset 256
  .amdhsa_group_segment_fixed_size 0
  .amdhsa_kernarg_size 72
  .amdhsa_user_sgpr_count 2
  .amdhsa_user_sgpr_kernarg_segment_ptr 1
  .amdhsa_system_sgpr_workgroup_id_x 1
  .amdhsa_float_denorm_mode_32 3
.end_amdhsa_kernel""")
    return a.text() + '\n'

if __name__ == '__main__':
    ap = argparse.ArgumentParser()
    ap.add_argument('-o', default='k.s')
    ap.add_argument('opts', nargs='*')
    args = ap.parse_args()
    kw = {}
    for o in args.opts:
        k, v = o.split('=')
        try: v = eval(v)
        except Exception: pass
        kw[k] = v
    open(args.o, 'w').write(gen(Cfg(**kw)))
```

```python
import sys, argparse, re

KNAME = "standalone__batchnorm__sampling_kernel"
ROWB = 1152
BATB = 9216
TAPB = 663552
XBYTES = 9437184
WBYTES = 1990656
NLOG2E = 0xbfb8aa3b

class Cfg:
    def __init__(self, **kw):
        self.stamps = False
        self.dbgwg = -1
        self.echo = None
        self.itrace = False
        self.xflags = ''
        self.wflags = ''
        self.stflags = 'sc1'
        self.p1 = True
        self.rd_span = 36
        self.pre = 'W0 X0 W1 X1 | W2 W3 X2'
        self.pre_sp = 'W0 X0 W1 X1a'
        self.cpf = True
        self.wpf = False
        self.xspf = False
        self.merge = True
        self.lead = 2
        self.budget = 8
        self.upd_late = True
        self.dpf = 0
        self.lpf = False
        self.post2 = ''
        self.barpos = 1
        self.salu_in = True
        self.sched = 'deep'
        self.sched_sp = 'jit'
        self.late = {}
        self.late_sp = {}
        self.verbose = False
        self.xrot = False
        self.wrot = False
        self.xsplit = False
        self.__dict__.update(kw)

class A:
    def __init__(self): self.L = []
    def __call__(self, s):
        for l in s.split('\n'):
            l = l.strip()
            if l: self.L.append(l)
    def text(self):
        return '\n'.join((l if l.endswith(':') or l.startswith('.') or l.startswith(';') else '    ' + l) for l in self.L)

V_XA = 2
V_Q = [3, 4, 5]
V_WA = [6, 7]
V_OM, V_OE = 8, 9
V_PA, V_PE = 10, 11
SETB = [16, 84]
def XF(s, p): return SETB[s] + 4 * p
def EF(s, t): return SETB[s] + 32 + 4 * t
def WF(s, c, t): return SETB[s] + 44 + 4 * (3 * c + t)
ACC = 152
def TILE(p, c): return ACC + 4 * (2 * p + c)
PS = 224
def P_S(c): return PS + 4 * c
def P_B(c): return PS + 8 + 4 * c
PE_S, PE_B = 240, 244
TMPE = 248
RR = 12
def r4(b): return f"v[{b}:{b+3}]"
def r2(b): return f"v[{b}:{b+1}]"

S_X, S_W, S_O = 20, 24, 28
S_WAVE = 33
S_M, S_T, S_R, S_LINE, S_B0 = 36, 37, 38, 39, 40
S_TMP = 41
S_OM, S_OM2, S_OE = 48, 49, 50
S_DX, S_DW = 51, 52
S_CNT = 53
S_XOFF = 54
S_XBP = 55
S_C = 56
S_ST = 76
sXm, sXq, sW, mXm, mXq, mW, sE, mE = 62, 63, 64, 65, 66, 67, 68, 69

XR_S = [44, 45, 46, 47, 48, 49, 50, 51]
XR_M = [52, 53, 54, 55, 58, 59, 60, 61]
WR_S = [74, 75, 92]
WR_M = [93, 100, 101]

class Prog:
    def __init__(self, special):
        self.special = special
        if not special:
            self.XB = 37632; self.WB0 = 3 * 37632; self.WS = 12288
            self.TB = self.WB0 + 4 * self.WS
        else:
            self.XB = 16384; self.WB0 = 3 * 16384; self.WS = 27648
            self.TB = self.WB0 + 4 * self.WS + 1024
        self.name = 'sp' if special else 'pu'

def interleave(main, fill, span):
    out = []; m = len(fill); j = 0
    for i, x in enumerate(main):
        out.append(x)
        if i < span:
            tgt = ((i + 1) * m + span - 1) // span
            while j < min(tgt, m):
                out.append(fill[j]); j += 1
    out += fill[j:]
    return out

def mfma_pair(prog, s, p, wv):
    out = []
    def chain(tile, items):
        for (a_, b_) in items:
            out.append(f"v_mfma_f32_16x16x32_bf16 {r4(tile)}, {r4(a_)}, {r4(b_)}, {r4(tile)}")
    if p < 8:
        for c in range(2):
            taps = [t for t in range(3) if 0 <= p + t - 1 < 8]
            if c == 1: taps = taps[::-1]
            chain(TILE(p, c), [(WF(s, c, t), XF(s, p + t - 1)) for t in taps])
    elif not prog.special:
        for c in range(2):
            taps = [0, 1, 2] if c == 0 else [2, 1, 0]
            chain(TILE(8, c), [(WF(s, c, t), EF(s, t)) for t in taps])
    else:
        for i in range(2):
            q = 2 * wv + i
            taps = [t for t in range(3) if 0 <= q + t - 1 < 8]
            if i == 1: taps = taps[::-1]
            chain(TILE(8, i), [(EF(s, t), XF(s, q + t - 1)) for t in taps])
    return out

def mfma_list(prog, s, wv):
    return [m for p in range(9) for m in mfma_pair(prog, s, p, wv)]

def read_list(prog, s, ring):
    rd = []
    wo = ring * prog.WS
    def wr(c, t):
        d = WF(s, c, t)
        rd.append(f"ds_read_b64_tr_b16 {r2(d)}, v{V_WA[c]} offset:{wo + t * 4096}")
        rd.append(f"ds_read_b64_tr_b16 {r2(d + 2)}, v{V_WA[c]} offset:{wo + t * 4096 + 512}")
    def xr(p): rd.append(f"ds_read_b128 {r4(XF(s, p))}, v{V_XA} offset:{p * 2048}")
    wr(0, 1); xr(0); wr(0, 2); xr(1); wr(1, 2); wr(1, 1); wr(0, 0); xr(2); wr(1, 0)
    for p in range(3, 8): xr(p)
    for t in range(3):
        d = EF(s, t)
        if not prog.special:
            rd.append(f"ds_read_b128 {r4(d)}, v{V_Q[t]}")
        else:
            rd.append(f"ds_read_b64_tr_b16 {r2(d)}, v{V_Q[0]} offset:{wo + t * 1024}")
            rd.append(f"ds_read_b64_tr_b16 {r2(d + 2)}, v{V_Q[1]} offset:{wo + t * 1024}")
    return rd

def param_reads(prog):
    rd = []
    for c in range(2):
        rd.append(f"ds_read_b128 {r4(P_S(c))}, v{V_PA} offset:{64 * c}")
        rd.append(f"ds_read_b128 {r4(P_B(c))}, v{V_PA} offset:{64 * c + 256}")
    if prog.special:
        rd.append(f"ds_read_b128 {r4(PE_S)}, v{V_PE}")
        rd.append(f"ds_read_b128 {r4(PE_B)}, v{V_PE} offset:256")
    return rd

def addr_updates(prog, stage_change):
    up = []
    d = f"s{S_DX}" if stage_change else "0"
    up.append(f"v_xad_u32 v{V_XA}, v{V_XA}, 64, {d}")
    if not prog.special:
        for t in range(3): up.append(f"v_xad_u32 v{V_Q[t]}, v{V_Q[t]}, 64, {d}")
    if stage_change:
        for c in range(2): up.append(f"v_add_u32 v{V_WA[c]}, s{S_DW}, v{V_WA[c]}")
        if prog.special:
            for h in range(2): up.append(f"v_add_u32 v{V_Q[h]}, s{S_DW}, v{V_Q[h]}")
    return up

def stamp(a, cfg, i):
    if cfg.echo is not None:
        if i == 0: a("s_memrealtime s[76:77]")
        if i == cfg.echo[0]: a("s_memrealtime s[78:79]")
    if cfg.stamps:
        a(f"s_memtime s[{S_ST + 4 + 2 * i}:{S_ST + 5 + 2 * i}]")

def epi_ops(p, prog, cfg):
    ops = []
    R = RR if p == 0 else TILE(p - 1, 0)
    def pars(c):
        if p == 8 and prog.special: return PE_S, PE_B
        return P_S(c), P_B(c)
    T = [TILE(p, 0), TILE(p, 1)]
    e = [TMPE, TMPE + 4]
    def fma(c):
        ps, pb = pars(c)
        return [(f"v_fma_f32 v{T[c] + i}, v{T[c] + i}, v{ps + i}, v{pb + i}", 4) for i in range(4)]
    def exp(c): return [(f"v_exp_f32 v{e[c] + i}, v{T[c] + i}", 8) for i in range(4)]
    def fmu(c): return [(f"v_fma_f32 v{e[c] + i}, v{e[c] + i}, s{S_C}, s{S_C}", 4) for i in range(4)]
    def rcp(c): return [(f"v_rcp_f32 v{e[c] + i}, v{e[c] + i}", 8) for i in range(4)]
    def mul(c): return [(f"v_mul_f32 v{T[c] + i}, v{T[c] + i}, v{e[c] + i}", 4) for i in range(4)]
    def cvt(c): return [(f"v_cvt_pk_bf16_f32 v{R + 2 * c + i}, v{T[c] + 2 * i}, v{T[c] + 2 * i + 1}", 4) for i in range(2)]
    ops += fma(0) + exp(0) + fma(1) + exp(1) + fmu(0) + rcp(0) + fmu(1) + rcp(1) + mul(0) + cvt(0) + mul(1) + cvt(1)
    tail = [(f"v_permlane16_swap_b32 v{R}, v{R + 2}", 4), (f"v_permlane16_swap_b32 v{R + 1}, v{R + 3}", 4)]
    if p < 4: st = f"buffer_store_dwordx4 {r4(R)}, v{V_OM}, s[{S_O}:{S_O + 3}], s{S_OM} offen offset:{p * ROWB} {cfg.stflags}"
    elif p < 8: st = f"buffer_store_dwordx4 {r4(R)}, v{V_OM}, s[{S_O}:{S_O + 3}], s{S_OM2} offen offset:{(p - 4) * ROWB} {cfg.stflags}"
    else: st = f"buffer_store_dwordx4 {r4(R)}, v{V_OE}, s[{S_O}:{S_O + 3}], s{S_OE} offen {cfg.stflags}"
    tail.append((st, 4))
    return ops, tail

def epi_stream(prog, cfg):
    out = []
    pend = []
    for p in range(9):
        ops, tail = epi_ops(p, prog, cfg)
        out.append(ops[:2] + pend + ops[2:])
        pend = tail
    out[-1] += [("s_nop 1", 8)] + pend
    return out

def regs_of(tok):
    m = re.fullmatch(r'v\[(\d+):(\d+)\]', tok)
    if m: return set(range(int(m.group(1)), int(m.group(2)) + 1))
    m = re.fullmatch(r'v(\d+)', tok)
    if m: return {int(m.group(1))}
    return set()

def merged_stage(a, cfg, prog, wv, bar):
    a("s_waitcnt lgkmcnt(0)")
    if bar: a("s_barrier")
    order = []
    ld = cfg.lead
    for p in range(ld): order.append((0, p))
    for p in range(9):
        order.append((1, p))
        if p + ld < 9: order.append((0, p + ld))
    mf = []
    for (s, p) in order:
        for m in mfma_pair(prog, s, p, wv): mf.append((m, s, p))
    reads = read_list(prog, 1, 1) + param_reads(prog)
    fills = ([] if cfg.upd_late else addr_updates(prog, False)) + reads
    nupd = len(fills) - len(reads)
    first17 = next(i for i, m in enumerate(mf) if m[1] == 1)
    last_of = {p: max(i for i, m in enumerate(mf) if m[2] == p and m[1] == 1) for p in range(9)}
    epi = epi_stream(prog, cfg)
    out = []
    pos_last = {}
    issued = 0
    waited = 0
    rd_dst = [regs_of(r.split()[1].rstrip(',')) for r in reads]
    def need(regs):
        nonlocal waited
        k = max([i + 1 for i, d in enumerate(rd_dst) if d & regs] + [0])
        if k > waited:
            nread = issued - nupd
            assert k <= nread, (k, nread)
            out.append(f"s_waitcnt lgkmcnt({min(nread - k, 15)})")
            waited = k if nread - k <= 15 else nread - 15
    ep, ei = 0, 0
    carry = 0
    def emit_epi(budget, final=False):
        nonlocal ep, ei
        spent = 0
        while ep < 9 and (final or spent < budget):
            if ep not in pos_last: break
            if ei == 0:
                dist = len(out) - pos_last[ep] - 1
                if dist < 8:
                    if not final: break
                    out.append(f"s_nop {8 - dist - 1}")
                need(set(range(PS, PS + 24)))
            txt, cost = epi[ep][ei]
            out.append(txt); spent += cost
            ei += 1
            if ei == len(epi[ep]): ep += 1; ei = 0
        return spent
    for i, (m, s, p) in enumerate(mf):
        if s == 1:
            toks = [t.rstrip(',') for t in m.split()[1:]]
            need(regs_of(toks[1]) | regs_of(toks[2]))
        out.append(m)
        if i == last_of[p] and s == 1: pos_last[p] = len(out) - 1
        if issued < len(fills):
            n = 2
            while n and issued < len(fills):
                out.append(fills[issued]); issued += 1; n -= 1
        else:
            emit_epi(cfg.budget)
    return out, (lambda: emit_epi(0, True)), out

def compute_prog(a, cfg, prog, wv):
    n = prog.name + ('' if wv is None else str(wv))
    bar_every = prog.special or not cfg.p1
    a(f"L_{n}_go:")
    stamp(a, cfg, 1)
    a("s_barrier")
    stamp(a, cfg, 2)
    for r in read_list(prog, 0, 0): a(r)
    if cfg.upd_late:
        for x in addr_updates(prog, False): a(x)
    a(f"s_mov_b32 s{S_CNT}, 8")
    a(f"s_mov_b32 s{S_XOFF}, 0")
    a(f"s_mov_b32 s{S_DW}, {2 * prog.WS}")
    a(f"s_mov_b32 s{S_XBP}, {prog.XB}")
    if cfg.salu_in:
        a(f"s_mov_b32 s{S_DX}, {prog.XB}\ns_mov_b32 s{S_XOFF}, 1")
    a(f"L_{n}_loop:")
    def step(s, last=False, bar=True, extra=[], salu=[]):
        a("s_waitcnt lgkmcnt(0)")
        m = mfma_list(prog, s, wv)
        if bar:
            for x in m[:cfg.barpos]: a(x)
            m = m[cfg.barpos:]
            a("s_barrier")
        if last:
            for x in m: a(x)
            return
        if cfg.upd_late:
            fill = read_list(prog, 1 - s, 1 - s) + extra
            body = interleave(m[:cfg.rd_span], fill, cfg.rd_span) + interleave(m[cfg.rd_span:], addr_updates(prog, s == 0) + salu, 8)
            for x in body: a(x)
        else:
            fill = addr_updates(prog, s == 1) + read_list(prog, 1 - s, 1 - s) + extra
            for x in interleave(m, fill, cfg.rd_span): a(x)
    top = [f"s_cmp_eq_u32 s{S_XOFF}, 2",
           f"s_cselect_b32 s{S_DX}, {(-2 * prog.XB) & 0xffffffff}, s{S_XBP}",
           f"s_cselect_b32 s{S_XOFF}, -1, s{S_XOFF}",
           f"s_add_u32 s{S_XOFF}, s{S_XOFF}, 1"]
    bot = [f"s_sub_u32 s{S_DW}, 0, s{S_DW}", f"s_sub_u32 s{S_CNT}, s{S_CNT}, 1", f"s_cmp_lg_u32 s{S_CNT}, 0"]
    if cfg.salu_in:
        assert cfg.upd_late
        step(0, bar=bar_every)
        step(1, salu=top + bot)
    else:
        for x in top: a(x)
        step(0, bar=bar_every)
        step(1)
        for x in bot: a(x)
    a(f"s_cbranch_scc1 L_{n}_loop")
    stamp(a, cfg, 3)
    if cfg.merge:
        out, fin, o2 = merged_stage(a, cfg, prog, wv, bar_every)
        k = len(out)
        fin()
        for x in out[:k]: a(x)
        stamp(a, cfg, 4)
        for x in out[k:]: a(x)
    else:
        step(0, bar=bar_every, extra=param_reads(prog))
        step(1, last=True, bar=False)
        stamp(a, cfg, 4)
        for l in epi_stream(prog, cfg):
            for x, _ in l: a(x)
    a(f"s_branch L_fin")

def finish(a, cfg):
    a("L_fin:")
    stamp(a, cfg, 5)
    if cfg.echo is not None:
        a("s_waitcnt vmcnt(0)")
        stamp(a, cfg, 6)
        a("s_memrealtime s[80:81]\ns_waitcnt lgkmcnt(0)")
        a(f"s_sub_u32 s78, s78, s76\ns_mul_i32 s78, s78, {cfg.echo[1]}")
        if len(cfg.echo) > 2:
            a(f"s_cmp_eq_u32 s2, {cfg.echo[2]}\ns_cselect_b32 s78, s78, 0")
        a(f"L_echo:\ns_memrealtime s[82:83]\ns_waitcnt lgkmcnt(0)\ns_sub_u32 s82, s82, s80\ns_cmp_lt_u32 s82, s78\ns_cbranch_scc1 L_echo")
    if cfg.stamps:
        a("s_waitcnt vmcnt(0)")
        stamp(a, cfg, 6)
        a(f"s_cmp_lg_u32 s{S_WAVE}, 0\ns_cbranch_scc1 L_end")
        a(f"s_memrealtime s[{S_ST + 2}:{S_ST + 3}]")
        a("s_load_dwordx2 s[4:5], s[0:1], 64\ns_waitcnt lgkmcnt(0)")
        a(f"v_mov_b32 v16, s{S_ST}\nv_mov_b32 v17, s{S_ST + 1}\nv_mov_b32 v18, s{S_ST + 2}\nv_mov_b32 v19, s{S_ST + 3}")
        for i in range(1, 7):
            a(f"s_sub_u32 s{S_TMP}, s{S_ST + 4 + 2 * i}, s{S_ST + 4}\nv_mov_b32 v{18 + 2 * i}, s{S_TMP}\nv_mov_b32 v{19 + 2 * i}, 0")
        a(f"s_mul_i32 s{S_TMP}, s2, 64\nv_mov_b32 v32, s{S_TMP}")
        a("v_cmp_eq_u32 vcc, 0, v0\ns_and_saveexec_b64 s[6:7], vcc")
        a("global_store_dwordx4 v32, v[16:19], s[4:5]\nglobal_store_dwordx4 v32, v[20:23], s[4:5] offset:16")
        a("global_store_dwordx4 v32, v[24:27], s[4:5] offset:32\nglobal_store_dwordx4 v32, v[28:31], s[4:5] offset:48")

def rot_tables(a, cfg):
    T = S_TMP
    if cfg.wrot:
        a(f"s_mul_i32 s{T}, s{S_R}, 43\ns_lshr_b32 s{T}, s{T}, 7\ns_mul_i32 s{T}, s{T}, 3\ns_sub_u32 s{T}, s{S_R}, s{T}")
        for k in range(3):
            if k: a(f"s_add_u32 s{T}, s{T}, 1\ns_cmp_eq_u32 s{T}, 3\ns_cselect_b32 s{T}, 0, s{T}")
            a(f"s_mul_i32 s{T + 1}, s{T}, {TAPB}\ns_add_u32 s{WR_S[k]}, s{sW}, s{T + 1}\ns_lshl_b32 s{T + 1}, s{T}, 12\ns_add_u32 s{WR_M[k]}, s{mW}, s{T + 1}")
    if cfg.xrot:
        for k in range(8):
            a(f"s_add_u32 s{T}, s{S_LINE}, {k}\ns_and_b32 s{T}, s{T}, 7\ns_mul_i32 s{T + 1}, s{T}, {ROWB}\ns_add_u32 s{XR_S[k]}, s{sXm}, s{T + 1}")
            a(f"s_lshl_b32 s{T}, s{T}, 11\ns_add_u32 s{XR_M[k]}, s{mXm}, s{T}")

def loader_prog(a, cfg, prog):
    rot = [False]
    xstate = {}
    tmp = 70
    vXm, vXq, vW, vE = 2, 3, 4, 5
    lg = [0]
    def lstamp():
        if cfg.stamps and lg[0] < 64:
            a(f"s_memtime s[94:95]\ns_waitcnt lgkmcnt(0)\ns_sub_u32 s94, s94, s{S_ST + 4}\nv_writelane_b32 v40, s94, {lg[0]}")
            lg[0] += 1
    seq = []
    def dma(v, srd, sbase, soff, mbase, moff, tag):
        a(f"s_add_u32 m0, s{mbase}, {moff}")
        a(f"s_add_u32 s{tmp}, s{sbase}, {soff}")
        a(f"buffer_load_dwordx4 v{v}, s[{srd}:{srd + 3}], s{tmp} offen {cfg.xflags if tag[0] == 'x' else cfg.wflags} lds")
        seq.append(tag)
        if cfg.itrace: lstamp()
    def issue_x(t, part=None):
        buf = (t % 3) * prog.XB
        ns = 4 if prog.special else 8
        rng = range(ns) if part is None else (range(ns // 2) if part == 0 else range(ns // 2, ns))
        assert xstate.setdefault(t, rot[0]) == rot[0], "both halves of a stage must use the same order"
        for s in rng:
            if cfg.xrot and rot[0]: dma(vXm, S_X, XR_S[s], t * 128, XR_M[s], buf, ('x', t))
            else: dma(vXm, S_X, sXm, s * ROWB + t * 128, mXm, buf + s * 2048, ('x', t))
        if not prog.special and part != 0:
            dma(vXq, S_X, sXq, t * 128, mXq, buf, ('x', t))
    def issue_w(j):
        buf = (j & 3) * prog.WS
        for k, tap in enumerate((1, 2, 0)):
            if cfg.wrot and rot[0]:
                dma(vW, S_W, WR_S[k], j * 32 * ROWB, WR_M[k], buf, ('w', j)); continue
            dma(vW, S_W, sW, tap * TAPB + j * 32 * ROWB, mW, buf + tap * 4096, ('w', j))
            if prog.special:
                dma(vW, S_W, sW, tap * TAPB + j * 32 * ROWB + 128, mW, buf + 12288 + tap * 4096, ('w', j))
        if prog.special:
            a(f"s_mul_i32 s{tmp + 1}, s{tmp + 2}, {j & 3}")
            a(f"s_add_u32 m0, s{mE}, s{tmp + 1}")
            a(f"s_add_u32 s{tmp}, s{sE}, {j * 32 * ROWB}")
            a(f"buffer_load_dwordx4 v{vE}, s[{S_W}:{S_W + 3}], s{tmp} offen lds")
            seq.append(('w', j))
    def wait_for(need):
        last = max(i for i, t in enumerate(seq) if t in need)
        a(f"s_waitcnt vmcnt({len(seq) - 1 - last})")
    def bn_loads():
        for i, sp in enumerate((8, 10, 12, 14)):
            a(f"global_load_ushort v{20 + i}, v6, s[{sp}:{sp + 1}]")
            seq.append(('b', 0))
    def bn_finish():
        for i in range(4): a(f"v_lshlrev_b32 v{20 + i}, 16, v{20 + i}")
        a("v_add_f32 v21, 0x3727c5ac, v21")
        a("v_rsq_f32 v21, v21\ns_nop 0")
        a("v_mul_f32 v21, v21, v22")
        a("v_fma_f32 v23, -v20, v21, v23")
        a(f"v_mul_f32 v21, s{S_C}, v21\nv_mul_f32 v23, s{S_C}, v23")
        a("ds_write_b32 v7, v21\nds_write_b32 v7, v23 offset:256")
    p1 = cfg.p1 and not prog.special
    lstamp()
    def extra_pf():
        if cfg.wpf:
            a(f"buffer_load_dword v30, v8, s[{S_W}:{S_W + 3}], 0 offen"); seq.append(('p', 0))
        if cfg.xspf and not prog.special:
            a(f"buffer_load_dword v31, v9, s[{S_X}:{S_X + 3}], 0 offen"); seq.append(('p', 0))
    done = set()
    def issue_list(l):
        for it in l.split():
            if it == 'B': bn_loads()
            elif it == 'P': extra_pf()
            elif it[0] == 'P':
                a(f"s_mul_i32 s{tmp}, s73, {int(it[1:])}")
                a(f"buffer_load_dword v30, v16, s[96:99], s{tmp} offen"); seq.append(('p', 0))
            elif it[0] == 'W': issue_w(int(it[1:]))
            elif it[-1] in 'ab': issue_x(int(it[1:-1]), 'ab'.index(it[-1]))
            else: issue_x(int(it[1:]))
            done.add(it)
    js = list(range(0, 18, 2) if p1 else range(18))
    parts = (cfg.pre_sp if prog.special else cfg.pre).split('|')
    parts += [''] * (len(js) + 1 - len(parts))
    mode = cfg.sched_sp if prog.special else cfg.sched
    given = set(' '.join(parts).split())
    def auto(k, it):
        base = it.rstrip('ab')
        if it in given or base in given or (it == base and (base + 'a') in given): return
        n_ = int(base[1:])
        if n_ >= (18 if it[0] == 'W' else 9): return
        parts[k + 1] += ' ' + it
    for k, j in enumerate(js):
        if p1:
            if j >= 2: auto(k, f"W{j + 2}"); auto(k, f"W{j + 3}"); auto(k, f"X{(j >> 1) + 2}")
        elif mode == 'deep':
            if j >= 1:
                auto(k, f"W{j + 3}")
                if j % 2 == 0: auto(k, f"X{(j >> 1) + 2}")
        elif mode == 'split':
            if j >= 1: auto(k, f"W{j + 3}")
            if j >= 2: auto(k, f"X{(j >> 1) + 2}" + 'ab'[j & 1])
        elif mode == 'jit':
            auto(k, f"W{j + 2}")
            auto(k, f"X{(j + 3) >> 1}" + 'ba'[j & 1])
    for k, e in (cfg.late_sp if prog.special else cfg.late).items(): parts[k + 1] += ' ' + e
    if 'B' not in given: parts[1] += ' B'
    for k, pt in enumerate(parts):
        passed = js[k - 1] if k else -1
        for it in pt.split():
            if it[0] == 'W' and int(it[1:]) >= 4: assert passed >= int(it[1:]) - 3, (it, passed)
            if it[0] == 'X' and int(it.rstrip('ab')[1:]) >= 3: assert passed >= 2 * int(it.rstrip('ab')[1:]) - 4, (it, passed)
    if cfg.verbose: print(prog.name, ' | '.join(parts), file=sys.stderr)
    issue_list(parts[0])
    lstamp()
    if not prog.special:
        rot_tables(a, cfg); rot[0] = True
    for k, j in enumerate(js):
        need = {('w', j), ('x', j >> 1)}
        if p1: need.add(('w', j + 1))
        for t_ in need:
            assert seq.count(t_) == ((7 if prog.special else 3) if t_[0] == 'w' else (4 if prog.special else 9)), t_
        wait_for(need)
        if j == 6:
            a("s_waitcnt lgkmcnt(0)")
        lstamp()
        a("s_barrier")
        lstamp()
        issue_list(parts[k + 1])
        if j == 4:
            wait_for({('b', 0)})
            bn_finish()
    assert sum(1 for t in seq if t[0] == 'w') == 18 * (7 if prog.special else 3)
    assert sum(1 for t in seq if t[0] == 'x') == 9 * (4 if prog.special else 9)
    if cfg.stamps:
        a(f"s_cmp_lg_u32 s{S_WAVE}, 4\ns_cbranch_scc1 L_end")
        a("s_load_dwordx2 s[4:5], s[0:1], 64\ns_waitcnt lgkmcnt(0)")
        a(f"s_lshl_b32 s{S_TMP}, s2, 9\ns_add_u32 s{S_TMP}, s{S_TMP}, 0x100000\nv_lshl_add_u32 v41, v0, 2, s{S_TMP}")
        a("global_store_dword v41, v40, s[4:5]")
    a("s_endpgm")

def gen(cfg):
    a = A()
    hdr = open('standalone__batchnorm__sampling.s.ref').read().split('; Override')[0]
    a.L.append(hdr.rstrip())
    a.L.append("; @launch grid=(256,1,1) block=(512,1,1) lds=163840")
    a(f'.amdgcn_target "amdgcn-amd-amdhsa--gfx950"\n.text\n.globl {KNAME}\n.p2align 8\n.type {KNAME},@function\n{KNAME}:')
    if cfg.stamps:
        a(f"s_memrealtime s[{S_ST}:{S_ST + 1}]")
    stamp(a, cfg, 0)
    T = S_TMP
    a("s_cmp_ge_u32 s2, 256\ns_cbranch_scc1 L_end")
    a("s_load_dwordx16 s[4:19], s[0:1], 0")
    a(f"s_lshr_b32 s{T + 1}, s2, 3")
    if cfg.cpf:
        a(f"s_getpc_b64 s[58:59]\nL_pc:")
        a(f"s_and_b32 s{T}, s{T + 1}, 7\ns_mul_i32 s{T}, s{T}, 5120")
        a(f"v_lshl_add_u32 v1, v0, 7, s{T}\nv_min_u32 v1, L_end-L_pc, v1")
        a("v_cmp_gt_u32 vcc, 40, v0\ns_and_saveexec_b64 s[60:61], vcc\ns_cbranch_execz L_nopf")
        a("global_load_dword v254, v1, s[58:59]")
        a("L_nopf:\ns_mov_b64 exec, s[60:61]")
    a("v_lshrrev_b32 v1, 6, v0\nv_and_b32 v0, 63, v0")
    a(f"s_and_b32 s{T}, s2, 7")
    a(f"v_readfirstlane_b32 s{S_WAVE}, v1")
    a(f"s_lshr_b32 s{S_M}, s{T}, 1\ns_and_b32 s{T}, s{T}, 1\ns_lshl_b32 s{T}, s{T}, 5\ns_add_u32 s{S_T}, s{T}, s{T + 1}")
    a(f"s_mov_b32 s{S_C}, {NLOG2E:#x}\ns_mov_b32 s34, {ROWB}")
    if cfg.dpf:
        ns = cfg.dpf
        rows = 10
        a(f"s_cmp_ge_u32 s{S_WAVE}, 4\ns_cbranch_scc1 L_nodpf")
        a(f"v_min_u32 v2, {rows * ns - 1}, v0\nv_mul_u32_u24 v3, {(1 << 12) // ns + 1}, v2\nv_lshrrev_b32 v3, 12, v3")
        a(f"v_mul_u32_u24 v4, {ns}, v3\nv_sub_u32 v4, v2, v4")
        a(f"s_mul_i32 s{T + 2}, s{S_WAVE}, {rows}\nv_add_u32 v3, s{T + 2}, v3")
        a(f"s_lshr_b32 s{T + 2}, s{S_T}, 5\ns_mul_i32 s{T + 3}, s{S_M}, 7\ns_mul_i32 s{T + 4}, s{T + 2}, 3\ns_add_u32 s{T + 3}, s{T + 3}, s{T + 4}")
        a(f"s_mul_i32 s{T + 3}, s{T + 3}, 288\ns_mul_i32 s{T + 4}, s{T + 1}, 36\ns_add_u32 s{T + 3}, s{T + 3}, s{T + 4}")
        a(f"s_lshl_b32 s{T + 4}, s{T + 1}, 2\ns_add_u32 s{T + 4}, s{T + 4}, {8064 - 36}")
        a(f"s_cmp_eq_u32 s{T + 2}, 0\ns_cselect_b32 s{T + 5}, 35, 39")
        a(f"v_min_u32 v3, s{T + 5}, v3\nv_add_u32 v5, s{T + 3}, v3\nv_add_u32 v6, s{T + 4}, v3\nv_cmp_gt_u32 vcc, 36, v3")
        a(f"v_lshlrev_b32 v4, 7, v4\ns_mul_i32 s{T + 2}, s{T + 1}, {18 * ns}\nv_cndmask_b32 v5, v6, v5, vcc\nv_mad_u32_u24 v5, v5, s34, v4")
        a(f"v_min_u32 v2, {18 * ns - 1}, v0\nv_add_u32 v2, s{T + 2}, v2\ns_mul_i32 s{T + 2}, s{S_WAVE}, {TAPB}\nv_lshl_add_u32 v2, v2, 7, s{T + 2}")
        a("s_waitcnt lgkmcnt(0)")
        a(f"global_load_dword v252, v5, s[4:5] {cfg.xflags}")
        a(f"s_cmp_eq_u32 s{S_WAVE}, 3\ns_cbranch_scc1 L_nodpf")
        a("global_load_dword v253, v2, s[6:7]")
        a("L_nodpf:")
    a(f"s_cmp_eq_u32 s{S_T}, 63\ns_cbranch_scc1 L_special")
    def srds(which):
        a("s_waitcnt lgkmcnt(0)")
        for srd, p, nb in which:
            a(f"s_mov_b32 s{srd}, s{p}\ns_and_b32 s{srd + 1}, s{p + 1}, 0xffff\ns_mov_b32 s{srd + 2}, {nb}\ns_mov_b32 s{srd + 3}, 0x20000")
    for special in (False, True):
        prog = Prog(special)
        n = prog.name
        if not special:
            a(f"s_mul_i32 s{S_R}, s{S_T}, 57\ns_lshr_b32 s{S_R}, s{S_R}, 9")
            a(f"s_mul_i32 s{T}, s{S_R}, 9\ns_sub_u32 s{S_LINE}, s{S_T}, s{T}")
            a(f"s_mul_i32 s{T}, s{S_M}, 7\ns_add_u32 s{S_R}, s{S_R}, s{T}\ns_mul_i32 s{S_B0}, s{S_R}, {36 * BATB}")
        else:
            a("L_special:")
            a(f"s_lshl_b32 s{S_LINE}, s{S_M}, 1\ns_mov_b32 s{S_B0}, {1008 * BATB}")
        a(f"s_cmp_ge_u32 s{S_WAVE}, 4\ns_cbranch_scc0 L_{n}_comp")
        a(f"s_sub_u32 s{T}, s{S_WAVE}, 4")
        a(f"s_and_b32 s{T + 1}, s{T}, 1\ns_lshr_b32 s{T + 2}, s{T}, 1")
        a("v_lshrrev_b32 v10, 3, v0\nv_and_b32 v11, 7, v0\nv_lshrrev_b32 v12, 1, v10")
        a(f"s_lshl_b32 s{T + 3}, s{T + 1}, 2")
        a(f"v_xor_b32 v11, s{T + 3}, v11")
        a(f"v_and_b32 v13, 2, v10\nv_xor_b32 v13, v13, v11")
        a(f"v_mul_u32_u24 v14, {ROWB}, v10\nv_lshl_add_u32 v4, v13, 4, v14")
        a(f"s_mul_i32 s{sW}, s{T}, {8 * ROWB}\ns_lshl_b32 s{T + 4}, s{S_LINE}, 7\ns_add_u32 s{sW}, s{sW}, s{T + 4}")
        a(f"s_lshl_b32 s{mW}, s{T}, 10\ns_add_u32 s{mW}, s{mW}, {prog.WB0}")
        a(f"v_xor_b32 v13, v12, v11\nv_mul_u32_u24 v15, {BATB}, v10\nv_lshl_add_u32 v2, v13, 4, v15")
        a(f"s_mul_i32 s{sXm}, s{T + 1}, {8 * BATB}\ns_add_u32 s{sXm}, s{sXm}, s{S_B0}")
        a(f"s_lshl_b32 s{mXm}, s{T + 1}, 10")
        if not special:
            a(f"s_mul_i32 s{T + 5}, s{T + 2}, {16 * BATB}\ns_add_u32 s{sXm}, s{sXm}, s{T + 5}")
            a(f"s_lshl_b32 s{T + 5}, s{T + 2}, 14\ns_add_u32 s{mXm}, s{mXm}, s{T + 5}")
            a(f"s_mul_i32 s{T + 5}, s{T}, 9\ns_add_u32 s{T + 5}, s{T + 5}, 1")
            a(f"v_add_u32 v13, s{T + 5}, v10\nv_bfe_u32 v13, v13, 1, 3\nv_and_b32 v12, 7, v0\nv_xor_b32 v13, v13, v12\nv_lshl_add_u32 v3, v13, 4, v14")
            a(f"s_lshl_b32 s{mXq}, s{T + 5}, 7\ns_add_u32 s{mXq}, s{mXq}, 32768")
            a(f"s_add_u32 s{T + 5}, s{T}, 32\ns_mul_i32 s{T + 5}, s{T + 5}, {BATB}\ns_add_u32 s{sXq}, s{T + 5}, s{S_B0}")
            a(f"v_lshl_add_u32 v6, v0, 1, s{T + 4}")
            a(f"v_lshlrev_b32 v7, 2, v0\nv_add_u32 v7, {prog.TB}, v7")
        else:
            a(f"s_mul_i32 s{T + 5}, s{T + 2}, {4 * ROWB}\ns_add_u32 s{sXm}, s{sXm}, s{T + 5}")
            a(f"s_lshl_b32 s{T + 5}, s{T + 2}, 13\ns_add_u32 s{mXm}, s{mXm}, s{T + 5}")
            a("v_lshrrev_b32 v13, 1, v0\nv_bfe_u32 v14, v0, 4, 1\nv_lshlrev_b32 v14, 2, v14\nv_xor_b32 v13, v13, v14")
            a(f"v_mul_u32_u24 v13, {ROWB}, v13\nv_and_b32 v14, 1, v0\nv_lshl_add_u32 v5, v14, 4, v13")
            a(f"s_mul_i32 s{sE}, s{T}, {TAPB}\ns_lshl_b32 s{T + 5}, s{S_M}, 5\ns_add_u32 s{T + 5}, s{T + 5}, 1024\ns_add_u32 s{sE}, s{sE}, s{T + 5}")
            a(f"s_lshl_b32 s{mE}, s{T}, 10\ns_add_u32 s{mE}, s{mE}, {prog.WB0 + 24576}")
            a(f"s_cmp_eq_u32 s{T}, 3")
            a(f"s_cselect_b32 s{mE}, {prog.WB0 + 4 * prog.WS}, s{mE}")
            a(f"s_cselect_b32 s72, 0, {prog.WS}")
            a(f"s_cselect_b32 s{T + 6}, 0x40000000, 0")
            a(f"v_add_u32 v5, s{T + 6}, v5")
            a(f"s_lshl_b32 s{T + 6}, s{T + 1}, 7\ns_add_u32 s{T + 6}, s{T + 6}, s{T + 4}")
            a(f"s_cmp_ge_u32 s{T}, 2\ns_cselect_b32 s{T + 6}, s{T + 5}, s{T + 6}")
            a(f"v_lshl_add_u32 v6, v0, 1, s{T + 6}\nv_min_u32 v6, 1150, v6")
            a(f"s_min_u32 s{T + 6}, s{T}, 2\ns_lshl_b32 s{T + 6}, s{T + 6}, 9\ns_add_u32 s{T + 6}, s{T + 6}, {prog.TB}")
            a(f"v_lshl_add_u32 v7, v0, 2, s{T + 6}")
        if cfg.wpf:
            a(f"s_mul_i32 s{T + 6}, s2, 61\ns_lshl_b32 s{T + 5}, s{T}, 4\ns_add_u32 s{T + 6}, s{T + 6}, s{T + 5}")
            a(f"v_add_u32 v8, s{T + 6}, v0\nv_lshlrev_b32 v8, 7, v8\nv_cmp_gt_u32 vcc, 16, v0\nv_mov_b32 v13, 0x40000000\nv_cndmask_b32 v8, v13, v8, vcc")
        if cfg.xspf and not special:
            a(f"s_and_b32 s{T + 6}, s{S_T}, 31\ns_mul_i32 s{T + 6}, s{T + 6}, 40\ns_mul_i32 s{T + 5}, s{T}, 10\ns_add_u32 s{T + 6}, s{T + 6}, s{T + 5}")
            a(f"s_add_u32 s{T + 6}, s{T + 6}, {1008 * 72}")
            a(f"v_add_u32 v9, s{T + 6}, v0\nv_lshlrev_b32 v9, 7, v9\nv_cmp_gt_u32 vcc, 10, v0\nv_mov_b32 v13, 0x40000000\nv_cndmask_b32 v9, v13, v9, vcc")
            a(f"s_cmp_lt_u32 s{S_T}, 32\ns_cselect_b32 s{T + 6}, 0x40000000, 0\nv_or_b32 v9, s{T + 6}, v9")
        if cfg.lpf:
            a(f"s_lshr_b32 s74, s2, 3")
            a(f"s_mul_i32 s75, s74, 54\ns_mul_i32 s{T + 5}, s{T + 1}, 27\ns_add_u32 s75, s75, s{T + 5}")
            a(f"v_min_u32 v17, 26, v0\nv_add_u32 v17, s75, v17\nv_mul_u32_u24 v18, 0x71d, v17\nv_lshrrev_b32 v18, 20, v18")
            a(f"v_mul_u32_u24 v18, {TAPB - 576 * 128}, v18\nv_lshl_add_u32 v17, v17, 7, v18")
            a(f"s_lshr_b32 s{T + 5}, s{S_T}, 5\ns_mul_i32 s75, s{S_M}, 7\ns_mul_i32 s{T + 6}, s{T + 5}, 3\ns_add_u32 s75, s75, s{T + 6}")
            a(f"s_mul_i32 s75, s75, 288\ns_mul_i32 s{T + 6}, s74, 36\ns_add_u32 s75, s75, s{T + 6}")
            a(f"s_lshl_b32 s74, s74, 2\ns_add_u32 s74, s74, {8064 - 36}")
            a(f"s_cmp_eq_u32 s{T + 5}, 0\ns_cselect_b32 s{T + 5}, 35, 39\ns_mul_i32 s{T + 6}, s{T + 1}, 20")
            a(f"v_min_u32 v18, 19, v0\nv_add_u32 v18, s{T + 6}, v18\nv_min_u32 v18, s{T + 5}, v18")
            a(f"v_add_u32 v19, s75, v18\nv_cmp_gt_u32 vcc, 36, v18\nv_add_u32 v18, s74, v18\ns_nop 0\nv_cndmask_b32 v18, v18, v19, vcc\nv_mul_u32_u24 v18, {ROWB}, v18")
            a(f"s_cmp_eq_u32 s{T + 2}, 0\ns_cselect_b64 vcc, -1, 0\ns_movk_i32 s73, 128\ns_cselect_b32 s73, {64 * ROWB}, s73")
            a(f"v_cndmask_b32 v16, v18, v17, vcc")
        srds(((S_W, 6, WBYTES), (S_X, 4, XBYTES)))
        if cfg.lpf:
            a(f"s_cmp_eq_u32 s{T + 2}, 0\ns_cselect_b32 s96, s{S_W}, s{S_X}\ns_cselect_b32 s97, s{S_W + 1}, s{S_X + 1}\ns_cselect_b32 s98, s{S_W + 2}, s{S_X + 2}\ns_mov_b32 s99, 0x20000")
        loader_prog(a, cfg, prog)
        a(f"L_{n}_comp:")
        a(f"s_lshr_b32 s{T}, s{S_WAVE}, 1\ns_and_b32 s{T + 1}, s{S_WAVE}, 1")
        a("v_and_b32 v60, 15, v0\nv_lshrrev_b32 v61, 4, v0")
        if special:
            a(f"s_add_u32 s{S_LINE}, s{S_LINE}, s{T}")
        a(f"s_lshl_b32 s{T + 2}, s{S_LINE}, 7\ns_lshl_b32 s{T + 3}, s{T + 1}, 6\ns_add_u32 s{T + 2}, s{T + 2}, s{T + 3}")
        a(f"s_lshl_b32 s{T + 3}, s{T + 1}, 7\ns_add_u32 s{T + 3}, s{T + 3}, {prog.TB}")
        if special:
            a(f"s_lshl_b32 s{T + 4}, s{T}, 9\ns_add_u32 s{T + 3}, s{T + 3}, s{T + 4}")
            a(f"v_lshlrev_b32 v{V_PE}, 4, v61\nv_add_u32 v{V_PE}, {prog.TB + 1024}, v{V_PE}")
        a(f"v_lshl_add_u32 v{V_PA}, v61, 4, s{T + 3}")
        a("v_and_b32 v14, 1, v61\nv_lshrrev_b32 v15, 1, v61")
        a(f"v_mul_u32_u24 v{V_OM}, {BATB}, v60\nv_lshl_add_u32 v{V_OM}, v15, 4, v{V_OM}")
        if not special:
            a(f"v_lshl_add_u32 v{V_OM}, v14, 5, v{V_OM}")
            a(f"v_lshrrev_b32 v12, 3, v60\nv_and_b32 v13, 7, v60")
            a(f"v_mul_u32_u24 v{V_OE}, {BATB}, v12\nv_mul_u32_u24 v64, {ROWB}, v13\nv_add_u32 v{V_OE}, v{V_OE}, v64")
            a(f"v_lshl_add_u32 v{V_OE}, v15, 4, v{V_OE}\nv_lshl_add_u32 v{V_OE}, v14, 5, v{V_OE}")
            a(f"s_mul_i32 s{T + 3}, s{T}, {16 * BATB}\ns_add_u32 s{S_OM}, s{S_B0}, s{T + 3}\ns_add_u32 s{S_OM}, s{S_OM}, s{T + 2}")
            a(f"s_mul_i32 s{T + 3}, s{T}, {2 * BATB}\ns_add_u32 s{S_OE}, s{S_B0}, s{T + 3}\ns_add_u32 s{S_OE}, s{S_OE}, {32 * BATB}\ns_add_u32 s{S_OE}, s{S_OE}, s{T + 2}")
            a(f"s_mul_i32 s{T + 3}, s{T}, 18\nv_mad_u32_u24 v64, v12, 9, v13\nv_add_u32 v64, s{T + 3}, v64")
            for t in range(3):
                a(f"v_add_u32 v65, {t}, v64\nv_bfe_u32 v66, v65, 1, 3\nv_xor_b32 v66, v66, v61\nv_lshlrev_b32 v66, 4, v66")
                a(f"v_lshl_add_u32 v66, v65, 7, v66\nv_add_u32 v{V_Q[t]}, 32768, v66")
        else:
            a(f"v_mul_u32_u24 v64, {ROWB}, v14\nv_add_u32 v{V_OE}, v{V_OM}, v64")
            a(f"v_lshl_add_u32 v{V_OM}, v14, 5, v{V_OM}")
            a(f"s_add_u32 s{S_OM}, s{S_B0}, s{T + 2}")
            a(f"s_mul_i32 s{T + 3}, s{S_WAVE}, {2 * ROWB}\ns_add_u32 s{S_OE}, s{S_B0}, s{T + 3}")
            a(f"s_lshl_b32 s{T + 3}, s{S_M}, 5\ns_add_u32 s{S_OE}, s{S_OE}, s{T + 3}\ns_add_u32 s{S_OE}, s{S_OE}, 1024")
        a(f"s_add_u32 s{S_OM2}, s{S_OM}, {4 * ROWB}")
        a(f"v_lshrrev_b32 v64, 1, v60\nv_xor_b32 v64, v64, v61\nv_lshlrev_b32 v64, 4, v64\nv_lshl_add_u32 v{V_XA}, v60, 7, v64")
        if not special:
            a(f"s_lshl_b32 s{T + 3}, s{T}, 14\nv_add_u32 v{V_XA}, s{T + 3}, v{V_XA}")
        a("v_lshrrev_b32 v64, 2, v60\nv_and_b32 v65, 3, v60\nv_lshl_add_u32 v66, v61, 3, v64")
        a("v_and_b32 v67, 2, v64\nv_lshl_add_u32 v67, v14, 2, v67")
        a(f"s_lshl_b32 s{T + 3}, s{T + 1}, 2\nv_lshrrev_b32 v68, 1, v65\nv_add_u32 v68, s{T + 3}, v68")
        a("v_and_b32 v69, 1, v65\nv_lshlrev_b32 v69, 3, v69\nv_lshl_add_u32 v69, v66, 7, v69")
        if special:
            a(f"s_mul_i32 s{T + 3}, s{T}, 12288\ns_add_u32 s{T + 3}, s{T + 3}, {prog.WB0}")
        else:
            a(f"s_mov_b32 s{T + 3}, {prog.WB0}")
        a(f"v_add_u32 v69, s{T + 3}, v69")
        for c in range(2):
            a(f"v_add_u32 v70, {2 * c}, v68\nv_xor_b32 v70, v70, v67\nv_lshl_add_u32 v{V_WA[c]}, v70, 4, v69")
        if special:
            a(f"v_lshl_add_u32 v70, v14, 2, v66\nv_lshlrev_b32 v70, 5, v70\nv_lshl_add_u32 v70, v65, 3, v70")
            a(f"v_add_u32 v{V_Q[0]}, {prog.WB0 + 24576}, v70\nv_xor_b32 v70, 128, v70\nv_add_u32 v{V_Q[1]}, {prog.WB0 + 24576}, v70")
        for r in range(ACC, ACC + 72): a(f"v_mov_b32 v{r}, 0")
        if not special:
            a(f"v_lshrrev_b32 v64, 3, v0\ns_lshl_b32 s{T + 3}, s{S_WAVE}, 3\nv_add_u32 v64, s{T + 3}, v64")
            a("v_mul_u32_u24 v65, 52, v64\nv_lshrrev_b32 v65, 8, v65")
            a("v_mul_u32_u24 v66, 5, v65\nv_sub_u32 v66, v64, v66")
            a(f"v_mul_u32_u24 v65, {prog.XB}, v65\nv_mul_u32_u24 v66, {9 * 128}, v66\nv_add_u32 v65, v65, v66")
            a("v_and_b32 v66, 7, v0\nv_lshl_add_u32 v65, v66, 4, v65\nv_add_u32 v65, 32768, v65")
            a("v_cmp_gt_u32 vcc, 15, v64\ns_and_saveexec_b64 s[58:59], vcc")
            a(f"ds_write_b128 v65, {r4(ACC)}")
            a("s_mov_b64 exec, s[58:59]")
        srds(((S_O, 16, XBYTES),))
        a("s_waitcnt vmcnt(0)")
        if not special:
            compute_prog(a, cfg, prog, None)
        else:
            for wv in range(1, 4):
                a(f"s_cmp_eq_u32 s{S_WAVE}, {wv}\ns_cbranch_scc1 L_sp{wv}_go")
            for wv in range(4): compute_prog(a, cfg, prog, wv)
    finish(a, cfg)
    a("L_end:\ns_endpgm")
    a(f""".section .rodata,"a"
.p2align 6
.amdhsa_kernel {KNAME}
  .amdhsa_next_free_vgpr 256
  .amdhsa_next_free_sgpr 102
  .amdhsa_accum_offset 256
  .amdhsa_group_segment_fixed_size 0
  .amdhsa_kernarg_size 72
  .amdhsa_user_sgpr_count 2
  .amdhsa_user_sgpr_kernarg_segment_ptr 1
  .amdhsa_system_sgpr_workgroup_id_x 1
  .amdhsa_float_denorm_mode_32 3
.end_amdhsa_kernel""")
    return a.text() + '\n'

if __name__ == '__main__':
    ap = argparse.ArgumentParser()
    ap.add_argument('-o', default='k.s')
    ap.add_argument('opts', nargs='*')
    args = ap.parse_args()
    kw = {}
    for o in args.opts:
        k, v = o.split('=', 1)
        try: v = eval(v)
        except Exception: pass
        kw[k] = v
    open(args.o, 'w').write(gen(Cfg(**kw)))
```

```python
import sys, argparse, re

KNAME = "standalone__batchnorm__sampling_kernel"
ROWB = 1152
BATB = 9216
TAPB = 663552
XBYTES = 9437184
WBYTES = 1990656
NLOG2E = 0xbfb8aa3b

class Cfg:
    def __init__(self, **kw):
        self.stamps = False
        self.dbgwg = -1
        self.echo = None
        self.itrace = False
        self.xflags = ''
        self.wflags = ''
        self.stflags = 'sc1'
        self.p1 = True
        self.rd_span = 36
        self.pre = 'W0 X0 W1 X1 | W2 W3 X2 | P'
        self.pre_sp = 'W0 X0 W1 X1a'
        self.cpf = True
        self.wpf = True
        self.xspf = True
        self.merge = True
        self.lead = 2
        self.budget = 8
        self.upd_late = True
        self.dpf = 0
        self.lpf = False
        self.post2 = ''
        self.barpos = 1
        self.salu_in = True
        self.sched = 'deep'
        self.sched_sp = 'jit'
        self.late = {}
        self.late_sp = {}
        self.verbose = False
        self.xrot = True
        self.wrot = True
        self.epk = 5
        self.pkcost = 4
        self.epk_sp = 3
        self.cvtcost = 4
        self.stlast = None
        self.cpfg = 8
        self.cpfn = 52
        self.aged = 10
        self.full = True
        self.barv = 72
        self.barw = 24
        self.rw = (5, 6)
        self.lookf = 30
        self.npre = 12
        self.maxld = 1
        self.urgent = 10
        self.qpf = False
        self.qlate = {}
        self.deep = True
        self.lead4 = 4
        self.bar16 = 20
        self.budget4 = 8
        self.look = 28
        self.xsplit = False
        self.__dict__.update(kw)

class A:
    def __init__(self): self.L = []
    def __call__(self, s):
        for l in s.split('\n'):
            l = l.strip()
            if l: self.L.append(l)
    def text(self):
        return '\n'.join((l if l.endswith(':') or l.startswith('.') or l.startswith(';') else '    ' + l) for l in self.L)

V_XA = 2
V_Q = [3, 4, 5]
V_WA = [6, 7]
V_OM, V_OE = 8, 9
V_PA, V_PE = 10, 11
SETB = [16, 84]
def XF(s, p): return SETB[s] + 4 * p
def EF(s, t): return SETB[s] + 32 + 4 * t
def WF(s, c, t): return SETB[s] + 44 + 4 * (3 * c + t)
ACC = 152
def TILE(p, c): return ACC + 4 * (2 * p + c)
PS = 224
def P_S(c): return PS + 4 * c
def P_B(c): return PS + 8 + 4 * c
PE_S, PE_B = 240, 244
TMPE = 248
RR = 12
def r4(b): return f"v[{b}:{b+3}]"
def r2(b): return f"v[{b}:{b+1}]"

S_X, S_W, S_O = 20, 24, 28
S_WAVE = 33
S_M, S_T, S_R, S_LINE, S_B0 = 36, 37, 38, 39, 40
S_TMP = 41
S_OM, S_OM2, S_OE = 48, 49, 50
S_DX, S_DW = 51, 52
S_CNT = 53
S_XOFF = 54
S_XBP = 55
S_C = 56
S_ST = 76
sXm, sXq, sW, mXm, mXq, mW, sE, mE = 62, 63, 64, 65, 66, 67, 68, 69

XR_S = [44, 45, 46, 47, 48, 49, 50, 51]
XR_M = [52, 53, 54, 55, 58, 59, 60, 61]
WR_S = [74, 75, 92]
WR_M = [93, 100, 101]

class Prog:
    def __init__(self, special, full=False):
        self.special = special
        self.full = full and not special
        if not special:
            self.XB = 37632; self.WB0 = 3 * 37632; self.WS = 12288
            self.TB = self.WB0 + 4 * self.WS
            self.XMB, self.XBT, self.QB0, self.QB = (16384, 49152, 98304, 4864) if full else (37632, 16384, 32768, 37632)
        else:
            self.XB = 16384; self.WB0 = 3 * 16384; self.WS = 27648
            self.TB = self.WB0 + 4 * self.WS + 1024
        self.name = 'sp' if special else 'pu'

def interleave(main, fill, span):
    out = []; m = len(fill); j = 0
    for i, x in enumerate(main):
        out.append(x)
        if i < span:
            tgt = ((i + 1) * m + span - 1) // span
            while j < min(tgt, m):
                out.append(fill[j]); j += 1
    out += fill[j:]
    return out

def mfma_pair(prog, s, p, wv):
    out = []
    def chain(tile, items):
        for (a_, b_) in items:
            out.append(f"v_mfma_f32_16x16x32_bf16 {r4(tile)}, {r4(a_)}, {r4(b_)}, {r4(tile)}")
    if p < 8:
        for c in range(2):
            taps = [t for t in range(3) if 0 <= p + t - 1 < 8]
            if c == 1: taps = taps[::-1]
            chain(TILE(p, c), [(WF(s, c, t), XF(s, p + t - 1)) for t in taps])
    elif not prog.special:
        for c in range(2):
            taps = [0, 1, 2] if c == 0 else [2, 1, 0]
            chain(TILE(8, c), [(WF(s, c, t), EF(s, t)) for t in taps])
    else:
        for i in range(2):
            q = 2 * wv + i
            taps = [t for t in range(3) if 0 <= q + t - 1 < 8]
            if i == 1: taps = taps[::-1]
            chain(TILE(8, i), [(EF(s, t), XF(s, q + t - 1)) for t in taps])
    return out

def mfma_list(prog, s, wv):
    return [m for p in range(9) for m in mfma_pair(prog, s, p, wv)]

def read_list(prog, s, ring):
    rd = []
    wo = ring * prog.WS
    def wr(c, t):
        d = WF(s, c, t)
        rd.append(f"ds_read_b64_tr_b16 {r2(d)}, v{V_WA[c]} offset:{wo + t * 4096}")
        rd.append(f"ds_read_b64_tr_b16 {r2(d + 2)}, v{V_WA[c]} offset:{wo + t * 4096 + 512}")
    def xr(p): rd.append(f"ds_read_b128 {r4(XF(s, p))}, v{V_XA} offset:{p * 2048}")
    wr(0, 1); xr(0); wr(0, 2); xr(1); wr(1, 2); wr(1, 1); wr(0, 0); xr(2); wr(1, 0)
    for p in range(3, 8): xr(p)
    for t in range(3):
        d = EF(s, t)
        if not prog.special:
            rd.append(f"ds_read_b128 {r4(d)}, v{V_Q[t]}")
        else:
            rd.append(f"ds_read_b64_tr_b16 {r2(d)}, v{V_Q[0]} offset:{wo + t * 1024}")
            rd.append(f"ds_read_b64_tr_b16 {r2(d + 2)}, v{V_Q[1]} offset:{wo + t * 1024}")
    return rd

def param_reads(prog):
    rd = []
    for c in range(2):
        rd.append(f"ds_read_b128 {r4(P_S(c))}, v{V_PA} offset:{64 * c}")
        rd.append(f"ds_read_b128 {r4(P_B(c))}, v{V_PA} offset:{64 * c + 256}")
    if prog.special:
        rd.append(f"ds_read_b128 {r4(PE_S)}, v{V_PE}")
        rd.append(f"ds_read_b128 {r4(PE_B)}, v{V_PE} offset:256")
    return rd

def addr_updates(prog, stage_change):
    up = []
    d = f"s{S_DX}" if stage_change else "0"
    up.append(f"v_xad_u32 v{V_XA}, v{V_XA}, 64, {d}")
    if not prog.special:
        for t in range(3): up.append(f"v_xad_u32 v{V_Q[t]}, v{V_Q[t]}, 64, {d}")
    if stage_change:
        for c in range(2): up.append(f"v_add_u32 v{V_WA[c]}, s{S_DW}, v{V_WA[c]}")
        if prog.special:
            for h in range(2): up.append(f"v_add_u32 v{V_Q[h]}, s{S_DW}, v{V_Q[h]}")
    return up

def stamp(a, cfg, i):
    if cfg.echo is not None:
        if i == 0: a("s_memrealtime s[76:77]")
        if i == cfg.echo[0]: a("s_memrealtime s[78:79]")
    if cfg.stamps:
        a(f"s_memtime s[{S_ST + 4 + 2 * i}:{S_ST + 5 + 2 * i}]")

def epi_ops(p, prog, cfg):
    ops = []
    R = RR if p == 0 else TILE(p - 1, 0)
    def pars(c):
        if p == 8 and prog.special: return PE_S, PE_B
        return P_S(c), P_B(c)
    T = [TILE(p, 0), TILE(p, 1)]
    e = [TMPE, TMPE + 4]
    def fma(c):
        ps, pb = pars(c)
        return [(f"v_fma_f32 v{T[c] + i}, v{T[c] + i}, v{ps + i}, v{pb + i}", 4) for i in range(4)]
    def exp(c): return [(f"v_exp_f32 v{e[c] + i}, v{T[c] + i}", 8) for i in range(4)]
    def fmu(c): return [(f"v_fma_f32 v{e[c] + i}, v{e[c] + i}, s{S_C}, s{S_C}", 4) for i in range(4)]
    def rcp(c): return [(f"v_rcp_f32 v{e[c] + i}, v{e[c] + i}", 8) for i in range(4)]
    def mul(c): return [(f"v_mul_f32 v{T[c] + i}, v{T[c] + i}, v{e[c] + i}", 4) for i in range(4)]
    def cvt(c): return [(f"v_cvt_pk_bf16_f32 v{R + 2 * c + i}, v{T[c] + 2 * i}, v{T[c] + 2 * i + 1}", cfg.cvtcost) for i in range(2)]
    if p >= (cfg.epk_sp if prog.special or not cfg.deep else cfg.epk):
        k = cfg.pkcost
        def fma(c):
            ps, pb = pars(c)
            return [(f"v_pk_fma_f32 {r2(T[c] + i)}, {r2(T[c] + i)}, {r2(ps + i)}, {r2(pb + i)}", k) for i in (0, 2)]
        def fmu(c): return [(f"v_pk_fma_f32 {r2(e[c] + i)}, {r2(e[c] + i)}, s[{S_C}:{S_C + 1}], s[{S_C}:{S_C + 1}]", k) for i in (0, 2)]
        def mul(c): return [(f"v_pk_mul_f32 {r2(T[c] + i)}, {r2(T[c] + i)}, {r2(e[c] + i)}", k) for i in (0, 2)]
    ops += fma(0) + exp(0) + fma(1) + exp(1) + fmu(0) + rcp(0) + fmu(1) + rcp(1) + mul(0) + cvt(0) + mul(1) + cvt(1)
    stf = cfg.stflags if cfg.stlast is None or p < cfg.stlast[0] else cfg.stlast[1]
    tail = [(f"v_permlane16_swap_b32 v{R}, v{R + 2}", 4), (f"v_permlane16_swap_b32 v{R + 1}, v{R + 3}", 4)]
    if p < 4: st = f"buffer_store_dwordx4 {r4(R)}, v{V_OM}, s[{S_O}:{S_O + 3}], s{S_OM} offen offset:{p * ROWB} {stf}"
    elif p < 8: st = f"buffer_store_dwordx4 {r4(R)}, v{V_OM}, s[{S_O}:{S_O + 3}], s{S_OM2} offen offset:{(p - 4) * ROWB} {stf}"
    else: st = f"buffer_store_dwordx4 {r4(R)}, v{V_OE}, s[{S_O}:{S_O + 3}], s{S_OE} offen {stf}"
    tail.append((st, 4))
    return ops, tail

def epi_stream(prog, cfg):
    out = []
    pend = []
    for p in range(9):
        ops, tail = epi_ops(p, prog, cfg)
        out.append(ops[:2] + pend + ops[2:])
        pend = tail
    out[-1] += [("s_nop 1", 8)] + pend
    return out

def regs_of(tok):
    m = re.fullmatch(r'v\[(\d+):(\d+)\]', tok)
    if m: return set(range(int(m.group(1)), int(m.group(2)) + 1))
    m = re.fullmatch(r'v(\d+)', tok)
    if m: return {int(m.group(1))}
    return set()


class Sched:
    def __init__(self, cfg, prog):
        self.cfg, self.prog = cfg, prog
        self.out = []
        self.reg = {}
        self.free = []
        self.nds = 0
        self.done = 0
        self.ldpos = {}
        self.report = []
        self.nm = 0
        self.dsat = []
    def emit(self, x):
        self.out.append(x)
        if x.startswith('ds_'): self.nds += 1; self.dsat.append(self.nm)
        if x.startswith('v_mfma'): self.nm += 1
    def need(self, keys):
        k = max([self.ldpos.get(x, 0) for x in keys] + [0])
        if k > self.done:
            k = max(k, sum(1 for m_ in self.dsat if m_ <= self.nm - self.cfg.aged))
            n = min(self.nds - k, 15)
            self.emit(f"s_waitcnt lgkmcnt({n})")
            self.done = self.nds - n
    def run(self, mf, loads, bars, pre, epi, budget, look, czero=False, fixed=None, release=None, stampf=None, retire=None):
        cfg = self.cfg
        first, last = {}, {}
        for i, m in enumerate(mf):
            for k in (m[1], m[2]):
                first.setdefault(k, i); last[k] = i
        lastm = {}
        for i, m in enumerate(mf):
            if m[4]: lastm[m[3]] = i
        pos_last = {}
        st = dict(ld=0, sub=[], key=None, ep=0, ei=0)
        seen = set()
        cur = [-1]
        def try_load(i):
            if not st['sub']:
                if st['ld'] >= len(loads): return False
                key, mingap, fn = loads[st['ld']][:3]
                due = first.get(key, 0) - look
                if len(loads[st['ld']]) > 3: due = min(due, loads[st['ld']][3])
                if i < mingap or i < due: return False
                if fixed and key in fixed: r = fixed[key]
                elif not self.free: return False
                else: r = self.free.pop(0)
                self.reg[key] = r; st['sub'] = list(fn(r)); st['key'] = key; st['ld'] += 1
                self.report.append((key, first.get(key, 0) - i))
            self.emit(st['sub'].pop(0))
            if not st['sub']: self.ldpos[st['key']] = self.nds
            return True
        def emit_epi(b, final=False):
            spent = 0
            while epi and st['ep'] < len(epi) and (final or spent < b):
                p = st['ep']
                if p not in pos_last: break
                if st['ei'] == 0:
                    if retire:
                        live = {self.reg[k] for k in self.reg if last.get(k, -1) > cur[0]}
                        assert not (live & set(retire[1])), 'temporaries still hold fragments'
                    dist = len(self.out) - pos_last[p] - 1
                    if dist < 8:
                        if not final: break
                        self.emit(f"s_nop {8 - dist - 1}")
                    if any(l[0][0] == 'P' and l[0] not in self.ldpos for l in loads):
                        assert not final
                        break
                    self.need([k for k in self.ldpos if k[0] == 'P'])
                txt, cost, frees = epi[p][st['ei']]
                self.emit(txt); spent += cost
                self.free += frees
                st['ei'] += 1
                if st['ei'] == len(epi[p]): st['ep'] += 1; st['ei'] = 0
            return spent
        while try_load(-1): pass
        for i, (tile, ak, bk, pair, final) in enumerate(mf):
            while ak not in self.reg or bk not in self.reg or st['key'] in (ak, bk) and st['sub']:
                assert try_load(10 ** 6 if False else max(i, 0)) or (_ for _ in ()).throw(AssertionError(('no register / not allowed', ak, bk, i)))
            cur[0] = i
            self.need([ak, bk])
            c = '0' if czero and tile not in seen else r4(tile)
            seen.add(tile)
            self.emit(f"v_mfma_f32_16x16x32_bf16 {r4(tile)}, {r4(self.reg[ak])}, {r4(self.reg[bk])}, {c}")
            if lastm.get(pair) == i: pos_last[pair] = len(self.out) - 1
            if release:
                for k in (ak, bk):
                    if last[k] == i: self.free.append(self.reg[k])
            if retire and i >= retire[0]:
                self.free = [r for r in self.free if r not in retire[1]]
            if i in bars:
                b = bars[i]
                if isinstance(b, tuple):
                    for k in b[0]: assert k in self.ldpos, ('not read before the barrier', k, i)
                    self.need(b[0]); b = b[1]
                self.emit(b)
            spent = 0
            for x in pre.get(i, []): self.emit(x); spent += 4
            nl = 0
            while spent < 8 and try_load(i):
                spent += 4; nl += 1
                nk = st['key'] if st['sub'] else (loads[st['ld']][0] if st['ld'] < len(loads) else None)
                if nl >= cfg.maxld and first.get(nk, 10 ** 6) - i > cfg.urgent: break
            if spent < budget: emit_epi(budget - spent)
        while try_load(10 ** 6): pass
        if stampf: stampf(self)
        emit_epi(0, True)

def group(prog, wv, steps, p, final, zig=True):
    out = []
    for c in range(2):
        if p < 8: items = [(('W', s, c, t), ('X', s, p + t - 1)) for t in range(3) if 0 <= p + t - 1 < 8 for s in steps]
        elif not prog.special: items = [(('W', s, c, t), ('E', s, t)) for t in range(3) for s in steps]
        else:
            q = 2 * wv + c
            items = [(('E', s, t), ('X', s, q + t - 1)) for t in range(3) if 0 <= q + t - 1 < 8 for s in steps]
        if zig and c == 1: items = items[::-1]
        out += [(TILE(p, c), ak, bk, p, final) for ak, bk in items]
    return out

def set_regs(s, step):
    d = {}
    for p in range(8): d[('X', step, p)] = XF(s, p)
    for t in range(3): d[('E', step, t)] = EF(s, t)
    for c in range(2):
        for t in range(3): d[('W', step, c, t)] = WF(s, c, t)
    return d

def key_order(step):
    k = [('W', step, 0, 1), ('X', step, 0), ('W', step, 0, 2), ('X', step, 1), ('W', step, 1, 2), ('W', step, 1, 1),
         ('W', step, 0, 0), ('X', step, 2), ('W', step, 1, 0)]
    return k + [('X', step, p) for p in range(3, 8)] + [('E', step, t) for t in range(3)]

def ld_fn(prog, key, xa, xoff, wa, woff, qa):
    if key[0] == 'X': return lambda r: [f"ds_read_b128 {r4(r)}, v{xa} offset:{xoff + key[2] * 2048}"]
    if key[0] == 'W':
        o = woff + key[3] * 4096
        return lambda r: [f"ds_read_b64_tr_b16 {r2(r)}, v{wa[key[2]]} offset:{o}", f"ds_read_b64_tr_b16 {r2(r + 2)}, v{wa[key[2]]} offset:{o + 512}"]
    if not prog.special: return lambda r: [f"ds_read_b128 {r4(r)}, v{qa[key[2]]} offset:{xoff}"]
    o = woff + key[2] * 1024
    return lambda r: [f"ds_read_b64_tr_b16 {r2(r)}, v{qa[0]} offset:{o}", f"ds_read_b64_tr_b16 {r2(r + 2)}, v{qa[1]} offset:{o}"]

def param_loads(prog, mingap):
    l, fx = [], {}
    for n_, txt in enumerate(param_reads(prog)):
        l.append((('P', n_), mingap, (lambda t: (lambda r: [t]))(txt))); fx[('P', n_)] = 0
    return l, fx

def epi3(prog, cfg):
    out = []
    for p, l in enumerate(epi_stream(prog, cfg)):
        out.append([(t, c, []) for t, c in l])
    for p in range(9):
        l = out[p]
        k = max(i for i, x in enumerate(l) if x[0].startswith('v_cvt') )
        if p < 8: l[k] = (l[k][0], l[k][1], [TILE(p, 1)])
        if p >= 2:
            k = min(i for i, x in enumerate(l) if x[0].startswith('buffer_store'))
            if k + 2 < len(l): l[k + 2] = (l[k + 2][0], l[k + 2][1], l[k + 2][2] + [TILE(p - 2, 0)])
    return out

def compute_full(a, cfg, prog):
    XA = [V_XA, 1]; Q = [V_Q, [11, 12, 13]]
    a("L_pu_go:")
    a(f"v_xor_b32 v{XA[1]}, 64, v{XA[0]}")
    for t in range(3): a(f"v_xor_b32 v{Q[1][t]}, 64, v{Q[0][t]}")
    stamp(a, cfg, 1)
    a("s_barrier")
    stamp(a, cfg, 2)
    mf, start = [], {}
    for t in range(7):
        start[t] = len(mf)
        for p in range(9): mf += group(prog, None, [2 * t, 2 * t + 1], p, False, zig=False)
    start[7] = nb = len(mf)
    A_, B_ = [14, 15], [16, 17]
    order = [(A_, p) for p in range(cfg.lead4)]
    for p in range(9):
        order.append((B_, p))
        if p + cfg.lead4 < 9: order.append((A_, p + cfg.lead4))
    for st_, p in order: mf += group(prog, None, st_, p, st_ is B_, zig=False)
    firstuse = {}
    for i, m in enumerate(mf):
        for k in (m[1], m[2]): firstuse.setdefault(k, i)
    vis = {0: -1}
    for t in range(1, 8): vis[t] = start[t - 1] + cfg.barv
    vis[8] = nb + cfg.bar16
    bars = {}
    for t in range(1, 9):
        rel = [k for k in firstuse if k[1] >> 1 == t - 1] if t <= 6 else [k for k in firstuse if k[1] >> 1 == t - 1 and k[0] == 'W' and t == 7 and 6 not in cfg.rw]
        bars[vis[t]] = (rel, "s_barrier")
    for t in cfg.rw:
        bars[start[t] + cfg.barw] = ([k for k in firstuse if k[0] == 'W' and k[1] >> 1 == t], "s_barrier")
    keys = sorted(firstuse, key=lambda k: firstuse[k])
    loads = []
    for n_, k in enumerate(keys):
        t = k[1] >> 1
        if k[0] == 'X': fn = ld_fn(prog, k, XA[k[1] & 1], (t % 3) * prog.XMB, None, 0, None)
        elif k[0] == 'W': fn = ld_fn(prog, k, None, 0, V_WA, (k[1] & 3) * prog.WS, None)
        else: fn = ld_fn(prog, k, None, (t % 3) * prog.QB, None, 0, Q[k[1] & 1])
        latest = vis[t + 1] - 10 if t <= 6 else 10 ** 6
        if k[0] == 'W' and t in cfg.rw: latest = min(latest, start[t] + cfg.barw - 10)
        mg = vis[t] if t or n_ < cfg.npre else 0
        loads.append((k, mg, fn, latest))
    for i in range(len(loads) - 2, -1, -1):
        if loads[i][3] > loads[i + 1][3] : loads[i] = loads[i][:3] + (loads[i + 1][3],)
    pl, fx = param_loads(prog, 0)
    lastw = max(i for i, l in enumerate(loads) if l[0][0] == 'W' and l[0][1] < 16)
    loads = loads[:lastw + 1] + pl + loads[lastw + 1:]
    sc = Sched(cfg, prog)
    sc.free = [16 + 4 * i for i in range(34)] + [PE_S, PE_B]
    marks = {nb - 1: None}
    def st4(sc_):
        t_ = A(); stamp(t_, cfg, 4); sc_.out += t_.L
    t_ = A(); stamp(t_, cfg, 3)
    global RR
    RR = PE_S
    sc.free.remove(PE_S); sc.free.append(TMPE); sc.free.append(TMPE + 4)
    sc.hold = {PE_S}
    sc.run(mf, loads, bars, {nb - 1: t_.L}, epi3(prog, cfg), cfg.budget4, cfg.lookf, czero=True, fixed=fx, release=True, stampf=st4, retire=(vis[7], [TMPE, TMPE + 4]))
    RR = 12
    if cfg.verbose: print('pu load distance', sorted([r for r in sc.report if r[0][0] in 'XWE'], key=lambda z: z[1])[:16], file=sys.stderr)
    for x in sc.out: a(x)
    a("s_branch L_fin")

def compute_prog(a, cfg, prog, wv):
    if prog.full: return compute_full(a, cfg, prog)
    n = prog.name + ('' if wv is None else str(wv))
    p2 = prog.special or not cfg.p1
    XB, WS = prog.XB, prog.WS
    a(f"L_{n}_go:")
    stamp(a, cfg, 1)
    a("s_barrier")
    stamp(a, cfg, 2)
    deep = cfg.deep and not prog.special
    iters = 6 if deep else 7
    a(f"s_mov_b32 s{S_CNT}, {iters}\ns_mov_b32 s{S_XOFF}, 1\ns_mov_b32 s{S_DW}, {2 * WS}\ns_mov_b32 s{S_XBP}, {XB}\ns_mov_b32 s{S_DX}, {XB}")
    top = [f"s_cmp_eq_u32 s{S_XOFF}, 2",
           f"s_cselect_b32 s{S_DX}, {(-2 * XB) & 0xffffffff}, s{S_XBP}",
           f"s_cselect_b32 s{S_XOFF}, -1, s{S_XOFF}",
           f"s_add_u32 s{S_XOFF}, s{S_XOFF}, 1",
           f"s_sub_u32 s{S_DW}, 0, s{S_DW}"]
    bot = [f"s_sub_u32 s{S_CNT}, s{S_CNT}, 1", f"s_cmp_lg_u32 s{S_CNT}, 0"]
    sc = Sched(cfg, prog)
    mf = [m for p in range(9) for m in group(prog, wv, [0], p, False)]
    fx = set_regs(0, 0); fx.update(set_regs(1, 1))
    nq = 0 if prog.special else 3
    g1 = 4
    loads = [(k, -1, ld_fn(prog, k, V_XA, 0, V_WA, 0, V_Q)) for k in key_order(0)]
    ko = key_order(1)
    span = cfg.rd_span + 4 - g1
    loads += [(k, g1 + (i * span) // len(ko), ld_fn(prog, k, V_XA, 0, V_WA, WS, V_Q)) for i, k in enumerate(ko)]
    pre = {}
    for i, x in enumerate(addr_updates(prog, False)): pre.setdefault(i // 2, []).append(x)
    for i, x in enumerate(addr_updates(prog, True) + top): pre.setdefault(cfg.rd_span + 5 + i // 2, []).append(x)
    sc.run(mf, loads, {g1 - 1: "s_waitcnt lgkmcnt(0)\ns_barrier"} if p2 else {}, pre, None, 0, 10 ** 6, czero=True, fixed=fx)
    for x in sc.out: a(x)
    a(f"L_{n}_loop:")
    def step(s, bar, salu):
        a("s_waitcnt lgkmcnt(0)")
        m = mfma_list(prog, s, wv)
        if bar:
            for x in m[:cfg.barpos]: a(x)
            m = m[cfg.barpos:]
            a("s_barrier")
        fill = read_list(prog, 1 - s, 1 - s)
        for x in interleave(m[:cfg.rd_span], fill, cfg.rd_span) + interleave(m[cfg.rd_span:], addr_updates(prog, s == 0) + salu, 8): a(x)
    step(1, True, [])
    step(0, p2, top + bot)
    a(f"s_cbranch_scc1 L_{n}_loop")
    stamp(a, cfg, 3)
    a("s_waitcnt lgkmcnt(0)")
    sc = Sched(cfg, prog)
    s0 = 2 * iters + 1
    sc.reg.update(set_regs(1, s0))
    sc.free = [SETB[0] + 4 * i for i in range(17)]
    if not prog.special: sc.free += [PE_S, PE_B]
    mf = [m for p in range(9) for m in group(prog, wv, [s0], p, False)]
    nb = len(mf)
    bars = {cfg.barpos - 1: "s_barrier"}
    pre = {}
    XA1 = 1
    pre[0] = [f"v_xor_b32 v{XA1}, 64, v{V_XA}"]
    if deep:
        A_, B_ = [14, 15], [16, 17]
        ld = cfg.lead4
        order = [(A_, p) for p in range(ld)]
        for p in range(9):
            order.append((B_, p))
            if p + ld < 9: order.append((A_, p + ld))
        for st_, p in order: mf += group(prog, wv, st_, p, st_ is B_, zig=False)
        gb = nb + cfg.bar16
        bars[gb] = "s_barrier"
        if p2: bars[nb // 2] = "s_barrier"; bars[gb + 8] = "s_barrier"
        pre[1] = [f"v_subrev_u32 v{V_WA[c]}, {2 * WS}, v{V_WA[c]}" for c in range(2)]
        Q1 = [V_WA[0], V_WA[1], V_PA]
        def mk(k):
            s_ = k[1]
            mg = 2 if s_ < 16 else gb
            if p2 and s_ == 15: mg = nb // 2
            if p2 and s_ == 17: mg = gb + 8
            return (k, mg, ld_fn(prog, k, XA1 if s_ & 1 else V_XA, ((s_ >> 1) - 7) * XB, V_WA, (s_ & 3) * WS, Q1 if s_ & 1 else V_Q))
        firstuse = {}
        for i, m in enumerate(mf):
            for k in (m[1], m[2]): firstuse.setdefault(k, i)
        keys = sorted([k for k in firstuse if k[1] != s0], key=lambda k: firstuse[k])
        wk = [k for k in keys if k[0] == 'W' and k[1] >= 16]
        lastw = keys.index(wk[-1])
        pl, fx = param_loads(prog, 2)
        loads = [mk(k) for k in keys[:lastw + 1]] + pl
        loads.append((('Z', 0), 0, lambda r: [f"v_xor_b32 v{Q1[t]}, 64, v{V_Q[t]}" for t in range(3)])); fx[('Z', 0)] = 0
        loads += [mk(k) for k in keys[lastw + 1:]]
    else:
        order = [([16], p) for p in range(cfg.lead)]
        for p in range(9):
            order.append(([17], p))
            if p + cfg.lead < 9: order.append(([16], p + cfg.lead))
        for st_, p in order: mf += group(prog, wv, st_, p, st_ == [17])
        if p2: bars[nb] = "s_barrier"
        Q1 = [V_PE, XA1 + 0, 0]
        k16, k17 = key_order(16), key_order(17)
        loads = [(k, 2 + (i * cfg.rd_span) // len(k16), ld_fn(prog, k, V_XA, 0, V_WA, 0, V_Q)) for i, k in enumerate(k16)]
        pl, fx = param_loads(prog, 2)
        if not prog.special:
            loads.append((('Z', 0), 0, lambda r: [f"v_xor_b32 v{V_Q[t]}, 64, v{V_Q[t]}" for t in range(3)])); fx[('Z', 0)] = 0
        loads += [(k, nb, ld_fn(prog, k, XA1, 0, V_WA, WS, V_Q)) for k in k17] + pl
    def st4(sc_):
        t_ = A(); stamp(t_, cfg, 4); sc_.out += t_.L
    sc.run(mf, loads, bars, pre, epi3(prog, cfg), cfg.budget4 if deep else cfg.budget, cfg.look if deep else 10 ** 6, fixed=fx, release=True, stampf=st4)
    if cfg.verbose: print(n, 'load distance', sorted(sc.report, key=lambda z: z[1])[:12], file=sys.stderr)
    for x in sc.out: a(x)
    a(f"s_branch L_fin")

def finish(a, cfg):
    a("L_fin:")
    stamp(a, cfg, 5)
    if cfg.echo is not None:
        a("s_waitcnt vmcnt(0)")
        stamp(a, cfg, 6)
        a("s_memrealtime s[80:81]\ns_waitcnt lgkmcnt(0)")
        a(f"s_sub_u32 s78, s78, s76\ns_mul_i32 s78, s78, {cfg.echo[1]}")
        if len(cfg.echo) > 2:
            a(f"s_cmp_eq_u32 s2, {cfg.echo[2]}\ns_cselect_b32 s78, s78, 0")
        a(f"L_echo:\ns_memrealtime s[82:83]\ns_waitcnt lgkmcnt(0)\ns_sub_u32 s82, s82, s80\ns_cmp_lt_u32 s82, s78\ns_cbranch_scc1 L_echo")
    if cfg.stamps:
        a("s_waitcnt vmcnt(0)")
        stamp(a, cfg, 6)
        a(f"s_cmp_lg_u32 s{S_WAVE}, 0\ns_cbranch_scc1 L_end")
        a(f"s_memrealtime s[{S_ST + 2}:{S_ST + 3}]")
        a("s_load_dwordx2 s[4:5], s[0:1], 64\ns_waitcnt lgkmcnt(0)")
        a(f"v_mov_b32 v16, s{S_ST}\nv_mov_b32 v17, s{S_ST + 1}\nv_mov_b32 v18, s{S_ST + 2}\nv_mov_b32 v19, s{S_ST + 3}")
        for i in range(1, 7):
            a(f"s_sub_u32 s{S_TMP}, s{S_ST + 4 + 2 * i}, s{S_ST + 4}\nv_mov_b32 v{18 + 2 * i}, s{S_TMP}\nv_mov_b32 v{19 + 2 * i}, 0")
        a(f"s_mul_i32 s{S_TMP}, s2, 64\nv_mov_b32 v32, s{S_TMP}")
        a("v_cmp_eq_u32 vcc, 0, v0\ns_and_saveexec_b64 s[6:7], vcc")
        a("global_store_dwordx4 v32, v[16:19], s[4:5]\nglobal_store_dwordx4 v32, v[20:23], s[4:5] offset:16")
        a("global_store_dwordx4 v32, v[24:27], s[4:5] offset:32\nglobal_store_dwordx4 v32, v[28:31], s[4:5] offset:48")

def rot_tables(a, cfg):
    T = S_TMP
    if cfg.qpf:
        a(f"s_lshr_b32 s{T}, s{S_T}, 5\ns_mul_i32 s{T}, s{T}, 3\ns_mul_i32 s{T + 1}, s{S_M}, 7\ns_add_u32 s{T}, s{T}, s{T + 1}\ns_mul_i32 s72, s{T}, {288 * ROWB}")
        a(f"s_lshr_b32 s{T}, s2, 3\ns_lshl_b32 s{T}, s{T}, 2\ns_add_u32 s{T}, s{T}, s{S_WAVE}\ns_sub_u32 s{T}, s{T}, 4\ns_mul_i32 s{T}, s{T}, {9 * ROWB}\ns_add_u32 s72, s72, s{T}")
        a(f"v_min_u32 v17, 8, v0\nv_mul_u32_u24 v17, {ROWB}, v17")
    if cfg.wrot:
        a(f"s_mul_i32 s{T}, s{S_R}, 43\ns_lshr_b32 s{T}, s{T}, 7\ns_mul_i32 s{T}, s{T}, 3\ns_sub_u32 s{T}, s{S_R}, s{T}")
        for k in range(3):
            if k: a(f"s_add_u32 s{T}, s{T}, 1\ns_cmp_eq_u32 s{T}, 3\ns_cselect_b32 s{T}, 0, s{T}")
            a(f"s_mul_i32 s{T + 1}, s{T}, {TAPB}\ns_add_u32 s{WR_S[k]}, s{sW}, s{T + 1}\ns_lshl_b32 s{T + 1}, s{T}, 12\ns_add_u32 s{WR_M[k]}, s{mW}, s{T + 1}")
    if cfg.xrot:
        for k in range(8):
            a(f"s_add_u32 s{T}, s{S_LINE}, {k}\ns_and_b32 s{T}, s{T}, 7\ns_mul_i32 s{T + 1}, s{T}, {ROWB}\ns_add_u32 s{XR_S[k]}, s{sXm}, s{T + 1}")
            a(f"s_lshl_b32 s{T}, s{T}, 11\ns_add_u32 s{XR_M[k]}, s{mXm}, s{T}")

def loader_full(a, cfg, prog, issue_list, wait_for, lstamp, bn_finish, seq, rot):
    parts = cfg.pre.split('|') + [''] * 12
    given = set(' '.join(parts).split())
    issue_list(parts[0])
    lstamp()
    rot_tables(a, cfg); rot[0] = True
    relw, relx = 3, 2
    def ok(l):
        for it in l.split():
            if it[0] == 'W': assert int(it[1:]) <= relw, it
            if it[0] == 'X': assert int(it.rstrip('ab')[1:]) <= relx, it
        return l
    def auto(items): return ' '.join(i for i in items if i not in given and int(i[1:]) < (18 if i[0] == 'W' else 9))
    for t in range(9):
        need = {('w', 2 * t), ('w', 2 * t + 1), ('x', t)}
        for t_ in need: assert seq.count(t_) == (3 if t_[0] == 'w' else 9), t_
        wait_for(need)
        if t == 3: a("s_waitcnt lgkmcnt(0)")
        lstamp()
        a("s_barrier")
        lstamp()
        l = parts[t + 1] + (' B' if t == 0 and 'B' not in given else '')
        if t >= 1:
            relx = t + 2; relw = max(relw, 2 * t + 3)
            if t - 1 not in cfg.rw: l += ' ' + auto([f"W{2 * t + 2}", f"W{2 * t + 3}"])
            l += ' ' + auto([f"X{t + 2}"])
        l += ' ' + cfg.qlate.get(t, '')
        if cfg.verbose: print('V', t, l, file=sys.stderr)
        issue_list(ok(l))
        if t == 2:
            wait_for({('b', 0)}); bn_finish()
        if t in cfg.rw:
            a("s_barrier")
            relw = 2 * t + 5
            issue_list(ok(auto([f"W{2 * t + 4}", f"W{2 * t + 5}"])))
    assert sum(1 for t in seq if t[0] == 'w') == 54 and sum(1 for t in seq if t[0] == 'x') == 81
    loader_end(a, cfg)

def loader_end(a, cfg):
    if cfg.stamps:
        a(f"s_cmp_lg_u32 s{S_WAVE}, 4\ns_cbranch_scc1 L_end")
        a("s_load_dwordx2 s[4:5], s[0:1], 64\ns_waitcnt lgkmcnt(0)")
        a(f"s_lshl_b32 s{S_TMP}, s2, 9\ns_add_u32 s{S_TMP}, s{S_TMP}, 0x100000\nv_lshl_add_u32 v41, v0, 2, s{S_TMP}")
        a("global_store_dword v41, v40, s[4:5]")
    a("s_endpgm")

def loader_prog(a, cfg, prog):
    rot = [False]
    xstate = {}
    tmp = 70
    vXm, vXq, vW, vE = 2, 3, 4, 5
    lg = [0]
    def lstamp():
        if cfg.stamps and lg[0] < 64:
            a(f"s_memtime s[94:95]\ns_waitcnt lgkmcnt(0)\ns_sub_u32 s94, s94, s{S_ST + 4}\nv_writelane_b32 v40, s94, {lg[0]}")
            lg[0] += 1
    seq = []
    def dma(v, srd, sbase, soff, mbase, moff, tag):
        a(f"s_add_u32 m0, s{mbase}, {moff}")
        a(f"s_add_u32 s{tmp}, s{sbase}, {soff}")
        a(f"buffer_load_dwordx4 v{v}, s[{srd}:{srd + 3}], s{tmp} offen {cfg.xflags if tag[0] == 'x' else cfg.wflags} lds")
        seq.append(tag)
        if cfg.itrace: lstamp()
    def issue_x(t, part=None):
        buf = (t % 3) * (prog.XB if prog.special else prog.XMB)
        ns = 4 if prog.special else 8
        rng = range(ns) if part is None else (range(ns // 2) if part == 0 else range(ns // 2, ns))
        assert xstate.setdefault(t, rot[0]) == rot[0], "both halves of a stage must use the same order"
        for s in rng:
            if cfg.xrot and rot[0]: dma(vXm, S_X, XR_S[s], t * 128, XR_M[s], buf, ('x', t))
            else: dma(vXm, S_X, sXm, s * ROWB + t * 128, mXm, buf + s * 2048, ('x', t))
        if not prog.special and part != 0:
            dma(vXq, S_X, sXq, t * 128, mXq, (t % 3) * prog.QB, ('x', t))
    def issue_w(j):
        buf = (j & 3) * prog.WS
        for k, tap in enumerate((1, 2, 0)):
            if cfg.wrot and rot[0]:
                dma(vW, S_W, WR_S[k], j * 32 * ROWB, WR_M[k], buf, ('w', j)); continue
            dma(vW, S_W, sW, tap * TAPB + j * 32 * ROWB, mW, buf + tap * 4096, ('w', j))
            if prog.special:
                dma(vW, S_W, sW, tap * TAPB + j * 32 * ROWB + 128, mW, buf + 12288 + tap * 4096, ('w', j))
        if prog.special:
            a(f"s_mul_i32 s{tmp + 1}, s{tmp + 2}, {j & 3}")
            a(f"s_add_u32 m0, s{mE}, s{tmp + 1}")
            a(f"s_add_u32 s{tmp}, s{sE}, {j * 32 * ROWB}")
            a(f"buffer_load_dwordx4 v{vE}, s[{S_W}:{S_W + 3}], s{tmp} offen lds")
            seq.append(('w', j))
    def wait_for(need):
        last = max(i for i, t in enumerate(seq) if t in need)
        a(f"s_waitcnt vmcnt({len(seq) - 1 - last})")
    def bn_loads():
        for i, sp in enumerate((8, 10, 12, 14)):
            a(f"global_load_ushort v{20 + i}, v6, s[{sp}:{sp + 1}]")
            seq.append(('b', 0))
    def bn_finish():
        for i in range(4): a(f"v_lshlrev_b32 v{20 + i}, 16, v{20 + i}")
        a("v_add_f32 v21, 0x3727c5ac, v21")
        a("v_rsq_f32 v21, v21\ns_nop 0")
        a("v_mul_f32 v21, v21, v22")
        a("v_fma_f32 v23, -v20, v21, v23")
        a(f"v_mul_f32 v21, s{S_C}, v21\nv_mul_f32 v23, s{S_C}, v23")
        a("ds_write_b32 v7, v21\nds_write_b32 v7, v23 offset:256")
    p1 = cfg.p1 and not prog.special
    lstamp()
    def extra_pf():
        if cfg.wpf:
            a(f"buffer_load_dword v30, v8, s[{S_W}:{S_W + 3}], 0 offen"); seq.append(('p', 0))
        if cfg.xspf and not prog.special:
            a(f"buffer_load_dword v31, v9, s[{S_X}:{S_X + 3}], 0 offen"); seq.append(('p', 0))
    done = set()
    def issue_list(l):
        for it in l.split():
            if it == 'B': bn_loads()
            elif it == 'P': extra_pf()
            elif it[0] == 'P':
                a(f"s_mul_i32 s{tmp}, s73, {int(it[1:])}")
                a(f"buffer_load_dword v30, v16, s[96:99], s{tmp} offen"); seq.append(('p', 0))
            elif it[0] == 'Q':
                a(f"s_add_u32 s{tmp}, s72, {int(it[1:]) * 128}")
                a(f"buffer_load_dword v30, v17, s[{S_X}:{S_X + 3}], s{tmp} offen"); seq.append(('p', 0))
            elif it[0] == 'W': issue_w(int(it[1:]))
            elif it[-1] in 'ab': issue_x(int(it[1:-1]), 'ab'.index(it[-1]))
            else: issue_x(int(it[1:]))
            done.add(it)
    js = list(range(0, 18, 2) if p1 else range(18))
    if prog.full:
        return loader_full(a, cfg, prog, issue_list, wait_for, lstamp, bn_finish, seq, rot)
    parts = (cfg.pre_sp if prog.special else cfg.pre).split('|')
    parts += [''] * (len(js) + 1 - len(parts))
    mode = cfg.sched_sp if prog.special else cfg.sched
    given = set(' '.join(parts).split())
    def auto(k, it):
        base = it.rstrip('ab')
        if it in given or base in given or (it == base and (base + 'a') in given): return
        n_ = int(base[1:])
        if n_ >= (18 if it[0] == 'W' else 9): return
        parts[k + 1] += ' ' + it
    for k, j in enumerate(js):
        if p1:
            if j >= 2: auto(k, f"W{j + 2}"); auto(k, f"W{j + 3}"); auto(k, f"X{(j >> 1) + 2}")
        elif mode == 'deep':
            if j >= 1:
                auto(k, f"W{j + 3}")
                if j % 2 == 0: auto(k, f"X{(j >> 1) + 2}")
        elif mode == 'split':
            if j >= 1: auto(k, f"W{j + 3}")
            if j >= 2: auto(k, f"X{(j >> 1) + 2}" + 'ab'[j & 1])
        elif mode == 'jit':
            auto(k, f"W{j + 2}")
            auto(k, f"X{(j + 3) >> 1}" + 'ba'[j & 1])
    for k, e in (cfg.late_sp if prog.special else cfg.late).items(): parts[k + 1] += ' ' + e
    if 'B' not in given: parts[1] += ' B'
    for k, pt in enumerate(parts):
        passed = js[k - 1] if k else -1
        for it in pt.split():
            if it[0] == 'W' and int(it[1:]) >= 4: assert passed >= int(it[1:]) - 3, (it, passed)
            if it[0] == 'X' and int(it.rstrip('ab')[1:]) >= 3: assert passed >= 2 * int(it.rstrip('ab')[1:]) - 4, (it, passed)
    if cfg.verbose: print(prog.name, ' | '.join(parts), file=sys.stderr)
    issue_list(parts[0])
    lstamp()
    if not prog.special:
        rot_tables(a, cfg); rot[0] = True
    for k, j in enumerate(js):
        need = {('w', j), ('x', j >> 1)}
        if p1: need.add(('w', j + 1))
        for t_ in need:
            assert seq.count(t_) == ((7 if prog.special else 3) if t_[0] == 'w' else (4 if prog.special else 9)), t_
        wait_for(need)
        if j == 6:
            a("s_waitcnt lgkmcnt(0)")
        lstamp()
        a("s_barrier")
        lstamp()
        issue_list(parts[k + 1])
        if j == 4:
            wait_for({('b', 0)})
            bn_finish()
    assert sum(1 for t in seq if t[0] == 'w') == 18 * (7 if prog.special else 3)
    assert sum(1 for t in seq if t[0] == 'x') == 9 * (4 if prog.special else 9)
    if cfg.stamps:
        a(f"s_cmp_lg_u32 s{S_WAVE}, 4\ns_cbranch_scc1 L_end")
        a("s_load_dwordx2 s[4:5], s[0:1], 64\ns_waitcnt lgkmcnt(0)")
        a(f"s_lshl_b32 s{S_TMP}, s2, 9\ns_add_u32 s{S_TMP}, s{S_TMP}, 0x100000\nv_lshl_add_u32 v41, v0, 2, s{S_TMP}")
        a("global_store_dword v41, v40, s[4:5]")
    a("s_endpgm")

def gen(cfg):
    a = A()
    hdr = open('standalone__batchnorm__sampling.s.ref').read().split('; Override')[0]
    a.L.append(hdr.rstrip())
    a.L.append("; @launch grid=(256,1,1) block=(512,1,1) lds=163840")
    a(f'.amdgcn_target "amdgcn-amd-amdhsa--gfx950"\n.text\n.globl {KNAME}\n.p2align 8\n.type {KNAME},@function\n{KNAME}:')
    if cfg.stamps:
        a(f"s_memrealtime s[{S_ST}:{S_ST + 1}]")
    stamp(a, cfg, 0)
    T = S_TMP
    a("s_cmp_ge_u32 s2, 256\ns_cbranch_scc1 L_end")
    a("s_load_dwordx16 s[4:19], s[0:1], 0")
    a(f"s_lshr_b32 s{T + 1}, s2, 3")
    if cfg.cpf:
        a(f"s_getpc_b64 s[58:59]\nL_pc:")
        a(f"s_and_b32 s{T}, s{T + 1}, {cfg.cpfg - 1}\ns_mul_i32 s{T}, s{T}, {cfg.cpfn * 128}")
        a(f"v_lshl_add_u32 v1, v0, 7, s{T}\nv_min_u32 v1, L_end-L_pc, v1")
        a(f"v_cmp_gt_u32 vcc, {cfg.cpfn}, v0\ns_and_saveexec_b64 s[60:61], vcc\ns_cbranch_execz L_nopf")
        a("global_load_dword v254, v1, s[58:59]")
        a("L_nopf:\ns_mov_b64 exec, s[60:61]")
    a("v_lshrrev_b32 v1, 6, v0\nv_and_b32 v0, 63, v0")
    a(f"s_and_b32 s{T}, s2, 7")
    a(f"v_readfirstlane_b32 s{S_WAVE}, v1")
    a(f"s_lshr_b32 s{S_M}, s{T}, 1\ns_and_b32 s{T}, s{T}, 1\ns_lshl_b32 s{T}, s{T}, 5\ns_add_u32 s{S_T}, s{T}, s{T + 1}")
    a(f"s_mov_b32 s{S_C}, {NLOG2E:#x}\ns_mov_b32 s{S_C + 1}, {NLOG2E:#x}\ns_mov_b32 s34, {ROWB}")
    if cfg.dpf:
        ns = cfg.dpf
        rows = 10
        a(f"s_cmp_ge_u32 s{S_WAVE}, 4\ns_cbranch_scc1 L_nodpf")
        a(f"v_min_u32 v2, {rows * ns - 1}, v0\nv_mul_u32_u24 v3, {(1 << 12) // ns + 1}, v2\nv_lshrrev_b32 v3, 12, v3")
        a(f"v_mul_u32_u24 v4, {ns}, v3\nv_sub_u32 v4, v2, v4")
        a(f"s_mul_i32 s{T + 2}, s{S_WAVE}, {rows}\nv_add_u32 v3, s{T + 2}, v3")
        a(f"s_lshr_b32 s{T + 2}, s{S_T}, 5\ns_mul_i32 s{T + 3}, s{S_M}, 7\ns_mul_i32 s{T + 4}, s{T + 2}, 3\ns_add_u32 s{T + 3}, s{T + 3}, s{T + 4}")
        a(f"s_mul_i32 s{T + 3}, s{T + 3}, 288\ns_mul_i32 s{T + 4}, s{T + 1}, 36\ns_add_u32 s{T + 3}, s{T + 3}, s{T + 4}")
        a(f"s_lshl_b32 s{T + 4}, s{T + 1}, 2\ns_add_u32 s{T + 4}, s{T + 4}, {8064 - 36}")
        a(f"s_cmp_eq_u32 s{T + 2}, 0\ns_cselect_b32 s{T + 5}, 35, 39")
        a(f"v_min_u32 v3, s{T + 5}, v3\nv_add_u32 v5, s{T + 3}, v3\nv_add_u32 v6, s{T + 4}, v3\nv_cmp_gt_u32 vcc, 36, v3")
        a(f"v_lshlrev_b32 v4, 7, v4\ns_mul_i32 s{T + 2}, s{T + 1}, {18 * ns}\nv_cndmask_b32 v5, v6, v5, vcc\nv_mad_u32_u24 v5, v5, s34, v4")
        a(f"v_min_u32 v2, {18 * ns - 1}, v0\nv_add_u32 v2, s{T + 2}, v2\ns_mul_i32 s{T + 2}, s{S_WAVE}, {TAPB}\nv_lshl_add_u32 v2, v2, 7, s{T + 2}")
        a("s_waitcnt lgkmcnt(0)")
        a(f"global_load_dword v252, v5, s[4:5] {cfg.xflags}")
        a(f"s_cmp_eq_u32 s{S_WAVE}, 3\ns_cbranch_scc1 L_nodpf")
        a("global_load_dword v253, v2, s[6:7]")
        a("L_nodpf:")
    a(f"s_cmp_eq_u32 s{S_T}, 63\ns_cbranch_scc1 L_special")
    def srds(which):
        a("s_waitcnt lgkmcnt(0)")
        for srd, p, nb in which:
            a(f"s_mov_b32 s{srd}, s{p}\ns_and_b32 s{srd + 1}, s{p + 1}, 0xffff\ns_mov_b32 s{srd + 2}, {nb}\ns_mov_b32 s{srd + 3}, 0x20000")
    for special in (False, True):
        prog = Prog(special, cfg.full)
        n = prog.name
        if not special:
            a(f"s_mul_i32 s{S_R}, s{S_T}, 57\ns_lshr_b32 s{S_R}, s{S_R}, 9")
            a(f"s_mul_i32 s{T}, s{S_R}, 9\ns_sub_u32 s{S_LINE}, s{S_T}, s{T}")
            a(f"s_mul_i32 s{T}, s{S_M}, 7\ns_add_u32 s{S_R}, s{S_R}, s{T}\ns_mul_i32 s{S_B0}, s{S_R}, {36 * BATB}")
        else:
            a("L_special:")
            a(f"s_lshl_b32 s{S_LINE}, s{S_M}, 1\ns_mov_b32 s{S_B0}, {1008 * BATB}")
        a(f"s_cmp_ge_u32 s{S_WAVE}, 4\ns_cbranch_scc0 L_{n}_comp")
        a(f"s_sub_u32 s{T}, s{S_WAVE}, 4")
        a(f"s_and_b32 s{T + 1}, s{T}, 1\ns_lshr_b32 s{T + 2}, s{T}, 1")
        a("v_lshrrev_b32 v10, 3, v0\nv_and_b32 v11, 7, v0\nv_lshrrev_b32 v12, 1, v10")
        a(f"s_lshl_b32 s{T + 3}, s{T + 1}, 2")
        a(f"v_xor_b32 v11, s{T + 3}, v11")
        a(f"v_and_b32 v13, 2, v10\nv_xor_b32 v13, v13, v11")
        a(f"v_mul_u32_u24 v14, {ROWB}, v10\nv_lshl_add_u32 v4, v13, 4, v14")
        a(f"s_mul_i32 s{sW}, s{T}, {8 * ROWB}\ns_lshl_b32 s{T + 4}, s{S_LINE}, 7\ns_add_u32 s{sW}, s{sW}, s{T + 4}")
        a(f"s_lshl_b32 s{mW}, s{T}, 10\ns_add_u32 s{mW}, s{mW}, {prog.WB0}")
        a(f"v_xor_b32 v13, v12, v11\nv_mul_u32_u24 v15, {BATB}, v10\nv_lshl_add_u32 v2, v13, 4, v15")
        a(f"s_mul_i32 s{sXm}, s{T + 1}, {8 * BATB}\ns_add_u32 s{sXm}, s{sXm}, s{S_B0}")
        a(f"s_lshl_b32 s{mXm}, s{T + 1}, 10")
        if not special:
            a(f"s_mul_i32 s{T + 5}, s{T + 2}, {16 * BATB}\ns_add_u32 s{sXm}, s{sXm}, s{T + 5}")
            a(f"s_mul_i32 s{T + 5}, s{T + 2}, {prog.XBT}\ns_add_u32 s{mXm}, s{mXm}, s{T + 5}")
            a(f"s_mul_i32 s{T + 5}, s{T}, 9\ns_add_u32 s{T + 5}, s{T + 5}, 1")
            a(f"v_add_u32 v13, s{T + 5}, v10\nv_bfe_u32 v13, v13, 1, 3\nv_and_b32 v12, 7, v0\nv_xor_b32 v13, v13, v12\nv_lshl_add_u32 v3, v13, 4, v14")
            a(f"s_lshl_b32 s{mXq}, s{T + 5}, 7\ns_add_u32 s{mXq}, s{mXq}, {prog.QB0}")
            a(f"s_add_u32 s{T + 5}, s{T}, 32\ns_mul_i32 s{T + 5}, s{T + 5}, {BATB}\ns_add_u32 s{sXq}, s{T + 5}, s{S_B0}")
            a(f"v_lshl_add_u32 v6, v0, 1, s{T + 4}")
            a(f"v_lshlrev_b32 v7, 2, v0\nv_add_u32 v7, {prog.TB}, v7")
        else:
            a(f"s_mul_i32 s{T + 5}, s{T + 2}, {4 * ROWB}\ns_add_u32 s{sXm}, s{sXm}, s{T + 5}")
            a(f"s_lshl_b32 s{T + 5}, s{T + 2}, 13\ns_add_u32 s{mXm}, s{mXm}, s{T + 5}")
            a("v_lshrrev_b32 v13, 1, v0\nv_bfe_u32 v14, v0, 4, 1\nv_lshlrev_b32 v14, 2, v14\nv_xor_b32 v13, v13, v14")
            a(f"v_mul_u32_u24 v13, {ROWB}, v13\nv_and_b32 v14, 1, v0\nv_lshl_add_u32 v5, v14, 4, v13")
            a(f"s_mul_i32 s{sE}, s{T}, {TAPB}\ns_lshl_b32 s{T + 5}, s{S_M}, 5\ns_add_u32 s{T + 5}, s{T + 5}, 1024\ns_add_u32 s{sE}, s{sE}, s{T + 5}")
            a(f"s_lshl_b32 s{mE}, s{T}, 10\ns_add_u32 s{mE}, s{mE}, {prog.WB0 + 24576}")
            a(f"s_cmp_eq_u32 s{T}, 3")
            a(f"s_cselect_b32 s{mE}, {prog.WB0 + 4 * prog.WS}, s{mE}")
            a(f"s_cselect_b32 s72, 0, {prog.WS}")
            a(f"s_cselect_b32 s{T + 6}, 0x40000000, 0")
            a(f"v_add_u32 v5, s{T + 6}, v5")
            a(f"s_lshl_b32 s{T + 6}, s{T + 1}, 7\ns_add_u32 s{T + 6}, s{T + 6}, s{T + 4}")
            a(f"s_cmp_ge_u32 s{T}, 2\ns_cselect_b32 s{T + 6}, s{T + 5}, s{T + 6}")
            a(f"v_lshl_add_u32 v6, v0, 1, s{T + 6}\nv_min_u32 v6, 1150, v6")
            a(f"s_min_u32 s{T + 6}, s{T}, 2\ns_lshl_b32 s{T + 6}, s{T + 6}, 9\ns_add_u32 s{T + 6}, s{T + 6}, {prog.TB}")
            a(f"v_lshl_add_u32 v7, v0, 2, s{T + 6}")
        if cfg.wpf:
            a(f"s_mul_i32 s{T + 6}, s2, 61\ns_lshl_b32 s{T + 5}, s{T}, 4\ns_add_u32 s{T + 6}, s{T + 6}, s{T + 5}")
            a(f"v_add_u32 v8, s{T + 6}, v0\nv_lshlrev_b32 v8, 7, v8\nv_cmp_gt_u32 vcc, 16, v0\nv_mov_b32 v13, 0x40000000\nv_cndmask_b32 v8, v13, v8, vcc")
        if cfg.xspf and not special:
            a(f"s_and_b32 s{T + 6}, s{S_T}, 31\ns_mul_i32 s{T + 6}, s{T + 6}, 40\ns_mul_i32 s{T + 5}, s{T}, 10\ns_add_u32 s{T + 6}, s{T + 6}, s{T + 5}")
            a(f"s_add_u32 s{T + 6}, s{T + 6}, {1008 * 72}")
            a(f"v_add_u32 v9, s{T + 6}, v0\nv_lshlrev_b32 v9, 7, v9\nv_cmp_gt_u32 vcc, 10, v0\nv_mov_b32 v13, 0x40000000\nv_cndmask_b32 v9, v13, v9, vcc")
            a(f"s_cmp_lt_u32 s{S_T}, 32\ns_cselect_b32 s{T + 6}, 0x40000000, 0\nv_or_b32 v9, s{T + 6}, v9")
        if cfg.lpf:
            a(f"s_lshr_b32 s74, s2, 3")
            a(f"s_mul_i32 s75, s74, 54\ns_mul_i32 s{T + 5}, s{T + 1}, 27\ns_add_u32 s75, s75, s{T + 5}")
            a(f"v_min_u32 v17, 26, v0\nv_add_u32 v17, s75, v17\nv_mul_u32_u24 v18, 0x71d, v17\nv_lshrrev_b32 v18, 20, v18")
            a(f"v_mul_u32_u24 v18, {TAPB - 576 * 128}, v18\nv_lshl_add_u32 v17, v17, 7, v18")
            a(f"s_lshr_b32 s{T + 5}, s{S_T}, 5\ns_mul_i32 s75, s{S_M}, 7\ns_mul_i32 s{T + 6}, s{T + 5}, 3\ns_add_u32 s75, s75, s{T + 6}")
            a(f"s_mul_i32 s75, s75, 288\ns_mul_i32 s{T + 6}, s74, 36\ns_add_u32 s75, s75, s{T + 6}")
            a(f"s_lshl_b32 s74, s74, 2\ns_add_u32 s74, s74, {8064 - 36}")
            a(f"s_cmp_eq_u32 s{T + 5}, 0\ns_cselect_b32 s{T + 5}, 35, 39\ns_mul_i32 s{T + 6}, s{T + 1}, 20")
            a(f"v_min_u32 v18, 19, v0\nv_add_u32 v18, s{T + 6}, v18\nv_min_u32 v18, s{T + 5}, v18")
            a(f"v_add_u32 v19, s75, v18\nv_cmp_gt_u32 vcc, 36, v18\nv_add_u32 v18, s74, v18\ns_nop 0\nv_cndmask_b32 v18, v18, v19, vcc\nv_mul_u32_u24 v18, {ROWB}, v18")
            a(f"s_cmp_eq_u32 s{T + 2}, 0\ns_cselect_b64 vcc, -1, 0\ns_movk_i32 s73, 128\ns_cselect_b32 s73, {64 * ROWB}, s73")
            a(f"v_cndmask_b32 v16, v18, v17, vcc")
        srds(((S_W, 6, WBYTES), (S_X, 4, XBYTES)))
        if cfg.lpf:
            a(f"s_cmp_eq_u32 s{T + 2}, 0\ns_cselect_b32 s96, s{S_W}, s{S_X}\ns_cselect_b32 s97, s{S_W + 1}, s{S_X + 1}\ns_cselect_b32 s98, s{S_W + 2}, s{S_X + 2}\ns_mov_b32 s99, 0x20000")
        loader_prog(a, cfg, prog)
        a(f"L_{n}_comp:")
        a(f"s_lshr_b32 s{T}, s{S_WAVE}, 1\ns_and_b32 s{T + 1}, s{S_WAVE}, 1")
        a("v_and_b32 v60, 15, v0\nv_lshrrev_b32 v61, 4, v0")
        if special:
            a(f"s_add_u32 s{S_LINE}, s{S_LINE}, s{T}")
        a(f"s_lshl_b32 s{T + 2}, s{S_LINE}, 7\ns_lshl_b32 s{T + 3}, s{T + 1}, 6\ns_add_u32 s{T + 2}, s{T + 2}, s{T + 3}")
        a(f"s_lshl_b32 s{T + 3}, s{T + 1}, 7\ns_add_u32 s{T + 3}, s{T + 3}, {prog.TB}")
        if special:
            a(f"s_lshl_b32 s{T + 4}, s{T}, 9\ns_add_u32 s{T + 3}, s{T + 3}, s{T + 4}")
            a(f"v_lshlrev_b32 v{V_PE}, 4, v61\nv_add_u32 v{V_PE}, {prog.TB + 1024}, v{V_PE}")
        a(f"v_lshl_add_u32 v{V_PA}, v61, 4, s{T + 3}")
        a("v_and_b32 v14, 1, v61\nv_lshrrev_b32 v15, 1, v61")
        a(f"v_mul_u32_u24 v{V_OM}, {BATB}, v60\nv_lshl_add_u32 v{V_OM}, v15, 4, v{V_OM}")
        if not special:
            a(f"v_lshl_add_u32 v{V_OM}, v14, 5, v{V_OM}")
            a(f"v_lshrrev_b32 v12, 3, v60\nv_and_b32 v13, 7, v60")
            a(f"v_mul_u32_u24 v{V_OE}, {BATB}, v12\nv_mul_u32_u24 v64, {ROWB}, v13\nv_add_u32 v{V_OE}, v{V_OE}, v64")
            a(f"v_lshl_add_u32 v{V_OE}, v15, 4, v{V_OE}\nv_lshl_add_u32 v{V_OE}, v14, 5, v{V_OE}")
            a(f"s_mul_i32 s{T + 3}, s{T}, {16 * BATB}\ns_add_u32 s{S_OM}, s{S_B0}, s{T + 3}\ns_add_u32 s{S_OM}, s{S_OM}, s{T + 2}")
            a(f"s_mul_i32 s{T + 3}, s{T}, {2 * BATB}\ns_add_u32 s{S_OE}, s{S_B0}, s{T + 3}\ns_add_u32 s{S_OE}, s{S_OE}, {32 * BATB}\ns_add_u32 s{S_OE}, s{S_OE}, s{T + 2}")
            a(f"s_mul_i32 s{T + 3}, s{T}, 18\nv_mad_u32_u24 v64, v12, 9, v13\nv_add_u32 v64, s{T + 3}, v64")
            for t in range(3):
                a(f"v_add_u32 v65, {t}, v64\nv_bfe_u32 v66, v65, 1, 3\nv_xor_b32 v66, v66, v61\nv_lshlrev_b32 v66, 4, v66")
                a(f"v_lshl_add_u32 v66, v65, 7, v66\nv_add_u32 v{V_Q[t]}, {prog.QB0}, v66")
        else:
            a(f"v_mul_u32_u24 v64, {ROWB}, v14\nv_add_u32 v{V_OE}, v{V_OM}, v64")
            a(f"v_lshl_add_u32 v{V_OM}, v14, 5, v{V_OM}")
            a(f"s_add_u32 s{S_OM}, s{S_B0}, s{T + 2}")
            a(f"s_mul_i32 s{T + 3}, s{S_WAVE}, {2 * ROWB}\ns_add_u32 s{S_OE}, s{S_B0}, s{T + 3}")
            a(f"s_lshl_b32 s{T + 3}, s{S_M}, 5\ns_add_u32 s{S_OE}, s{S_OE}, s{T + 3}\ns_add_u32 s{S_OE}, s{S_OE}, 1024")
        a(f"s_add_u32 s{S_OM2}, s{S_OM}, {4 * ROWB}")
        a(f"v_lshrrev_b32 v64, 1, v60\nv_xor_b32 v64, v64, v61\nv_lshlrev_b32 v64, 4, v64\nv_lshl_add_u32 v{V_XA}, v60, 7, v64")
        if not special:
            a(f"s_mul_i32 s{T + 3}, s{T}, {prog.XBT}\nv_add_u32 v{V_XA}, s{T + 3}, v{V_XA}")
        a("v_lshrrev_b32 v64, 2, v60\nv_and_b32 v65, 3, v60\nv_lshl_add_u32 v66, v61, 3, v64")
        a("v_and_b32 v67, 2, v64\nv_lshl_add_u32 v67, v14, 2, v67")
        a(f"s_lshl_b32 s{T + 3}, s{T + 1}, 2\nv_lshrrev_b32 v68, 1, v65\nv_add_u32 v68, s{T + 3}, v68")
        a("v_and_b32 v69, 1, v65\nv_lshlrev_b32 v69, 3, v69\nv_lshl_add_u32 v69, v66, 7, v69")
        if special:
            a(f"s_mul_i32 s{T + 3}, s{T}, 12288\ns_add_u32 s{T + 3}, s{T + 3}, {prog.WB0}")
        else:
            a(f"s_mov_b32 s{T + 3}, {prog.WB0}")
        a(f"v_add_u32 v69, s{T + 3}, v69")
        for c in range(2):
            a(f"v_add_u32 v70, {2 * c}, v68\nv_xor_b32 v70, v70, v67\nv_lshl_add_u32 v{V_WA[c]}, v70, 4, v69")
        if special:
            a(f"v_lshl_add_u32 v70, v14, 2, v66\nv_lshlrev_b32 v70, 5, v70\nv_lshl_add_u32 v70, v65, 3, v70")
            a(f"v_add_u32 v{V_Q[0]}, {prog.WB0 + 24576}, v70\nv_xor_b32 v70, 128, v70\nv_add_u32 v{V_Q[1]}, {prog.WB0 + 24576}, v70")
        for r in range(ACC, ACC + 4): a(f"v_mov_b32 v{r}, 0")
        if not special:
            a(f"v_lshrrev_b32 v64, 3, v0\ns_lshl_b32 s{T + 3}, s{S_WAVE}, 3\nv_add_u32 v64, s{T + 3}, v64")
            a("v_mul_u32_u24 v65, 52, v64\nv_lshrrev_b32 v65, 8, v65")
            a("v_mul_u32_u24 v66, 5, v65\nv_sub_u32 v66, v64, v66")
            a(f"v_mul_u32_u24 v65, {prog.QB}, v65\nv_mul_u32_u24 v66, {9 * 128}, v66\nv_add_u32 v65, v65, v66")
            a(f"v_and_b32 v66, 7, v0\nv_lshl_add_u32 v65, v66, 4, v65\nv_add_u32 v65, {prog.QB0}, v65")
            a("v_cmp_gt_u32 vcc, 15, v64\ns_and_saveexec_b64 s[58:59], vcc")
            a(f"ds_write_b128 v65, {r4(ACC)}")
            a("s_mov_b64 exec, s[58:59]")
        srds(((S_O, 16, XBYTES),))
        a("s_waitcnt vmcnt(0)")
        if not special:
            compute_prog(a, cfg, prog, None)
        else:
            for wv in range(1, 4):
                a(f"s_cmp_eq_u32 s{S_WAVE}, {wv}\ns_cbranch_scc1 L_sp{wv}_go")
            for wv in range(4): compute_prog(a, cfg, prog, wv)
    finish(a, cfg)
    a("L_end:\ns_endpgm")
    a(f""".section .rodata,"a"
.p2align 6
.amdhsa_kernel {KNAME}
  .amdhsa_next_free_vgpr 256
  .amdhsa_next_free_sgpr 102
  .amdhsa_accum_offset 256
  .amdhsa_group_segment_fixed_size 0
  .amdhsa_kernarg_size 72
  .amdhsa_user_sgpr_count 2
  .amdhsa_user_sgpr_kernarg_segment_ptr 1
  .amdhsa_system_sgpr_workgroup_id_x 1
  .amdhsa_float_denorm_mode_32 3
.end_amdhsa_kernel""")
    return a.text() + '\n'

if __name__ == '__main__':
    ap = argparse.ArgumentParser()
    ap.add_argument('-o', default='k.s')
    ap.add_argument('opts', nargs='*')
    args = ap.parse_args()
    kw = {}
    for o in args.opts:
        k, v = o.split('=', 1)
        try: v = eval(v)
        except Exception: pass
        kw[k] = v
    open(args.o, 'w').write(gen(Cfg(**kw)))
```

```python
import sys, argparse, re

KNAME = "standalone__batchnorm__sampling_kernel"
ROWB, BATB, TAPB = 1152, 9216, 663552
XBYTES, WBYTES = 9437184, 1990656
NLOG2E = 0xbfb8aa3b

class Cfg:
    def __init__(self, **kw):
        self.stamps = False; self.lst = False; self.echo = None; self.verbose = False
        self.stflags = 'sc1'
        self.cpfg, self.cpfn = 8, 52
        self.wpf = True; self.xspf = True; self.xrot = True; self.wrot = True
        self.qlate = {}
        self.pre = 'X0b W1 X1 | W2 W3 X2 | P'
        self.pre_sp = 'W0b W1 X1a'
        self.sp_ahead = 2
        self.barv, self.barw, self.rw = 72, 44, ()
        self.lookf, self.npre = 30, 12
        self.lead4, self.bar16, self.budget4, self.epk = 6, 44, 8, 4
        self.rd_span, self.lead, self.budget, self.epk_sp = 36, 2, 8, 3
        self.maxld, self.urgent, self.aged = 1, 10, 10
        self.cvtcost = 4
        self.xpos, self.xpos_sp = 8, 8
        for k in kw: assert hasattr(self, k), k
        self.__dict__.update(kw)

class A:
    def __init__(self): self.L = []
    def __call__(self, s):
        for l in s.split('\n'):
            l = l.strip()
            if l: self.L.append(l)
    def text(self):
        return '\n'.join((l if l.endswith(':') or l[0] in '.;' else '  ' + l) for l in self.L)

V_XA = [2, 1]
V_Q = [[3, 4, 5], [11, 12, 13]]
V_WA = [6, 7]
V_OM, V_OE, V_PA, V_PE = 8, 9, 10, 11
SETB = [16, 84]
def XF(s, p): return SETB[s] + 4 * p
def EF(s, t): return SETB[s] + 32 + 4 * t
def WF(s, c, t): return SETB[s] + 44 + 4 * (3 * c + t)
ACC = 152
def TILE(p, c): return ACC + 4 * (2 * p + c)
PS = 224
def P_S(c): return PS + 4 * c
def P_B(c): return PS + 8 + 4 * c
PE_S, PE_B, TMPE = 240, 244, 248
def r4(b): return f"v[{b}:{b+3}]"
def r2(b): return f"v[{b}:{b+1}]"
S_X, S_W, S_O = 20, 24, 28
S_WAVE, S_SP, S_M, S_T, S_R, S_LINE, S_B0 = 33, 35, 36, 37, 38, 39, 40
T = 41
S_OM, S_OM2, S_OE, S_DX, S_DW, S_CNT, S_XOFF, S_XBP, S_C = 48, 49, 50, 51, 52, 53, 54, 55, 56
sXm, sXq, sW, mXm, mXq, mW, sE, mE, sTmp = 62, 63, 64, 65, 66, 67, 68, 69, 70
XR_S = [44, 45, 46, 47, 48, 49, 50, 51]; XR_M = [52, 53, 54, 55, 58, 59, 60, 61]
WR_S = [74, 75, 92]; WR_M = [93, 100, 101]
S_ST = 76

class Prog:
    def __init__(self, special):
        self.special = special
        self.name = 'sp' if special else 'pu'
        if not special:
            self.XB, self.XBT, self.QB0, self.QB = 16384, 49152, 98304, 4864
            self.WB0, self.WS = 112896, 12288
            self.TB = self.WB0 + 4 * self.WS
        else:
            self.XB, self.WB0, self.WS = 16384, 49152, 27648
            self.TB = self.WB0 + 4 * self.WS + 1024

def stamp(a, cfg, i):
    if cfg.echo is not None:
        if i == 0: a("s_memrealtime s[76:77]")
        if i == cfg.echo[0]: a("s_memrealtime s[78:79]")
    if cfg.stamps:
        if i == 0: a(f"s_memrealtime s[{S_ST}:{S_ST + 1}]")
        a(f"s_memtime s[{S_ST + 4 + 2 * i}:{S_ST + 5 + 2 * i}]")
def stamp_l(cfg, i):
    t = A(); stamp(t, cfg, i); return t.L

def epi_stream(prog, cfg, R0, order=tuple(range(9))):
    out, pend = [], []
    for n, p in enumerate(order):
        R = R0 if n == 0 else TILE(order[n - 1], 0)
        Tt, e = [TILE(p, 0), TILE(p, 1)], [TMPE, TMPE + 4]
        ps = [PE_S] * 2 if p == 8 and prog.special else [P_S(0), P_S(1)]
        pb = [PE_B] * 2 if p == 8 and prog.special else [P_B(0), P_B(1)]
        if n >= (cfg.epk_sp if prog.special else cfg.epk):
            fma = lambda c: [(f"v_pk_fma_f32 {r2(Tt[c] + i)}, {r2(Tt[c] + i)}, {r2(ps[c] + i)}, {r2(pb[c] + i)}", 4) for i in (0, 2)]
            fmu = lambda c: [(f"v_pk_fma_f32 {r2(e[c] + i)}, {r2(e[c] + i)}, s[{S_C}:{S_C + 1}], s[{S_C}:{S_C + 1}]", 4) for i in (0, 2)]
            mul = lambda c: [(f"v_pk_mul_f32 {r2(Tt[c] + i)}, {r2(Tt[c] + i)}, {r2(e[c] + i)}", 4) for i in (0, 2)]
        else:
            fma = lambda c: [(f"v_fma_f32 v{Tt[c] + i}, v{Tt[c] + i}, v{ps[c] + i}, v{pb[c] + i}", 4) for i in range(4)]
            fmu = lambda c: [(f"v_fma_f32 v{e[c] + i}, v{e[c] + i}, s{S_C}, s{S_C}", 4) for i in range(4)]
            mul = lambda c: [(f"v_mul_f32 v{Tt[c] + i}, v{Tt[c] + i}, v{e[c] + i}", 4) for i in range(4)]
        exp = lambda c: [(f"v_exp_f32 v{e[c] + i}, v{Tt[c] + i}", 8) for i in range(4)]
        rcp = lambda c: [(f"v_rcp_f32 v{e[c] + i}, v{e[c] + i}", 8) for i in range(4)]
        cvt = lambda c: [(f"v_cvt_pk_bf16_f32 v{R + 2 * c + i}, v{Tt[c] + 2 * i}, v{Tt[c] + 2 * i + 1}", cfg.cvtcost) for i in range(2)]
        ops = fma(0) + exp(0) + fma(1) + exp(1) + fmu(0) + rcp(0) + fmu(1) + rcp(1) + mul(0) + cvt(0) + mul(1) + cvt(1)
        ops = [(t, c, []) for t, c in ops]
        ops[-1] = (ops[-1][0], ops[-1][1], [Tt[1]] if n < 8 else [])
        if n >= 2: ops[3] = (ops[3][0], ops[3][1], [TILE(order[n - 2], 0)])
        out.append(ops[:2] + pend + ops[2:])
        so = f"s{S_OM} offen offset:{p * ROWB}" if p < 4 else f"s{S_OM2} offen offset:{(p - 4) * ROWB}" if p < 8 else f"s{S_OE} offen"
        pend = [(f"v_permlane16_swap_b32 v{R}, v{R + 2}", 4, []), (f"v_permlane16_swap_b32 v{R + 1}, v{R + 3}", 4, []),
                (f"buffer_store_dwordx4 {r4(R)}, v{V_OM if p < 8 else V_OE}, s[{S_O}:{S_O + 3}], {so} {cfg.stflags}", 4, [])]
    out[-1] += [("s_nop 1", 8, [])] + pend
    return out

class Sched:
    def __init__(self, cfg):
        self.cfg, self.out, self.reg, self.free = cfg, [], {}, []
        self.nds = self.done = self.nm = 0
        self.ldpos, self.dsat, self.report = {}, [], []
    def emit(self, x):
        self.out.append(x)
        if x.startswith('ds_'): self.nds += 1; self.dsat.append(self.nm)
        if x.startswith('v_mfma'): self.nm += 1
    def need(self, keys):
        k = max([self.ldpos.get(x, 0) for x in keys] + [0])
        if k > self.done:
            k = max(k, sum(1 for m in self.dsat if m <= self.nm - self.cfg.aged))
            n = min(self.nds - k, 15)
            self.emit(f"s_waitcnt lgkmcnt({n})")
            self.done = self.nds - n
    def run(self, mf, loads, bars, pre, epi, budget, look, czero=False, fixed={}, release=False, mark=[], retire=None, order=tuple(range(9))):
        cfg = self.cfg
        first, last, lastm, pos_last, seen = {}, {}, {}, {}, set()
        for i, m in enumerate(mf):
            for k in (m[1], m[2]): first.setdefault(k, i); last[k] = i
            if m[4]: lastm[m[3]] = i
        st = dict(ld=0, sub=[], key=None, ep=0, ei=0, i=-1)
        def try_load(i):
            if not st['sub']:
                if st['ld'] >= len(loads): return False
                key, mingap, fn, latest = loads[st['ld']]
                if i < mingap or i < min(first.get(key, 0) - look, latest): return False
                if key in fixed: r = fixed[key]
                elif not self.free: return False
                else: r = self.free.pop(0)
                self.reg[key] = r; st['sub'] = list(fn(r)); st['key'] = key; st['ld'] += 1
                self.report.append((key, first.get(key, 0) - i))
            self.emit(st['sub'].pop(0))
            if not st['sub']: self.ldpos[st['key']] = self.nds
            return True
        def emit_epi(b, final=False):
            spent = 0
            while epi and st['ep'] < len(epi) and (final or spent < b):
                p = st['ep']
                if order[p] not in pos_last: break
                if st['ei'] == 0:
                    if any(l[0][0] == 'P' and l[0] not in self.ldpos for l in loads): assert not final; break
                    if retire: assert not ({self.reg[k] for k in self.reg if last.get(k, -1) > st['i']} & set(retire[1]))
                    dist = len(self.out) - pos_last[order[p]] - 1
                    if dist < 8:
                        if not final: break
                        self.emit(f"s_nop {8 - dist - 1}")
                    self.need([k for k in self.ldpos if k[0] == 'P'])
                txt, cost, frees = epi[p][st['ei']]
                self.emit(txt); spent += cost; self.free += frees
                st['ei'] += 1
                if st['ei'] == len(epi[p]): st['ep'] += 1; st['ei'] = 0
        while try_load(-1): pass
        for i, (tile, ak, bk, pair, final) in enumerate(mf):
            while ak not in self.ldpos and ak not in self.given or bk not in self.ldpos and bk not in self.given:
                assert try_load(i - 1), ('fragment cannot be loaded in time', ak, bk, i)
            st['i'] = i
            self.need([ak, bk])
            c = '0' if czero and tile not in seen else r4(tile)
            seen.add(tile)
            self.emit(f"v_mfma_f32_16x16x32_bf16 {r4(tile)}, {r4(self.reg[ak])}, {r4(self.reg[bk])}, {c}")
            if lastm.get(pair) == i: pos_last[pair] = len(self.out) - 1
            if release: self.free += [self.reg[k] for k in (ak, bk) if last[k] == i]
            if retire and i >= retire[0]: self.free = [r for r in self.free if r not in retire[1]]
            if i in bars:
                for k in bars[i]: assert k in self.ldpos, ('not read before the barrier', k, i)
                self.need(bars[i]); self.emit("s_barrier")
            spent = nl = 0
            for x in pre.get(i, []):
                assert not x.startswith('v_add') or (st['ld'] == len(loads) and not st['sub']), 'address advanced under pending reads'
                self.emit(x); spent += 4
            while spent < 8 and try_load(i):
                spent += 4; nl += 1
                nk = st['key'] if st['sub'] else (loads[st['ld']][0] if st['ld'] < len(loads) else None)
                if nl >= cfg.maxld and first.get(nk, 10 ** 6) - i > cfg.urgent: break
            if spent < budget: emit_epi(budget - spent)
        while try_load(10 ** 6): pass
        self.out += mark
        emit_epi(0, True)
    given = ()

def group(prog, wv, steps, p, final, zig=False):
    out = []
    for c in range(2):
        if p < 8: items = [(('W', s, c, t), ('X', s, p + t - 1)) for t in range(3) if 0 <= p + t - 1 < 8 for s in steps]
        elif not prog.special: items = [(('W', s, c, t), ('E', s, t)) for t in range(3) for s in steps]
        else: items = [(('E', s, t), ('X', s, 2 * wv + c + t - 1)) for t in range(3) if 0 <= 2 * wv + c + t - 1 < 8 for s in steps]
        if zig and c == 1: items = items[::-1]
        out += [(TILE(p, c), ak, bk, p, final) for ak, bk in items]
    return out

def wavefront(prog, wv, A_, B_, lead, zig=False, po=tuple(range(9))):
    order = [(A_, po[n]) for n in range(lead)]
    for n in range(9):
        order.append((B_, po[n]))
        if n + lead < 9: order.append((A_, po[n + lead]))
    return [m for st, p in order for m in group(prog, wv, st, p, st is B_, zig)]

def ld_fn(prog, key, half, xoff, qoff, woff):
    if key[0] == 'X': return lambda r: [f"ds_read_b128 {r4(r)}, v{V_XA[half]} offset:{xoff + key[2] * 2048}"]
    if key[0] == 'W':
        o = woff + key[3] * 4096
        return lambda r: [f"ds_read_b64_tr_b16 {r2(r)}, v{V_WA[key[2]]} offset:{o}", f"ds_read_b64_tr_b16 {r2(r + 2)}, v{V_WA[key[2]]} offset:{o + 512}"]
    if not prog.special: return lambda r: [f"ds_read_b128 {r4(r)}, v{V_Q[half][key[2]]} offset:{qoff}"]
    o = woff + key[2] * 1024
    return lambda r: [f"ds_read_b64_tr_b16 {r2(r)}, v{V_Q[0][0]} offset:{o}", f"ds_read_b64_tr_b16 {r2(r + 2)}, v{V_Q[0][1]} offset:{o}"]

def param_loads(prog):
    t = []
    for c in range(2):
        t += [f"ds_read_b128 {r4(P_S(c))}, v{V_PA} offset:{64 * c}", f"ds_read_b128 {r4(P_B(c))}, v{V_PA} offset:{64 * c + 256}"]
    if prog.special: t += [f"ds_read_b128 {r4(PE_S)}, v{V_PE}", f"ds_read_b128 {r4(PE_B)}, v{V_PE} offset:256"]
    return [(('P', n), 0, (lambda x: (lambda r: [x]))(x), 10 ** 6) for n, x in enumerate(t)], {('P', n): 0 for n in range(len(t))}

def compute_pure(a, cfg, prog):
    mf, start = [], {}
    for t in range(7):
        start[t] = len(mf)
        for p in range(9): mf += group(prog, None, [2 * t, 2 * t + 1], p, False)
    start[7] = nb = len(mf)
    po = list(range(8)); po.insert(cfg.xpos, 8)
    mf += wavefront(prog, None, [14, 15], [16, 17], cfg.lead4, False, po)
    first = {}
    for i, m in enumerate(mf):
        for k in (m[1], m[2]): first.setdefault(k, i)
    vis = {0: -1, 8: nb + cfg.bar16}
    for t in range(1, 8): vis[t] = start[t - 1] + cfg.barv
    bars = {}
    for t in range(1, 9):
        bars[vis[t]] = [k for k in first if k[1] >> 1 == t - 1 and (t <= 6 or (t == 7 and k[0] == 'W' and 6 not in cfg.rw))]
    for t in cfg.rw:
        bars[start[t] + cfg.barw] = [k for k in first if k[0] == 'W' and k[1] >> 1 == t]
    loads = []
    for n, k in enumerate(sorted(first, key=lambda k: first[k])):
        t = k[1] >> 1
        latest = vis[t + 1] - 10 if t <= 6 else 10 ** 6
        if k[0] == 'W' and t in cfg.rw: latest = min(latest, start[t] + cfg.barw - 10)
        loads.append((k, vis[t] if t or n < cfg.npre else 0, ld_fn(prog, k, k[1] & 1, (t % 3) * prog.XB, (t % 3) * prog.QB, (k[1] & 3) * prog.WS), latest))
    for i in range(len(loads) - 2, -1, -1):
        if loads[i][3] > loads[i + 1][3]: loads[i] = loads[i][:3] + (loads[i + 1][3],)
    pl, fx = param_loads(prog)
    k = max(i for i, l in enumerate(loads) if l[0][0] == 'W' and l[0][1] < 16)
    loads = loads[:k + 1] + pl + loads[k + 1:]
    sc = Sched(cfg)
    sc.free = [16 + 4 * i for i in range(34)] + [PE_B, TMPE, TMPE + 4]
    sc.run(mf, loads, bars, {nb - 1: stamp_l(cfg, 3)}, epi_stream(prog, cfg, PE_S, po), cfg.budget4, cfg.lookf, czero=True, fixed=fx,
           release=True, mark=stamp_l(cfg, 4), retire=(vis[7], [TMPE, TMPE + 4]), order=po)
    if cfg.verbose: print('pu load distance', sorted([r for r in sc.report if r[0][0] in 'XWE' and r[0][1] > 1], key=lambda z: z[1])[:10], file=sys.stderr)
    for x in sc.out: a(x)

def key_order(s):
    return [('W', s, 0, 1), ('X', s, 0), ('W', s, 0, 2), ('X', s, 1), ('W', s, 1, 2), ('W', s, 1, 1), ('W', s, 0, 0), ('X', s, 2),
            ('W', s, 1, 0)] + [('X', s, p) for p in range(3, 8)] + [('E', s, t) for t in range(3)]
def set_regs(s, step):
    d = {('X', step, p): XF(s, p) for p in range(8)}
    d.update({('E', step, t): EF(s, t) for t in range(3)})
    d.update({('W', step, c, t): WF(s, c, t) for c in range(2) for t in range(3)})
    return d

def compute_special(a, cfg, prog, wv):
    n, XB, WS, BIG = f"sp{wv}", prog.XB, prog.WS, 10 ** 6
    a(f"s_mov_b32 s{S_CNT}, 7\ns_mov_b32 s{S_XOFF}, 1\ns_mov_b32 s{S_DW}, {2 * WS}\ns_mov_b32 s{S_XBP}, {XB}\ns_mov_b32 s{S_DX}, {XB}")
    stage = [f"v_add_u32 v{r}, s{S_DX}, v{r}" for r in V_XA] + [f"v_add_u32 v{r}, s{S_DW}, v{r}" for r in V_WA + V_Q[0][:2]] + [
        f"s_cmp_eq_u32 s{S_XOFF}, 2", f"s_cselect_b32 s{S_DX}, {(-2 * XB) & 0xffffffff}, s{S_XBP}",
        f"s_cselect_b32 s{S_XOFF}, -1, s{S_XOFF}", f"s_add_u32 s{S_XOFF}, s{S_XOFF}, 1", f"s_sub_u32 s{S_DW}, 0, s{S_DW}"]
    def spread(l, i0):
        d = {}
        for i, x in enumerate(l): d.setdefault(i0 + i // 2, []).append(x)
        return d
    def step_loads(step, g0, span):
        ko = key_order(step)
        return [(k, g0 + (i * span) // len(ko), ld_fn(prog, k, step & 1, 0, 0, (step & 1) * WS), BIG) for i, k in enumerate(ko)]
    def step(s, nxt, g1, pre, head=[], czero=False):
        sc = Sched(cfg)
        fx = set_regs(s & 1, s); fx.update(set_regs(nxt & 1, nxt))
        if not head:
            sc.reg.update(fx); sc.given = set(set_regs(s & 1, s)); a("s_waitcnt lgkmcnt(0)")
        mf = [m for p in range(9) for m in group(prog, wv, [s], p, False, True)]
        sc.run(mf, head + step_loads(nxt, g1, cfg.rd_span), {g1: [l[0] for l in head]}, pre, None, 0, BIG, czero=czero, fixed=fx)
        for x in sc.out: a(x)
    step(0, 1, 3, spread(stage, cfg.rd_span + 4), head=step_loads(0, -1, 0), czero=True)
    a(f"L_{n}_loop:")
    step(1, 2, 0, {})
    step(2, 3, 0, spread(stage + [f"s_sub_u32 s{S_CNT}, s{S_CNT}, 1", f"s_cmp_lg_u32 s{S_CNT}, 0"], cfg.rd_span + 1))
    a(f"s_cbranch_scc1 L_{n}_loop")
    stamp(a, cfg, 3)
    a("s_waitcnt lgkmcnt(0)")
    sc = Sched(cfg)
    sc.reg.update(set_regs(1, 15)); sc.given = set(set_regs(1, 15))
    sc.free = [SETB[0] + 4 * i for i in range(17)]
    mf = [m for p in range(9) for m in group(prog, wv, [15], p, False, True)]
    nb = len(mf)
    po = list(range(8)); po.insert(cfg.xpos_sp, 8)
    mf += wavefront(prog, wv, [16], [17], cfg.lead, True, po)
    pl, fx = param_loads(prog)
    sc.run(mf, step_loads(16, 0, cfg.rd_span) + pl + step_loads(17, nb, 0), {0: [], nb: []}, {}, epi_stream(prog, cfg, 12, po), cfg.budget, BIG,
           fixed=fx, release=True, mark=stamp_l(cfg, 4), order=po)
    for x in sc.out: a(x)

vXm, vXq, vW, vE = 2, 3, 4, 5
class Loader:
    def __init__(self, a, cfg, prog):
        self.a, self.cfg, self.prog = a, cfg, prog
        self.seq, self.rot, self.xstate, self.lg = [], False, {}, 0
    def lstamp(self):
        if self.cfg.stamps and self.cfg.lst and self.lg < 64:
            self.a(f"s_memtime s[94:95]\ns_waitcnt lgkmcnt(0)\ns_sub_u32 s94, s94, s{S_ST + 4}\nv_writelane_b32 v40, s94, {self.lg}")
            self.lg += 1
    def dma(self, v, srd, sbase, soff, mbase, moff, tag):
        self.a(f"s_add_u32 m0, s{mbase}, {moff}\ns_add_u32 s{sTmp}, s{sbase}, {soff}\nbuffer_load_dwordx4 v{v}, s[{srd}:{srd + 3}], s{sTmp} offen lds")
        self.seq.append(tag)
    def x(self, t, part=None):
        p = self.prog
        ns = 4 if p.special else 8
        rng = range(ns) if part is None else range(ns // 2) if part == 0 else range(ns // 2, ns)
        assert self.xstate.setdefault(t, self.rot) == self.rot
        for s in rng:
            if self.rot and self.cfg.xrot: self.dma(vXm, S_X, XR_S[s], t * 128, XR_M[s], (t % 3) * p.XB, ('x', t))
            else: self.dma(vXm, S_X, sXm, s * ROWB + t * 128, mXm, (t % 3) * p.XB + s * 2048, ('x', t))
        if not p.special and part != 0: self.dma(vXq, S_X, sXq, t * 128, mXq, (t % 3) * p.QB, ('x', t))
    def w(self, j, part=None):
        p = self.prog
        buf = (j & 3) * p.WS
        for k, tap in enumerate((1, 2, 0)):
            if self.rot and self.cfg.wrot: self.dma(vW, S_W, WR_S[k], j * 32 * ROWB, WR_M[k], buf, ('w', j)); continue
            if part != 1: self.dma(vW, S_W, sW, tap * TAPB + j * 32 * ROWB, mW, buf + tap * 4096, ('w', j))
            if p.special and part != 0: self.dma(vW, S_W, sW, tap * TAPB + j * 32 * ROWB + 128, mW, buf + 12288 + tap * 4096, ('w', j))
        if p.special and part != 0:
            self.a(f"s_mul_i32 s{sTmp + 1}, s{sTmp + 2}, {j & 3}\ns_add_u32 m0, s{mE}, s{sTmp + 1}\ns_add_u32 s{sTmp}, s{sE}, {j * 32 * ROWB}")
            self.a(f"buffer_load_dwordx4 v{vE}, s[{S_W}:{S_W + 3}], s{sTmp} offen lds")
            self.seq.append(('w', j))
    def issue(self, l, relw, relx):
        a, cfg = self.a, self.cfg
        if cfg.verbose: print(self.prog.name, l, file=sys.stderr)
        for it in l.split():
            part = 'ab'.index(it[-1]) if it[-1] in 'ab' else None
            if it == 'B':
                for i, sp in enumerate((8, 10, 12, 14)):
                    a(f"global_load_ushort v{20 + i}, v6, s[{sp}:{sp + 1}]"); self.seq.append(('b', 0))
            elif it == 'P':
                if cfg.wpf: a(f"buffer_load_dword v30, v8, s[{S_W}:{S_W + 3}], 0 offen"); self.seq.append(('p', 0))
                if cfg.xspf: a(f"buffer_load_dword v31, v9, s[{S_X}:{S_X + 3}], 0 offen"); self.seq.append(('p', 0))
            elif it[0] == 'Q':
                a(f"s_add_u32 s{sTmp}, s72, {int(it[1:]) * 128}\nbuffer_load_dword v30, v17, s[{S_X}:{S_X + 3}], s{sTmp} offen"); self.seq.append(('p', 0))
            else:
                n = int(it.rstrip('ab')[1:])
                assert n <= (relw if it[0] == 'W' else relx), ('slot still in use', it)
                (self.w if it[0] == 'W' else self.x)(n, part)
    def wait(self, need):
        for t in need:
            full = 4 if t[0] == 'b' else ((7, 4) if self.prog.special else (3, 9))[t[0] == 'x']
            assert self.seq.count(t) == full, t
        self.a(f"s_waitcnt vmcnt({len(self.seq) - 1 - max(i for i, t in enumerate(self.seq) if t in need)})")
    def bn_finish(self):
        a = self.a
        self.wait({('b', 0)})
        for i in range(4): a(f"v_lshlrev_b32 v{20 + i}, 16, v{20 + i}")
        a("v_add_f32 v21, 0x3727c5ac, v21\nv_rsq_f32 v21, v21\ns_nop 0\nv_mul_f32 v21, v21, v22\nv_fma_f32 v23, -v20, v21, v23")
        a(f"v_mul_f32 v21, s{S_C}, v21\nv_mul_f32 v23, s{S_C}, v23\nds_write_b32 v7, v21\nds_write_b32 v7, v23 offset:256")
    def bar(self, need):
        if need: self.wait(need)
        self.lstamp(); self.a("s_barrier"); self.lstamp()
    def end(self):
        a = self.a
        nw, nx = (7, 4) if self.prog.special else (3, 9)
        assert sum(t[0] == 'w' for t in self.seq) == 18 * nw and sum(t[0] == 'x' for t in self.seq) == 9 * nx
        if self.cfg.stamps and self.cfg.lst:
            a(f"s_cmp_lg_u32 s{S_WAVE}, 4\ns_cbranch_scc1 L_end\ns_load_dwordx2 s[4:5], s[0:1], 64\ns_waitcnt lgkmcnt(0)")
            a(f"s_lshl_b32 s{T}, s2, 9\ns_add_u32 s{T}, s{T}, 0x100000\nv_lshl_add_u32 v41, v0, 2, s{T}\nglobal_store_dword v41, v40, s[4:5]")
        a("s_endpgm")

def auto(items, given):
    out = []
    for it in items:
        base = it.rstrip('ab')
        if it in given or base in given or (it == base and base + 'a' in given): continue
        if int(base[1:]) < (18 if it[0] == 'W' else 9): out.append(it)
    return ' ' + ' '.join(out)

def loader_pure(a, cfg, prog, head):
    L = Loader(a, cfg, prog); L.seq = list(head); L.xstate[0] = False; L.lg = 1
    a(f"s_mul_i32 s{T + 5}, s{T}, 9\ns_add_u32 s{T + 5}, s{T + 5}, 1")
    a(f"v_add_u32 v13, s{T + 5}, v10\nv_bfe_u32 v13, v13, 1, 3\nv_and_b32 v12, 7, v0\nv_xor_b32 v13, v13, v12\nv_lshl_add_u32 v{vXq}, v13, 4, v14")
    a(f"s_lshl_b32 s{mXq}, s{T + 5}, 7\ns_add_u32 s{mXq}, s{mXq}, {prog.QB0}")
    a(f"s_add_u32 s{T + 5}, s{T}, 32\ns_mul_i32 s{T + 5}, s{T + 5}, {BATB}\ns_add_u32 s{sXq}, s{T + 5}, s{S_B0}")
    parts = cfg.pre.split('|') + [''] * 12
    given = set(' '.join(parts).split())
    L.issue(parts[0], 3, 2)
    L.lstamp()
    a(f"v_lshl_add_u32 v6, v0, 1, s{T + 4}\nv_lshlrev_b32 v7, 2, v0\nv_add_u32 v7, {prog.TB}, v7\nv_mov_b32 v13, 0x40000000")
    if cfg.wpf:
        a(f"s_mul_i32 s{T + 6}, s2, 61\ns_lshl_b32 s{T + 5}, s{T}, 4\ns_add_u32 s{T + 6}, s{T + 6}, s{T + 5}")
        a(f"v_cmp_gt_u32 vcc, 16, v0\nv_add_u32 v8, s{T + 6}, v0\nv_lshlrev_b32 v8, 7, v8\nv_cndmask_b32 v8, v13, v8, vcc")
    if cfg.xspf:
        a(f"s_and_b32 s{T + 6}, s{S_T}, 31\ns_mul_i32 s{T + 6}, s{T + 6}, 40\ns_mul_i32 s{T + 5}, s{T}, 10\ns_add_u32 s{T + 6}, s{T + 6}, s{T + 5}")
        a(f"s_add_u32 s{T + 6}, s{T + 6}, {1008 * 72}\ns_cmp_lt_u32 s{S_T}, 32\ns_cselect_b32 s{T + 5}, 0, 10")
        a(f"v_cmp_gt_u32 vcc, s{T + 5}, v0\nv_add_u32 v9, s{T + 6}, v0\nv_lshlrev_b32 v9, 7, v9\nv_cndmask_b32 v9, v13, v9, vcc")
    if cfg.qlate:
        a(f"s_lshr_b32 s{T + 1}, s{S_T}, 5\ns_mul_i32 s{T + 1}, s{T + 1}, 3\ns_mul_i32 s{T + 2}, s{S_M}, 7\ns_add_u32 s{T + 1}, s{T + 1}, s{T + 2}\ns_mul_i32 s72, s{T + 1}, {288 * ROWB}")
        a(f"s_lshr_b32 s{T + 1}, s2, 3\ns_lshl_b32 s{T + 1}, s{T + 1}, 2\ns_add_u32 s{T + 1}, s{T + 1}, s{T}\ns_mul_i32 s{T + 1}, s{T + 1}, {9 * ROWB}\ns_add_u32 s72, s72, s{T + 1}")
        a(f"v_min_u32 v17, 8, v0\nv_mul_u32_u24 v17, {ROWB}, v17")
    if cfg.wrot:
        a(f"s_mul_i32 s{T}, s{S_R}, 43\ns_lshr_b32 s{T}, s{T}, 7\ns_mul_i32 s{T}, s{T}, 3\ns_sub_u32 s{T}, s{S_R}, s{T}")
        for k in range(3):
            if k: a(f"s_add_u32 s{T}, s{T}, 1\ns_cmp_eq_u32 s{T}, 3\ns_cselect_b32 s{T}, 0, s{T}")
            a(f"s_mul_i32 s{T + 1}, s{T}, {TAPB}\ns_add_u32 s{WR_S[k]}, s{sW}, s{T + 1}\ns_lshl_b32 s{T + 1}, s{T}, 12\ns_add_u32 s{WR_M[k]}, s{mW}, s{T + 1}")
    if cfg.xrot:
        for k in range(8):
            a(f"s_add_u32 s{T}, s{S_LINE}, {k}\ns_and_b32 s{T}, s{T}, 7\ns_mul_i32 s{T + 1}, s{T}, {ROWB}\ns_add_u32 s{XR_S[k]}, s{sXm}, s{T + 1}")
            a(f"s_lshl_b32 s{T}, s{T}, 11\ns_add_u32 s{XR_M[k]}, s{mXm}, s{T}")
    L.rot = True
    relw = 3
    for t in range(9):
        if t == 3: a("s_waitcnt lgkmcnt(0)")
        L.bar({('w', 2 * t), ('w', 2 * t + 1), ('x', t)})
        l = parts[t + 1] + (' B' if t == 0 else '')
        if t >= 1:
            relw = max(relw, 2 * t + 3)
            if t - 1 not in cfg.rw: l += auto([f"W{2 * t + 2}", f"W{2 * t + 3}"], given)
            l += auto([f"X{t + 2}"], given)
        L.issue(l + ' ' + cfg.qlate.get(t, ''), relw, t + 2)
        if t == 2: L.bn_finish()
        if t in cfg.rw:
            a("s_barrier")
            relw = 2 * t + 5
            L.issue(auto([f"W{2 * t + 4}", f"W{2 * t + 5}"], given), relw, 0)
    L.end()

def loader_special(a, cfg, prog, head):
    L = Loader(a, cfg, prog); L.seq = list(head); L.lg = 1
    a("v_lshrrev_b32 v13, 1, v0\nv_bfe_u32 v14, v0, 4, 1\nv_lshlrev_b32 v14, 2, v14\nv_xor_b32 v13, v13, v14")
    a(f"v_mul_u32_u24 v13, {ROWB}, v13\nv_and_b32 v14, 1, v0\nv_lshl_add_u32 v{vE}, v14, 4, v13")
    a(f"s_mul_i32 s{sE}, s{T}, {TAPB}\ns_lshl_b32 s{T + 5}, s{S_M}, 5\ns_add_u32 s{T + 5}, s{T + 5}, 1024\ns_add_u32 s{sE}, s{sE}, s{T + 5}")
    a(f"s_lshl_b32 s{mE}, s{T}, 10\ns_add_u32 s{mE}, s{mE}, {prog.WB0 + 24576}\ns_cmp_eq_u32 s{T}, 3")
    a(f"s_cselect_b32 s{mE}, {prog.WB0 + 4 * prog.WS}, s{mE}\ns_cselect_b32 s{sTmp + 2}, 0, {prog.WS}\ns_cselect_b32 s{T + 6}, 0x40000000, 0")
    a(f"v_add_u32 v{vE}, s{T + 6}, v{vE}")
    parts = cfg.pre_sp.split('|') + [''] * 20
    given = set(' '.join(parts).split()) | {'X0', 'W0'}
    L.issue(parts[0], 3, 2)
    L.lstamp()
    a(f"s_lshl_b32 s{T + 6}, s{T + 1}, 7\ns_add_u32 s{T + 6}, s{T + 6}, s{T + 4}\ns_cmp_ge_u32 s{T}, 2\ns_cselect_b32 s{T + 6}, s{T + 5}, s{T + 6}")
    a(f"v_lshl_add_u32 v6, v0, 1, s{T + 6}\nv_min_u32 v6, 1150, v6")
    a(f"s_min_u32 s{T + 6}, s{T}, 2\ns_lshl_b32 s{T + 6}, s{T + 6}, 9\ns_add_u32 s{T + 6}, s{T + 6}, {prog.TB}\nv_lshl_add_u32 v7, v0, 2, s{T + 6}")
    for j in range(18):
        if j == 6: a("s_waitcnt lgkmcnt(0)")
        L.bar({('w', j), ('x', j >> 1)})
        d = cfg.sp_ahead
        l = parts[j + 1] + auto([f"W{j + d}", f"X{(j + 3) >> 1}" + 'ba'[j & 1]], given) + (' B' if j == 0 else '')
        L.issue(l, max(3, j + 3), max(2, (j >> 1) + 2))
        if j == 4: L.bn_finish()
    L.end()

def compute_setup(a, cfg, prog):
    sp = prog.special
    a(f"s_lshr_b32 s{T}, s{S_WAVE}, 1\ns_and_b32 s{T + 1}, s{S_WAVE}, 1")
    a("v_and_b32 v60, 15, v0\nv_lshrrev_b32 v61, 4, v0")
    if sp: a(f"s_add_u32 s{S_LINE}, s{S_LINE}, s{T}")
    a(f"s_lshl_b32 s{T + 2}, s{S_LINE}, 7\ns_lshl_b32 s{T + 3}, s{T + 1}, 6\ns_add_u32 s{T + 2}, s{T + 2}, s{T + 3}")
    a(f"s_lshl_b32 s{T + 3}, s{T + 1}, 7\ns_add_u32 s{T + 3}, s{T + 3}, {prog.TB}")
    if sp:
        a(f"s_lshl_b32 s{T + 4}, s{T}, 9\ns_add_u32 s{T + 3}, s{T + 3}, s{T + 4}")
        a(f"v_lshlrev_b32 v{V_PE}, 4, v61\nv_add_u32 v{V_PE}, {prog.TB + 1024}, v{V_PE}")
    a(f"v_lshl_add_u32 v{V_PA}, v61, 4, s{T + 3}")
    a("v_and_b32 v62, 1, v61\nv_lshrrev_b32 v63, 1, v61")
    a(f"v_mul_u32_u24 v{V_OM}, {BATB}, v60\nv_lshl_add_u32 v{V_OM}, v63, 4, v{V_OM}")
    if not sp:
        a(f"v_lshl_add_u32 v{V_OM}, v62, 5, v{V_OM}\nv_lshrrev_b32 v71, 3, v60\nv_and_b32 v72, 7, v60")
        a(f"v_mul_u32_u24 v{V_OE}, {BATB}, v71\nv_mul_u32_u24 v64, {ROWB}, v72\nv_add_u32 v{V_OE}, v{V_OE}, v64")
        a(f"v_lshl_add_u32 v{V_OE}, v63, 4, v{V_OE}\nv_lshl_add_u32 v{V_OE}, v62, 5, v{V_OE}")
        a(f"s_mul_i32 s{T + 3}, s{T}, {16 * BATB}\ns_add_u32 s{S_OM}, s{S_B0}, s{T + 3}\ns_add_u32 s{S_OM}, s{S_OM}, s{T + 2}")
        a(f"s_mul_i32 s{T + 3}, s{T}, {2 * BATB}\ns_add_u32 s{S_OE}, s{S_B0}, s{T + 3}\ns_add_u32 s{S_OE}, s{S_OE}, {32 * BATB}\ns_add_u32 s{S_OE}, s{S_OE}, s{T + 2}")
        a(f"s_mul_i32 s{T + 3}, s{T}, 18\nv_mad_u32_u24 v64, v71, 9, v72\nv_add_u32 v64, s{T + 3}, v64")
        for t in range(3):
            a(f"v_add_u32 v65, {t}, v64\nv_bfe_u32 v66, v65, 1, 3\nv_xor_b32 v66, v66, v61\nv_lshlrev_b32 v66, 4, v66")
            a(f"v_lshl_add_u32 v66, v65, 7, v66\nv_add_u32 v{V_Q[0][t]}, {prog.QB0}, v66\nv_xor_b32 v{V_Q[1][t]}, 64, v{V_Q[0][t]}")
    else:
        a(f"v_mul_u32_u24 v64, {ROWB}, v62\nv_add_u32 v{V_OE}, v{V_OM}, v64\nv_lshl_add_u32 v{V_OM}, v62, 5, v{V_OM}")
        a(f"s_add_u32 s{S_OM}, s{S_B0}, s{T + 2}\ns_mul_i32 s{T + 3}, s{S_WAVE}, {2 * ROWB}\ns_add_u32 s{S_OE}, s{S_B0}, s{T + 3}")
        a(f"s_lshl_b32 s{T + 3}, s{S_M}, 5\ns_add_u32 s{S_OE}, s{S_OE}, s{T + 3}\ns_add_u32 s{S_OE}, s{S_OE}, 1024")
    a(f"s_add_u32 s{S_OM2}, s{S_OM}, {4 * ROWB}")
    a(f"v_lshrrev_b32 v64, 1, v60\nv_xor_b32 v64, v64, v61\nv_lshlrev_b32 v64, 4, v64\nv_lshl_add_u32 v{V_XA[0]}, v60, 7, v64")
    if not sp: a(f"s_mul_i32 s{T + 3}, s{T}, {prog.XBT}\nv_add_u32 v{V_XA[0]}, s{T + 3}, v{V_XA[0]}")
    a(f"v_xor_b32 v{V_XA[1]}, 64, v{V_XA[0]}")
    a("v_lshrrev_b32 v64, 2, v60\nv_and_b32 v65, 3, v60\nv_lshl_add_u32 v66, v61, 3, v64\nv_and_b32 v67, 2, v64\nv_lshl_add_u32 v67, v62, 2, v67")
    a(f"s_lshl_b32 s{T + 3}, s{T + 1}, 2\nv_lshrrev_b32 v68, 1, v65\nv_add_u32 v68, s{T + 3}, v68")
    a("v_and_b32 v69, 1, v65\nv_lshlrev_b32 v69, 3, v69\nv_lshl_add_u32 v69, v66, 7, v69")
    if sp: a(f"s_mul_i32 s{T + 3}, s{T}, 12288\ns_add_u32 s{T + 3}, s{T + 3}, {prog.WB0}\nv_add_u32 v69, s{T + 3}, v69")
    else: a(f"v_add_u32 v69, {prog.WB0}, v69")
    for c in range(2): a(f"v_add_u32 v70, {2 * c}, v68\nv_xor_b32 v70, v70, v67\nv_lshl_add_u32 v{V_WA[c]}, v70, 4, v69")
    if sp:
        a("v_lshl_add_u32 v70, v62, 2, v66\nv_lshlrev_b32 v70, 5, v70\nv_lshl_add_u32 v70, v65, 3, v70")
        a(f"v_add_u32 v{V_Q[0][0]}, {prog.WB0 + 24576}, v70\nv_xor_b32 v70, 128, v70\nv_add_u32 v{V_Q[0][1]}, {prog.WB0 + 24576}, v70")
    else:
        a("v_mov_b32 v72, 0\nv_mov_b32 v73, 0\nv_mov_b32 v74, 0\nv_mov_b32 v75, 0")
        a(f"v_lshrrev_b32 v64, 3, v0\ns_lshl_b32 s{T + 3}, s{S_WAVE}, 3\nv_add_u32 v64, s{T + 3}, v64\nv_min_u32 v64, 14, v64")
        a("v_mul_u32_u24 v65, 52, v64\nv_lshrrev_b32 v65, 8, v65\nv_mul_u32_u24 v66, 5, v65\nv_sub_u32 v66, v64, v66")
        a(f"v_mul_u32_u24 v65, {prog.QB}, v65\nv_mul_u32_u24 v66, {9 * 128}, v66\nv_add_u32 v65, v65, v66")
        a(f"v_and_b32 v66, 7, v0\nv_lshl_add_u32 v65, v66, 4, v65\nv_add_u32 v65, {prog.QB0}, v65\nds_write_b128 v65, v[72:75]")
    a(f"s_mov_b32 s{S_O + 2}, {XBYTES}\ns_mov_b32 s{S_O + 3}, 0x20000\ns_waitcnt vmcnt(0) lgkmcnt(0)")

def finish(a, cfg):
    a("L_fin:")
    stamp(a, cfg, 5)
    if cfg.echo is not None or cfg.stamps:
        a("s_waitcnt vmcnt(0)"); stamp(a, cfg, 6)
    if cfg.echo is not None:
        a(f"s_memrealtime s[80:81]\ns_waitcnt lgkmcnt(0)\ns_sub_u32 s78, s78, s76\ns_mul_i32 s78, s78, {cfg.echo[1]}")
        a(f"s_cmp_eq_u32 s2, {cfg.echo[2]}\ns_cselect_b32 s78, s78, 0")
        a("L_echo:\ns_memrealtime s[82:83]\ns_waitcnt lgkmcnt(0)\ns_sub_u32 s82, s82, s80\ns_cmp_lt_u32 s82, s78\ns_cbranch_scc1 L_echo")
    if cfg.stamps:
        a(f"s_cmp_lg_u32 s{S_WAVE}, 0\ns_cbranch_scc1 L_end\ns_memrealtime s[{S_ST + 2}:{S_ST + 3}]\ns_load_dwordx2 s[4:5], s[0:1], 64\ns_waitcnt lgkmcnt(0)")
        for i in range(4): a(f"v_mov_b32 v{16 + i}, s{S_ST + i}")
        for i in range(1, 7): a(f"s_sub_u32 s{T}, s{S_ST + 4 + 2 * i}, s{S_ST + 4}\nv_mov_b32 v{18 + 2 * i}, s{T}\nv_mov_b32 v{19 + 2 * i}, 0")
        a(f"s_mul_i32 s{T}, s2, 64\nv_mov_b32 v32, s{T}\nv_cmp_eq_u32 vcc, 0, v0\ns_and_saveexec_b64 s[6:7], vcc")
        for i in range(4): a(f"global_store_dwordx4 v32, v[{16 + 4 * i}:{19 + 4 * i}], s[4:5] offset:{16 * i}")

def gen(cfg):
    a = A()
    a.L.append(open('standalone__batchnorm__sampling.s.ref').read().split('; Override')[0].rstrip())
    a.L.append("; @launch grid=(256,1,1) block=(512,1,1) lds=163840")
    a(f'.amdgcn_target "amdgcn-amd-amdhsa--gfx950"\n.text\n.globl {KNAME}\n.p2align 8\n.type {KNAME},@function\n{KNAME}:')
    pu, sp = Prog(False), Prog(True)
    stamp(a, cfg, 0)
    a("s_cmp_ge_u32 s2, 256\ns_cbranch_scc1 L_end")
    a(f"s_load_dwordx2 s[{S_W}:{S_W + 1}], s[0:1], 8\ns_load_dwordx2 s[{S_X}:{S_X + 1}], s[0:1], 0")
    a(f"s_load_dwordx8 s[8:15], s[0:1], 16\ns_load_dwordx2 s[{S_O}:{S_O + 1}], s[0:1], 48")
    a(f"s_lshr_b32 s{T + 1}, s2, 3")
    if cfg.cpfn:
        a(f"s_getpc_b64 s[58:59]\nL_pc:\ns_and_b32 s{T}, s{T + 1}, {cfg.cpfg - 1}\ns_mul_i32 s{T}, s{T}, {cfg.cpfn * 128}")
        a(f"v_lshl_add_u32 v1, v0, 7, s{T}\nv_min_u32 v1, L_end-L_pc, v1")
        a(f"v_cmp_gt_u32 vcc, {cfg.cpfn}, v0\ns_and_saveexec_b64 s[60:61], vcc\ns_cbranch_execz L_nopf")
        a("global_load_dword v254, v1, s[58:59]\nL_nopf:\ns_mov_b64 exec, s[60:61]")
    a(f"v_lshrrev_b32 v1, 6, v0\nv_and_b32 v0, 63, v0\ns_and_b32 s{T}, s2, 7\nv_readfirstlane_b32 s{S_WAVE}, v1")
    a(f"s_lshr_b32 s{S_M}, s{T}, 1\ns_and_b32 s{T}, s{T}, 1\ns_lshl_b32 s{T}, s{T}, 5\ns_add_u32 s{S_T}, s{T}, s{T + 1}")
    a(f"s_mul_i32 s{S_R}, s{S_T}, 57\ns_lshr_b32 s{S_R}, s{S_R}, 9\ns_mul_i32 s{T}, s{S_R}, 9\ns_sub_u32 s{S_LINE}, s{S_T}, s{T}")
    a(f"s_mul_i32 s{T}, s{S_M}, 7\ns_add_u32 s{S_R}, s{S_R}, s{T}\ns_lshl_b32 s{T}, s{S_M}, 1")
    a(f"s_cmp_eq_u32 s{S_T}, 63\ns_cselect_b32 s{S_LINE}, s{T}, s{S_LINE}\ns_cselect_b32 s{S_R}, 28, s{S_R}\ns_cselect_b32 s{S_SP}, 1, 0")
    a(f"s_mul_i32 s{S_B0}, s{S_R}, {36 * BATB}\ns_mov_b32 s{S_C}, {NLOG2E:#x}\ns_mov_b32 s{S_C + 1}, s{S_C}")
    a(f"s_cmp_ge_u32 s{S_WAVE}, 4\ns_cbranch_scc0 L_comp")
    a(f"s_sub_u32 s{T}, s{S_WAVE}, 4\ns_and_b32 s{T + 1}, s{T}, 1\ns_lshr_b32 s{T + 2}, s{T}, 1\ns_lshl_b32 s{T + 3}, s{T + 1}, 2")
    a(f"v_lshrrev_b32 v10, 3, v0\nv_and_b32 v11, 7, v0\nv_lshrrev_b32 v12, 1, v10\nv_xor_b32 v11, s{T + 3}, v11")
    a(f"v_and_b32 v13, 2, v10\nv_xor_b32 v13, v13, v11\nv_mul_u32_u24 v14, {ROWB}, v10\nv_lshl_add_u32 v{vW}, v13, 4, v14")
    a(f"v_xor_b32 v13, v12, v11\nv_mul_u32_u24 v15, {BATB}, v10\nv_lshl_add_u32 v{vXm}, v13, 4, v15")
    a(f"s_mul_i32 s{sW}, s{T}, {8 * ROWB}\ns_lshl_b32 s{T + 4}, s{S_LINE}, 7\ns_add_u32 s{sW}, s{sW}, s{T + 4}")
    a(f"s_mul_i32 s{sXm}, s{T + 1}, {8 * BATB}\ns_add_u32 s{sXm}, s{sXm}, s{S_B0}")
    a(f"s_mov_b32 s{T + 3}, {pu.WB0}\ns_mov_b32 s{T + 5}, {16 * BATB}\ns_mov_b32 s{T + 6}, {pu.XBT}\ns_cmp_eq_u32 s{S_SP}, 1")
    a(f"s_cselect_b32 s{T + 3}, {sp.WB0}, s{T + 3}\ns_cselect_b32 s{T + 5}, {4 * ROWB}, s{T + 5}\ns_cselect_b32 s{T + 6}, 8192, s{T + 6}")
    a(f"s_lshl_b32 s{mW}, s{T}, 10\ns_add_u32 s{mW}, s{mW}, s{T + 3}\ns_mul_i32 s{T + 5}, s{T + 5}, s{T + 2}\ns_add_u32 s{sXm}, s{sXm}, s{T + 5}")
    a(f"s_mul_i32 s{T + 6}, s{T + 6}, s{T + 2}\ns_lshl_b32 s{mXm}, s{T + 1}, 10\ns_add_u32 s{mXm}, s{mXm}, s{T + 6}")
    a(f"s_mov_b32 s{S_W + 2}, {WBYTES}\ns_mov_b32 s{S_W + 3}, 0x20000\ns_mov_b32 s{S_X + 2}, {XBYTES}\ns_mov_b32 s{S_X + 3}, 0x20000")
    H = Loader(A(), cfg, pu); H.w(0); H.x(0, 0)
    for x in H.a.L[:2]: a(x)
    a("s_waitcnt lgkmcnt(0)")
    if cfg.stamps: Loader(a, cfg, pu).lstamp()
    for x in H.a.L[2:]: a(x)
    a(f"s_cmp_eq_u32 s{S_SP}, 1\ns_cbranch_scc1 L_sp_ld")
    loader_pure(a, cfg, pu, H.seq)
    a(f"L_comp:\ns_cmp_eq_u32 s{S_SP}, 1\ns_cbranch_scc1 L_sp_comp")
    compute_setup(a, cfg, pu)
    stamp(a, cfg, 1); a("s_barrier"); stamp(a, cfg, 2)
    compute_pure(a, cfg, pu)
    finish(a, cfg)
    a("s_endpgm\nL_sp_ld:")
    loader_special(a, cfg, sp, H.seq)
    a("L_sp_comp:")
    compute_setup(a, cfg, sp)
    for wv in range(1, 4): a(f"s_cmp_eq_u32 s{S_WAVE}, {wv}\ns_cbranch_scc1 L_sp{wv}_go")
    for wv in range(4):
        a(f"L_sp{wv}_go:")
        stamp(a, cfg, 1); a("s_barrier"); stamp(a, cfg, 2)
        compute_special(a, cfg, sp, wv)
        a("s_branch L_fin" if cfg.stamps or cfg.echo else "s_endpgm")
    a("L_end:\ns_endpgm")
    a(f""".section .rodata,"a"
.p2align 6
.amdhsa_kernel {KNAME}
  .amdhsa_next_free_vgpr 256
  .amdhsa_next_free_sgpr 102
  .amdhsa_accum_offset 256
  .amdhsa_group_segment_fixed_size 0
  .amdhsa_kernarg_size 72
  .amdhsa_user_sgpr_count 2
  .amdhsa_user_sgpr_kernarg_segment_ptr 1
  .amdhsa_system_sgpr_workgroup_id_x 1
  .amdhsa_float_denorm_mode_32 3
.end_amdhsa_kernel""")
    return a.text() + '\n'

if __name__ == '__main__':
    ap = argparse.ArgumentParser()
    ap.add_argument('-o', default='k.s')
    ap.add_argument('opts', nargs='*')
    args = ap.parse_args()
    kw = {}
    for o in args.opts:
        k, v = o.split('=', 1)
        try: v = eval(v)
        except Exception: pass
        kw[k] = v
    open(args.o, 'w').write(gen(Cfg(**kw)))
```

```python
import sys, argparse, re

KNAME = "standalone__batchnorm__sampling_kernel"
ROWB, BATB, TAPB = 1152, 9216, 663552
XBYTES, WBYTES = 9437184, 1990656
NLOG2E = 0xbfb8aa3b

class Cfg:
    def __init__(self, **kw):
        self.stamps = False; self.lst = False; self.echo = None; self.verbose = False
        self.stflags = 'sc1'
        self.cpfg, self.cpfn = 8, 52
        self.wpf = False; self.xspf = True; self.xrot = True; self.wrot = True
        self.qlate = {2: 'Q5 Q6', 4: 'Q7 Q8'}
        self.pre = 'W1 X0b / X1 | W2 W3 X2 | P'
        self.pre_sp = 'W0b W1 X1a'
        self.sp_ahead = 2
        self.barv, self.barw, self.rw = 76, 36, (6,)
        self.lookf, self.npre = 26, 12
        self.lead4, self.bar16, self.budget4, self.epk = 3, 8, 8, 5
        self.rd_span, self.lead, self.budget, self.epk_sp = 36, 2, 8, 3
        self.maxld, self.urgent, self.aged = 1, 10, 10
        self.cvtcost = 4
        self.spearly = True
        self.v0b = 16
        self.zig = True
        self.refresh = 4
        self.xpos, self.xpos_sp = 8, 8
        for k in kw: assert hasattr(self, k), k
        self.__dict__.update(kw)

class A:
    def __init__(self): self.L = []
    def __call__(self, s):
        for l in s.split('\n'):
            l = l.strip()
            if l: self.L.append(l)
    def text(self):
        return '\n'.join((l if l.endswith(':') or l[0] in '.;' else '  ' + l) for l in self.L)

V_XA = [2, 1]
V_Q = [[3, 4, 5], [11, 12, 13]]
V_WA = [6, 7]
V_OM, V_OE, V_PA, V_PE = 8, 9, 10, 11
SETB = [16, 84]
def XF(s, p): return SETB[s] + 4 * p
def EF(s, t): return SETB[s] + 32 + 4 * t
def WF(s, c, t): return SETB[s] + 44 + 4 * (3 * c + t)
ACC = 152
def TILE(p, c): return ACC + 4 * (2 * p + c)
PS = 224
def P_S(c): return PS + 4 * c
def P_B(c): return PS + 8 + 4 * c
PE_S, PE_B, TMPE = 240, 244, 248
def r4(b): return f"v[{b}:{b+3}]"
def r2(b): return f"v[{b}:{b+1}]"
S_X, S_W, S_O = 20, 24, 28
S_WAVE, S_SP, S_M, S_T, S_R, S_LINE, S_B0 = 33, 35, 36, 37, 38, 39, 40
T = 41
S_OM, S_OM2, S_OE, S_DX, S_DW, S_CNT, S_XOFF, S_XBP, S_C = 48, 49, 50, 51, 52, 53, 54, 55, 56
sXm, sXq, sW, mXm, mXq, mW, sE, mE, sTmp = 62, 63, 64, 65, 66, 67, 68, 69, 70
XR_S = [44, 45, 46, 47, 48, 49, 50, 51]; XR_M = [52, 53, 54, 55, 58, 59, 60, 61]
WR_S = [74, 75, 92]; WR_M = [93, 100, 101]
S_ST = 76

class Prog:
    def __init__(self, special):
        self.special = special
        self.name = 'sp' if special else 'pu'
        if not special:
            self.XB, self.XBT, self.QB0, self.QB = 16384, 49152, 98304, 4864
            self.WB0, self.WS = 112896, 12288
            self.TB = self.WB0 + 4 * self.WS
        else:
            self.XB, self.WB0, self.WS = 16384, 49152, 27648
            self.TB = self.WB0 + 4 * self.WS + 1024

def stamp(a, cfg, i):
    if cfg.echo is not None:
        if i == 0: a("s_memrealtime s[76:77]")
        if i == cfg.echo[0]: a("s_memrealtime s[78:79]")
    if cfg.stamps:
        if i == 0: a(f"s_memrealtime s[{S_ST}:{S_ST + 1}]")
        a(f"s_memtime s[{S_ST + 4 + 2 * i}:{S_ST + 5 + 2 * i}]")
def stamp_l(cfg, i):
    t = A(); stamp(t, cfg, i); return t.L

def epi_stream(prog, cfg, R0, order=tuple(range(9))):
    out, pend = [], []
    for n, p in enumerate(order):
        R = R0 if n == 0 else TILE(order[n - 1], 0)
        Tt, e = [TILE(p, 0), TILE(p, 1)], [TMPE, TMPE + 4]
        ps = [PE_S] * 2 if p == 8 and prog.special else [P_S(0), P_S(1)]
        pb = [PE_B] * 2 if p == 8 and prog.special else [P_B(0), P_B(1)]
        if n >= (cfg.epk_sp if prog.special else cfg.epk):
            fma = lambda c: [(f"v_pk_fma_f32 {r2(Tt[c] + i)}, {r2(Tt[c] + i)}, {r2(ps[c] + i)}, {r2(pb[c] + i)}", 4) for i in (0, 2)]
            fmu = lambda c: [(f"v_pk_fma_f32 {r2(e[c] + i)}, {r2(e[c] + i)}, s[{S_C}:{S_C + 1}], s[{S_C}:{S_C + 1}]", 4) for i in (0, 2)]
            mul = lambda c: [(f"v_pk_mul_f32 {r2(Tt[c] + i)}, {r2(Tt[c] + i)}, {r2(e[c] + i)}", 4) for i in (0, 2)]
        else:
            fma = lambda c: [(f"v_fma_f32 v{Tt[c] + i}, v{Tt[c] + i}, v{ps[c] + i}, v{pb[c] + i}", 4) for i in range(4)]
            fmu = lambda c: [(f"v_fma_f32 v{e[c] + i}, v{e[c] + i}, s{S_C}, s{S_C}", 4) for i in range(4)]
            mul = lambda c: [(f"v_mul_f32 v{Tt[c] + i}, v{Tt[c] + i}, v{e[c] + i}", 4) for i in range(4)]
        exp = lambda c: [(f"v_exp_f32 v{e[c] + i}, v{Tt[c] + i}", 8) for i in range(4)]
        rcp = lambda c: [(f"v_rcp_f32 v{e[c] + i}, v{e[c] + i}", 8) for i in range(4)]
        cvt = lambda c: [(f"v_cvt_pk_bf16_f32 v{R + 2 * c + i}, v{Tt[c] + 2 * i}, v{Tt[c] + 2 * i + 1}", cfg.cvtcost) for i in range(2)]
        ops = fma(0) + exp(0) + fma(1) + exp(1) + fmu(0) + rcp(0) + fmu(1) + rcp(1) + mul(0) + cvt(0) + mul(1) + cvt(1)
        ops = [(t, c, []) for t, c in ops]
        ops[-1] = (ops[-1][0], ops[-1][1], [Tt[1]] if n < 8 else [])
        if n >= 2: ops[3] = (ops[3][0], ops[3][1], [TILE(order[n - 2], 0)])
        out.append(ops[:2] + pend + ops[2:])
        so = f"s{S_OM} offen offset:{p * ROWB}" if p < 4 else f"s{S_OM2} offen offset:{(p - 4) * ROWB}" if p < 8 else f"s{S_OE} offen"
        pend = [(f"v_permlane16_swap_b32 v{R}, v{R + 2}", 8, []), (f"v_permlane16_swap_b32 v{R + 1}, v{R + 3}", 8, []),
                (f"buffer_store_dwordx4 {r4(R)}, v{V_OM if p < 8 else V_OE}, s[{S_O}:{S_O + 3}], {so} {cfg.stflags}", 4, [])]
    out[-1] += [("s_nop 1", 8, [])] + pend
    return out

class Sched:
    def __init__(self, cfg):
        self.cfg, self.out, self.reg, self.free = cfg, [], {}, []
        self.nds = self.done = self.nm = 0
        self.ldpos, self.dsat, self.report = {}, [], []
    def emit(self, x):
        self.out.append(x)
        if x.startswith('ds_'): self.nds += 1; self.dsat.append(self.nm)
        if x.startswith('v_mfma'): self.nm += 1
    def need(self, keys):
        k = max([self.ldpos.get(x, 0) for x in keys] + [0])
        if k > self.done:
            k = max(k, sum(1 for m in self.dsat if m <= self.nm - self.cfg.aged))
            n = min(self.nds - k, 15)
            self.emit(f"s_waitcnt lgkmcnt({n})")
            self.done = self.nds - n
    def run(self, mf, loads, bars, pre, epi, budget, look, czero=False, fixed={}, release=False, mark=[], retire=None, order=tuple(range(9))):
        cfg = self.cfg
        first, last, lastm, pos_last, seen = {}, {}, {}, {}, set()
        for i, m in enumerate(mf):
            for k in (m[1], m[2]): first.setdefault(k, i); last[k] = i
            if m[4]: lastm[m[3]] = i
        st = dict(ld=0, sub=[], key=None, ep=0, ei=0, i=-1)
        def try_load(i):
            if not st['sub']:
                if st['ld'] >= len(loads): return False
                key, mingap, fn, latest = loads[st['ld']]
                if i < mingap or i < min(first.get(key, 0) - look, latest): return False
                if key in fixed: r = fixed[key]
                elif not self.free: return False
                else: r = self.free.pop(0)
                self.reg[key] = r; st['sub'] = list(fn(r)); st['key'] = key; st['ld'] += 1
                self.report.append((key, first.get(key, 0) - i))
            self.emit(st['sub'].pop(0))
            if not st['sub']: self.ldpos[st['key']] = self.nds
            return True
        def emit_epi(b, final=False):
            spent = 0
            while epi and st['ep'] < len(epi) and (final or spent < b):
                p = st['ep']
                if order[p] not in pos_last: break
                if st['ei'] == 0:
                    if any(l[0][0] == 'P' and l[0] not in self.ldpos for l in loads): assert not final; break
                    if retire: assert not ({self.reg[k] for k in self.reg if last.get(k, -1) > st['i']} & set(retire[1]))
                    dist = len(self.out) - pos_last[order[p]] - 1
                    if dist < 8:
                        if not final: break
                        self.emit(f"s_nop {8 - dist - 1}")
                    self.need([k for k in self.ldpos if k[0] == 'P'])
                txt, cost, frees = epi[p][st['ei']]
                self.emit(txt); spent += cost; self.free += frees
                st['ei'] += 1
                if st['ei'] == len(epi[p]): st['ep'] += 1; st['ei'] = 0
        while try_load(-1): pass
        for i, (tile, ak, bk, pair, final) in enumerate(mf):
            while ak not in self.ldpos and ak not in self.given or bk not in self.ldpos and bk not in self.given:
                assert try_load(i - 1), ('fragment cannot be loaded in time', ak, bk, i)
            st['i'] = i
            self.need([ak, bk])
            c = '0' if czero and tile not in seen else r4(tile)
            seen.add(tile)
            self.emit(f"v_mfma_f32_16x16x32_bf16 {r4(tile)}, {r4(self.reg[ak])}, {r4(self.reg[bk])}, {c}")
            if lastm.get(pair) == i: pos_last[pair] = len(self.out) - 1
            if release: self.free += [self.reg[k] for k in (ak, bk) if last[k] == i]
            if retire and i >= retire[0]: self.free = [r for r in self.free if r not in retire[1]]
            if i in bars:
                for k in bars[i]: assert k in self.ldpos, ('not read before the barrier', k, i)
                self.need(bars[i]); self.emit("s_barrier")
            spent = nl = 0
            for x in pre.get(i, []):
                assert not x.startswith('v_add') or (st['ld'] == len(loads) and not st['sub']), 'address advanced under pending reads'
                self.emit(x); spent += 4
            while spent < 8 and try_load(i):
                spent += 4; nl += 1
                nk = st['key'] if st['sub'] else (loads[st['ld']][0] if st['ld'] < len(loads) else None)
                if nl >= cfg.maxld and first.get(nk, 10 ** 6) - i > cfg.urgent: break
            if spent < budget: emit_epi(budget - spent)
        while try_load(10 ** 6): pass
        self.out += mark
        emit_epi(0, True)
    given = ()

def group(prog, wv, steps, p, final, zig=False):
    out = []
    for c in range(2):
        if p < 8: items = [(('W', s, c, t), ('X', s, p + t - 1)) for t in range(3) if 0 <= p + t - 1 < 8 for s in steps]
        elif not prog.special: items = [(('W', s, c, t), ('E', s, t)) for t in range(3) for s in steps]
        else: items = [(('E', s, t), ('X', s, 2 * wv + c + t - 1)) for t in range(3) if 0 <= 2 * wv + c + t - 1 < 8 for s in steps]
        if zig and c == 1: items = items[::-1]
        out += [(TILE(p, c), ak, bk, p, final) for ak, bk in items]
    return out

def wavefront(prog, wv, A_, B_, lead, zig=False, po=tuple(range(9))):
    order = [(A_, po[n]) for n in range(lead)]
    for n in range(9):
        order.append((B_, po[n]))
        if n + lead < 9: order.append((A_, po[n + lead]))
    return [m for st, p in order for m in group(prog, wv, st, p, st is B_, zig)]

def ld_fn(prog, key, half, xoff, qoff, woff):
    if key[0] == 'X': return lambda r: [f"ds_read_b128 {r4(r)}, v{V_XA[half]} offset:{xoff + key[2] * 2048}"]
    if key[0] == 'W':
        o = woff + key[3] * 4096
        return lambda r: [f"ds_read_b64_tr_b16 {r2(r)}, v{V_WA[key[2]]} offset:{o}", f"ds_read_b64_tr_b16 {r2(r + 2)}, v{V_WA[key[2]]} offset:{o + 512}"]
    if not prog.special: return lambda r: [f"ds_read_b128 {r4(r)}, v{V_Q[half][key[2]]} offset:{qoff}"]
    o = woff + key[2] * 1024
    return lambda r: [f"ds_read_b64_tr_b16 {r2(r)}, v{V_Q[0][0]} offset:{o}", f"ds_read_b64_tr_b16 {r2(r + 2)}, v{V_Q[0][1]} offset:{o}"]

def param_loads(prog):
    t = []
    for c in range(2):
        t += [f"ds_read_b128 {r4(P_S(c))}, v{V_PA} offset:{64 * c}", f"ds_read_b128 {r4(P_B(c))}, v{V_PA} offset:{64 * c + 256}"]
    if prog.special: t += [f"ds_read_b128 {r4(PE_S)}, v{V_PE}", f"ds_read_b128 {r4(PE_B)}, v{V_PE} offset:256"]
    return [(('P', n), 0, (lambda x: (lambda r: [x]))(x), 10 ** 6) for n, x in enumerate(t)], {('P', n): 0 for n in range(len(t))}

def compute_pure(a, cfg, prog):
    mf, start = [], {}
    for t in range(7):
        start[t] = len(mf)
        for p in range(9): mf += group(prog, None, [2 * t, 2 * t + 1], p, False, cfg.zig)
    start[7] = nb = len(mf)
    po = list(range(8)); po.insert(cfg.xpos, 8)
    mf += wavefront(prog, None, [14, 15], [16, 17], cfg.lead4, False, po)
    first = {}
    for i, m in enumerate(mf):
        for k in (m[1], m[2]): first.setdefault(k, i)
    vis = {0: -1, 8: nb + cfg.bar16}
    for t in range(1, 8): vis[t] = start[t - 1] + cfg.barv
    bars = {}
    for t in range(1, 9):
        bars[vis[t]] = [k for k in first if k[1] >> 1 == t - 1 and (t <= 6 or (t == 7 and k[0] == 'W' and 6 not in cfg.rw))]
    for t in cfg.rw:
        bars[start[t] + cfg.barw] = [k for k in first if k[0] == 'W' and k[1] >> 1 == t]
    if cfg.v0b is not None: bars[cfg.v0b] = []
    loads = []
    for n, k in enumerate(sorted(first, key=lambda k: first[k])):
        t = k[1] >> 1
        latest = vis[t + 1] - 10 if t <= 6 else 10 ** 6
        if k[0] == 'W' and t in cfg.rw: latest = min(latest, start[t] + cfg.barw - 10)
        mg = vis[t] if t or n < cfg.npre else 0
        if cfg.v0b is not None and t == 0 and (k[0] == 'E' or (k[0] == 'X' and k[2] >= 4)): mg = cfg.v0b
        loads.append((k, mg, ld_fn(prog, k, k[1] & 1, (t % 3) * prog.XB, (t % 3) * prog.QB, (k[1] & 3) * prog.WS), latest))
    for i in range(len(loads) - 2, -1, -1):
        if loads[i][3] > loads[i + 1][3]: loads[i] = loads[i][:3] + (loads[i + 1][3],)
    pl, fx = param_loads(prog)
    k = max(i for i, l in enumerate(loads) if l[0][0] == 'W' and l[0][1] < 16)
    loads = loads[:k + 1] + pl + loads[k + 1:]
    sc = Sched(cfg)
    sc.free = [16 + 4 * i for i in range(34)] + [PE_B, TMPE, TMPE + 4]
    sc.run(mf, loads, bars, {nb - 1: stamp_l(cfg, 3)}, epi_stream(prog, cfg, PE_S, po), cfg.budget4, cfg.lookf, czero=True, fixed=fx,
           release=True, mark=stamp_l(cfg, 4), retire=(vis[7], [TMPE, TMPE + 4]), order=po)
    if cfg.verbose: print('pu load distance', sorted([r for r in sc.report if r[0][0] in 'XWE' and r[0][1] > 1], key=lambda z: z[1])[:10], file=sys.stderr)
    for x in sc.out: a(x)

def key_order(s):
    return [('W', s, 0, 1), ('X', s, 0), ('W', s, 0, 2), ('X', s, 1), ('W', s, 1, 2), ('W', s, 1, 1), ('W', s, 0, 0), ('X', s, 2),
            ('W', s, 1, 0)] + [('X', s, p) for p in range(3, 8)] + [('E', s, t) for t in range(3)]
def set_regs(s, step):
    d = {('X', step, p): XF(s, p) for p in range(8)}
    d.update({('E', step, t): EF(s, t) for t in range(3)})
    d.update({('W', step, c, t): WF(s, c, t) for c in range(2) for t in range(3)})
    return d

def compute_special(a, cfg, prog, wv):
    n, XB, WS, BIG = f"sp{wv}", prog.XB, prog.WS, 10 ** 6
    a(f"s_mov_b32 s{S_CNT}, 7\ns_mov_b32 s{S_XOFF}, 1\ns_mov_b32 s{S_DW}, {2 * WS}\ns_mov_b32 s{S_XBP}, {XB}\ns_mov_b32 s{S_DX}, {XB}")
    stage = [f"v_add_u32 v{r}, s{S_DX}, v{r}" for r in V_XA] + [f"v_add_u32 v{r}, s{S_DW}, v{r}" for r in V_WA + V_Q[0][:2]] + [
        f"s_cmp_eq_u32 s{S_XOFF}, 2", f"s_cselect_b32 s{S_DX}, {(-2 * XB) & 0xffffffff}, s{S_XBP}",
        f"s_cselect_b32 s{S_XOFF}, -1, s{S_XOFF}", f"s_add_u32 s{S_XOFF}, s{S_XOFF}, 1", f"s_sub_u32 s{S_DW}, 0, s{S_DW}"]
    def spread(l, i0):
        d = {}
        for i, x in enumerate(l): d.setdefault(i0 + i // 2, []).append(x)
        return d
    def step_loads(step, g0, span):
        ko = key_order(step)
        return [(k, g0 + (i * span) // len(ko), ld_fn(prog, k, step & 1, 0, 0, (step & 1) * WS), BIG) for i, k in enumerate(ko)]
    def step(s, nxt, g1, pre, head=[], czero=False):
        sc = Sched(cfg)
        fx = set_regs(s & 1, s); fx.update(set_regs(nxt & 1, nxt))
        if not head:
            sc.reg.update(fx); sc.given = set(set_regs(s & 1, s)); a("s_waitcnt lgkmcnt(0)")
        mf = [m for p in range(9) for m in group(prog, wv, [s], p, False, True)]
        sc.run(mf, head + step_loads(nxt, g1, cfg.rd_span), {g1: [l[0] for l in head]}, pre, None, 0, BIG, czero=czero, fixed=fx)
        for x in sc.out: a(x)
    step(0, 1, 3, spread(stage, cfg.rd_span + 4), head=step_loads(0, -1, 0), czero=True)
    a(f"L_{n}_loop:")
    step(1, 2, 0, {})
    step(2, 3, 0, spread(stage + [f"s_sub_u32 s{S_CNT}, s{S_CNT}, 1", f"s_cmp_lg_u32 s{S_CNT}, 0"], cfg.rd_span + 1))
    a(f"s_cbranch_scc1 L_{n}_loop")
    stamp(a, cfg, 3)
    a("s_waitcnt lgkmcnt(0)")
    sc = Sched(cfg)
    sc.reg.update(set_regs(1, 15)); sc.given = set(set_regs(1, 15))
    sc.free = [SETB[0] + 4 * i for i in range(17)]
    mf = [m for p in range(9) for m in group(prog, wv, [15], p, False, True)]
    nb = len(mf)
    po = list(range(8)); po.insert(cfg.xpos_sp, 8)
    mf += wavefront(prog, wv, [16], [17], cfg.lead, True, po)
    pl, fx = param_loads(prog)
    sc.run(mf, step_loads(16, 0, cfg.rd_span) + pl + step_loads(17, nb, 0), {0: [], nb: []}, {}, epi_stream(prog, cfg, 12, po), cfg.budget, BIG,
           fixed=fx, release=True, mark=stamp_l(cfg, 4), order=po)
    for x in sc.out: a(x)

vXm, vXq, vW, vE = 2, 3, 4, 5
class Loader:
    def __init__(self, a, cfg, prog):
        self.a, self.cfg, self.prog = a, cfg, prog
        self.seq, self.rot, self.xstate, self.lg = [], False, {}, 0
    def lstamp(self):
        if self.cfg.stamps and self.cfg.lst and self.lg < 64:
            self.a(f"s_memtime s[94:95]\ns_waitcnt lgkmcnt(0)\ns_sub_u32 s94, s94, s{S_ST + 4}\nv_writelane_b32 v40, s94, {self.lg}")
            self.lg += 1
    def dma(self, v, srd, sbase, soff, mbase, moff, tag):
        self.a(f"s_add_u32 m0, s{mbase}, {moff}\ns_add_u32 s{sTmp}, s{sbase}, {soff}\nbuffer_load_dwordx4 v{v}, s[{srd}:{srd + 3}], s{sTmp} offen lds")
        self.seq.append(tag)
    def x(self, t, part=None):
        p = self.prog
        ns = 4 if p.special else 8
        rng = range(ns) if part is None else range(ns // 2) if part == 0 else range(ns // 2, ns)
        assert self.xstate.setdefault(t, self.rot) == self.rot
        for s in rng:
            if self.rot and self.cfg.xrot: self.dma(vXm, S_X, XR_S[s], t * 128, XR_M[s], (t % 3) * p.XB, ('x', t))
            else: self.dma(vXm, S_X, sXm, s * ROWB + t * 128, mXm, (t % 3) * p.XB + s * 2048, ('x', t))
        if not p.special and part != 0: self.dma(vXq, S_X, sXq, t * 128, mXq, (t % 3) * p.QB, ('x', t))
    def w(self, j, part=None):
        p = self.prog
        buf = (j & 3) * p.WS
        for k, tap in enumerate((1, 2, 0)):
            if self.rot and self.cfg.wrot: self.dma(vW, S_W, WR_S[k], j * 32 * ROWB, WR_M[k], buf, ('w', j)); continue
            if part != 1: self.dma(vW, S_W, sW, tap * TAPB + j * 32 * ROWB, mW, buf + tap * 4096, ('w', j))
            if p.special and part != 0: self.dma(vW, S_W, sW, tap * TAPB + j * 32 * ROWB + 128, mW, buf + 12288 + tap * 4096, ('w', j))
        if p.special and part != 0:
            self.a(f"s_mul_i32 s{sTmp + 1}, s{sTmp + 2}, {j & 3}\ns_add_u32 m0, s{mE}, s{sTmp + 1}\ns_add_u32 s{sTmp}, s{sE}, {j * 32 * ROWB}")
            self.a(f"buffer_load_dwordx4 v{vE}, s[{S_W}:{S_W + 3}], s{sTmp} offen lds")
            self.seq.append(('w', j))
    def issue(self, l, relw, relx):
        a, cfg = self.a, self.cfg
        if cfg.verbose: print(self.prog.name, l, file=sys.stderr)
        for it in l.split():
            part = 'ab'.index(it[-1]) if it[-1] in 'ab' else None
            if it == 'B':
                for i, sp in enumerate((8, 10, 12, 14)):
                    a(f"global_load_ushort v{20 + i}, v6, s[{sp}:{sp + 1}]"); self.seq.append(('b', 0))
            elif it == 'P':
                if cfg.wpf: a(f"buffer_load_dword v30, v8, s[{S_W}:{S_W + 3}], 0 offen"); self.seq.append(('p', 0))
                if cfg.xspf: a(f"buffer_load_dword v31, v9, s[{S_X}:{S_X + 3}], 0 offen"); self.seq.append(('p', 0))
            elif it == 'C':
                a("global_load_dword v30, v18, s[96:97]"); self.seq.append(('p', 0))
            elif it[0] == 'Q':
                a(f"s_add_u32 s{sTmp}, s72, {int(it[1:]) * 128}\nbuffer_load_dword v30, v17, s[{S_X}:{S_X + 3}], s{sTmp} offen"); self.seq.append(('p', 0))
            else:
                n = int(it.rstrip('ab')[1:])
                assert n <= (relw if it[0] == 'W' else relx), ('slot still in use', it)
                (self.w if it[0] == 'W' else self.x)(n, part)
    def wait(self, need):
        for t in need:
            full = 4 if t[0] == 'b' else ((7, 4) if self.prog.special else (3, 9))[t[0] == 'x']
            assert self.seq.count(t) == full, t
        self.a(f"s_waitcnt vmcnt({len(self.seq) - 1 - max(i for i, t in enumerate(self.seq) if t in need)})")
    def bn_finish(self):
        a = self.a
        self.wait({('b', 0)})
        for i in range(4): a(f"v_lshlrev_b32 v{20 + i}, 16, v{20 + i}")
        a("v_add_f32 v21, 0x3727c5ac, v21\nv_rsq_f32 v21, v21\ns_nop 0\nv_mul_f32 v21, v21, v22\nv_fma_f32 v23, -v20, v21, v23")
        a(f"v_mul_f32 v21, s{S_C}, v21\nv_mul_f32 v23, s{S_C}, v23\nds_write_b32 v7, v21\nds_write_b32 v7, v23 offset:256")
    def bar(self, need):
        if need: self.wait(need)
        self.lstamp(); self.a("s_barrier"); self.lstamp()
    def end(self):
        a = self.a
        nw, nx = (7, 4) if self.prog.special else (3, 9)
        assert sum(t[0] == 'w' for t in self.seq) == 18 * nw and sum(t[0] == 'x' for t in self.seq) == 9 * nx
        if self.cfg.stamps and self.cfg.lst:
            a(f"s_cmp_lg_u32 s{S_WAVE}, 4\ns_cbranch_scc1 L_end\ns_load_dwordx2 s[4:5], s[0:1], 64\ns_waitcnt lgkmcnt(0)")
            a(f"s_lshl_b32 s{T}, s2, 9\ns_add_u32 s{T}, s{T}, 0x100000\nv_lshl_add_u32 v41, v0, 2, s{T}\nglobal_store_dword v41, v40, s[4:5]")
        a("s_endpgm")

def auto(items, given):
    out = []
    for it in items:
        base = it.rstrip('ab')
        if it in given or base in given or (it == base and base + 'a' in given): continue
        if int(base[1:]) < (18 if it[0] == 'W' else 9): out.append(it)
    return ' ' + ' '.join(out)

def loader_pure(a, cfg, prog, head):
    L = Loader(a, cfg, prog); L.seq = list(head); L.xstate[0] = False; L.lg = 1
    a(f"s_mul_i32 s{T + 5}, s{T}, 9\ns_add_u32 s{T + 5}, s{T + 5}, 1")
    a(f"v_add_u32 v13, s{T + 5}, v10\nv_bfe_u32 v13, v13, 1, 3\nv_and_b32 v12, 7, v0\nv_xor_b32 v13, v13, v12\nv_lshl_add_u32 v{vXq}, v13, 4, v14")
    a(f"s_lshl_b32 s{mXq}, s{T + 5}, 7\ns_add_u32 s{mXq}, s{mXq}, {prog.QB0}")
    a(f"s_add_u32 s{T + 5}, s{T}, 32\ns_mul_i32 s{T + 5}, s{T + 5}, {BATB}\ns_add_u32 s{sXq}, s{T + 5}, s{S_B0}")
    parts = cfg.pre.split('|') + [''] * 12
    given = set(' '.join(parts).replace('/', ' ').split())
    if cfg.v0b is not None:
        p0, p1 = parts[0].split('/')
        L.issue(p0, 3, 2)
        idx = [i for i, t_ in enumerate(L.seq) if t_ in (('w', 0), ('w', 1))] + [i for i, t_ in enumerate(L.seq) if t_ == ('x', 0)][:4]
        a(f"s_waitcnt vmcnt({len(L.seq) - 1 - max(idx)})\ns_barrier")
        L.issue(p1, 3, 2)
    else: L.issue(parts[0], 3, 2)
    L.lstamp()
    a(f"v_lshl_add_u32 v6, v0, 1, s{T + 4}\nv_lshlrev_b32 v7, 2, v0\nv_add_u32 v7, {prog.TB}, v7\nv_mov_b32 v13, 0x40000000")
    if cfg.wpf:
        a(f"s_mul_i32 s{T + 6}, s2, 61\ns_lshl_b32 s{T + 5}, s{T}, 4\ns_add_u32 s{T + 6}, s{T + 6}, s{T + 5}")
        a(f"v_cmp_gt_u32 vcc, 16, v0\nv_add_u32 v8, s{T + 6}, v0\nv_lshlrev_b32 v8, 7, v8\nv_cndmask_b32 v8, v13, v8, vcc")
    if cfg.xspf:
        a(f"s_and_b32 s{T + 6}, s{S_T}, 31\ns_mul_i32 s{T + 6}, s{T + 6}, 40\ns_mul_i32 s{T + 5}, s{T}, 10\ns_add_u32 s{T + 6}, s{T + 6}, s{T + 5}")
        a(f"s_add_u32 s{T + 6}, s{T + 6}, {1008 * 72}\ns_cmp_lt_u32 s{S_T}, 32\ns_cselect_b32 s{T + 5}, 0, 10")
        a(f"v_cmp_gt_u32 vcc, s{T + 5}, v0\nv_add_u32 v9, s{T + 6}, v0\nv_lshlrev_b32 v9, 7, v9\nv_cndmask_b32 v9, v13, v9, vcc")
    if cfg.qlate or 'Q' in cfg.pre:
        a(f"s_lshr_b32 s{T + 1}, s{S_T}, 5\ns_mul_i32 s{T + 1}, s{T + 1}, 3\ns_mul_i32 s{T + 2}, s{S_M}, 7\ns_add_u32 s{T + 1}, s{T + 1}, s{T + 2}\ns_mul_i32 s72, s{T + 1}, {288 * ROWB}")
        a(f"s_lshr_b32 s{T + 1}, s2, 3\ns_lshl_b32 s{T + 1}, s{T + 1}, 2\ns_add_u32 s{T + 1}, s{T + 1}, s{T}\ns_mul_i32 s{T + 1}, s{T + 1}, {9 * ROWB}\ns_add_u32 s72, s72, s{T + 1}")
        a(f"v_min_u32 v17, 8, v0\nv_mul_u32_u24 v17, {ROWB}, v17")
    if cfg.refresh:
        a(f"s_getpc_b64 s[96:97]\nL_pc2:\ns_lshr_b32 s{T + 1}, s2, 3\ns_lshl_b32 s{T + 1}, s{T + 1}, 2\ns_add_u32 s{T + 1}, s{T + 1}, s{T}\ns_mul_i32 s{T + 1}, s{T + 1}, 384")
        a(f"v_min_u32 v18, 2, v0\nv_lshl_add_u32 v18, v18, 7, s{T + 1}\nv_min_u32 v18, L_end-L_pc2, v18")
    if cfg.wrot:
        a(f"s_mul_i32 s{T}, s{S_R}, 43\ns_lshr_b32 s{T}, s{T}, 7\ns_mul_i32 s{T}, s{T}, 3\ns_sub_u32 s{T}, s{S_R}, s{T}")
        for k in range(3):
            if k: a(f"s_add_u32 s{T}, s{T}, 1\ns_cmp_eq_u32 s{T}, 3\ns_cselect_b32 s{T}, 0, s{T}")
            a(f"s_mul_i32 s{T + 1}, s{T}, {TAPB}\ns_add_u32 s{WR_S[k]}, s{sW}, s{T + 1}\ns_lshl_b32 s{T + 1}, s{T}, 12\ns_add_u32 s{WR_M[k]}, s{mW}, s{T + 1}")
    if cfg.xrot:
        for k in range(8):
            a(f"s_add_u32 s{T}, s{S_LINE}, {k}\ns_and_b32 s{T}, s{T}, 7\ns_mul_i32 s{T + 1}, s{T}, {ROWB}\ns_add_u32 s{XR_S[k]}, s{sXm}, s{T + 1}")
            a(f"s_lshl_b32 s{T}, s{T}, 11\ns_add_u32 s{XR_M[k]}, s{mXm}, s{T}")
    L.rot = True
    relw = 3
    for t in range(9):
        if t == 3: a("s_waitcnt lgkmcnt(0)")
        L.bar({('w', 2 * t), ('w', 2 * t + 1), ('x', t)})
        l = parts[t + 1] + (' B' if t == 0 else '')
        if t >= 1:
            relw = max(relw, 2 * t + 3)
            if t - 1 not in cfg.rw: l += auto([f"W{2 * t + 2}", f"W{2 * t + 3}"], given)
            l += auto([f"X{t + 2}"], given)
        L.issue(l + ' ' + cfg.qlate.get(t, '') + (' C' if cfg.refresh and cfg.refresh == t else ''), relw, t + 2)
        if t == 2: L.bn_finish()
        if t in cfg.rw:
            a("s_barrier")
            relw = 2 * t + 5
            L.issue(auto([f"W{2 * t + 4}", f"W{2 * t + 5}"], given), relw, 0)
    L.end()

def loader_special(a, cfg, prog, head):
    L = Loader(a, cfg, prog); L.seq = list(head); L.lg = 1
    a("v_lshrrev_b32 v13, 1, v0\nv_bfe_u32 v14, v0, 4, 1\nv_lshlrev_b32 v14, 2, v14\nv_xor_b32 v13, v13, v14")
    a(f"v_mul_u32_u24 v13, {ROWB}, v13\nv_and_b32 v14, 1, v0\nv_lshl_add_u32 v{vE}, v14, 4, v13")
    a(f"s_mul_i32 s{sE}, s{T}, {TAPB}\ns_lshl_b32 s{T + 5}, s{S_M}, 5\ns_add_u32 s{T + 5}, s{T + 5}, 1024\ns_add_u32 s{sE}, s{sE}, s{T + 5}")
    a(f"s_lshl_b32 s{mE}, s{T}, 10\ns_add_u32 s{mE}, s{mE}, {prog.WB0 + 24576}\ns_cmp_eq_u32 s{T}, 3")
    a(f"s_cselect_b32 s{mE}, {prog.WB0 + 4 * prog.WS}, s{mE}\ns_cselect_b32 s{sTmp + 2}, 0, {prog.WS}\ns_cselect_b32 s{T + 6}, 0x40000000, 0")
    a(f"v_add_u32 v{vE}, s{T + 6}, v{vE}")
    parts = cfg.pre_sp.split('|') + [''] * 20
    given = set(' '.join(parts).split()) | {'X0', 'W0'}
    L.issue(parts[0], 3, 2)
    L.lstamp()
    a(f"s_lshl_b32 s{T + 6}, s{T + 1}, 7\ns_add_u32 s{T + 6}, s{T + 6}, s{T + 4}\ns_cmp_ge_u32 s{T}, 2\ns_cselect_b32 s{T + 6}, s{T + 5}, s{T + 6}")
    a(f"v_lshl_add_u32 v6, v0, 1, s{T + 6}\nv_min_u32 v6, 1150, v6")
    a(f"s_min_u32 s{T + 6}, s{T}, 2\ns_lshl_b32 s{T + 6}, s{T + 6}, 9\ns_add_u32 s{T + 6}, s{T + 6}, {prog.TB}\nv_lshl_add_u32 v7, v0, 2, s{T + 6}")
    for j in range(18):
        if j == 6: a("s_waitcnt lgkmcnt(0)")
        L.bar({('w', j), ('x', j >> 1)})
        d = cfg.sp_ahead
        l = parts[j + 1] + auto([f"W{j + d}", f"X{(j + 3) >> 1}" + 'ba'[j & 1]], given) + (' B' if j == 0 else '')
        L.issue(l, max(3, j + 3), max(2, (j >> 1) + 2))
        if j == 4: L.bn_finish()
    L.end()

def compute_setup(a, cfg, prog):
    sp = prog.special
    a(f"s_lshr_b32 s{T}, s{S_WAVE}, 1\ns_and_b32 s{T + 1}, s{S_WAVE}, 1")
    a("v_and_b32 v60, 15, v0\nv_lshrrev_b32 v61, 4, v0")
    if sp: a(f"s_add_u32 s{S_LINE}, s{S_LINE}, s{T}")
    a(f"s_lshl_b32 s{T + 2}, s{S_LINE}, 7\ns_lshl_b32 s{T + 3}, s{T + 1}, 6\ns_add_u32 s{T + 2}, s{T + 2}, s{T + 3}")
    a(f"s_lshl_b32 s{T + 3}, s{T + 1}, 7\ns_add_u32 s{T + 3}, s{T + 3}, {prog.TB}")
    if sp:
        a(f"s_lshl_b32 s{T + 4}, s{T}, 9\ns_add_u32 s{T + 3}, s{T + 3}, s{T + 4}")
        a(f"v_lshlrev_b32 v{V_PE}, 4, v61\nv_add_u32 v{V_PE}, {prog.TB + 1024}, v{V_PE}")
    a(f"v_lshl_add_u32 v{V_PA}, v61, 4, s{T + 3}")
    a("v_and_b32 v62, 1, v61\nv_lshrrev_b32 v63, 1, v61")
    a(f"v_mul_u32_u24 v{V_OM}, {BATB}, v60\nv_lshl_add_u32 v{V_OM}, v63, 4, v{V_OM}")
    if not sp:
        a(f"v_lshl_add_u32 v{V_OM}, v62, 5, v{V_OM}\nv_lshrrev_b32 v71, 3, v60\nv_and_b32 v72, 7, v60")
        a(f"v_mul_u32_u24 v{V_OE}, {BATB}, v71\nv_mul_u32_u24 v64, {ROWB}, v72\nv_add_u32 v{V_OE}, v{V_OE}, v64")
        a(f"v_lshl_add_u32 v{V_OE}, v63, 4, v{V_OE}\nv_lshl_add_u32 v{V_OE}, v62, 5, v{V_OE}")
        a(f"s_mul_i32 s{T + 3}, s{T}, {16 * BATB}\ns_add_u32 s{S_OM}, s{S_B0}, s{T + 3}\ns_add_u32 s{S_OM}, s{S_OM}, s{T + 2}")
        a(f"s_mul_i32 s{T + 3}, s{T}, {2 * BATB}\ns_add_u32 s{S_OE}, s{S_B0}, s{T + 3}\ns_add_u32 s{S_OE}, s{S_OE}, {32 * BATB}\ns_add_u32 s{S_OE}, s{S_OE}, s{T + 2}")
        a(f"s_mul_i32 s{T + 3}, s{T}, 18\nv_mad_u32_u24 v64, v71, 9, v72\nv_add_u32 v64, s{T + 3}, v64")
        for t in range(3):
            a(f"v_add_u32 v65, {t}, v64\nv_bfe_u32 v66, v65, 1, 3\nv_xor_b32 v66, v66, v61\nv_lshlrev_b32 v66, 4, v66")
            a(f"v_lshl_add_u32 v66, v65, 7, v66\nv_add_u32 v{V_Q[0][t]}, {prog.QB0}, v66\nv_xor_b32 v{V_Q[1][t]}, 64, v{V_Q[0][t]}")
    else:
        a(f"v_mul_u32_u24 v64, {ROWB}, v62\nv_add_u32 v{V_OE}, v{V_OM}, v64\nv_lshl_add_u32 v{V_OM}, v62, 5, v{V_OM}")
        a(f"s_add_u32 s{S_OM}, s{S_B0}, s{T + 2}\ns_mul_i32 s{T + 3}, s{S_WAVE}, {2 * ROWB}\ns_add_u32 s{S_OE}, s{S_B0}, s{T + 3}")
        a(f"s_lshl_b32 s{T + 3}, s{S_M}, 5\ns_add_u32 s{S_OE}, s{S_OE}, s{T + 3}\ns_add_u32 s{S_OE}, s{S_OE}, 1024")
    a(f"s_add_u32 s{S_OM2}, s{S_OM}, {4 * ROWB}")
    a(f"v_lshrrev_b32 v64, 1, v60\nv_xor_b32 v64, v64, v61\nv_lshlrev_b32 v64, 4, v64\nv_lshl_add_u32 v{V_XA[0]}, v60, 7, v64")
    if not sp: a(f"s_mul_i32 s{T + 3}, s{T}, {prog.XBT}\nv_add_u32 v{V_XA[0]}, s{T + 3}, v{V_XA[0]}")
    a(f"v_xor_b32 v{V_XA[1]}, 64, v{V_XA[0]}")
    a("v_lshrrev_b32 v64, 2, v60\nv_and_b32 v65, 3, v60\nv_lshl_add_u32 v66, v61, 3, v64\nv_and_b32 v67, 2, v64\nv_lshl_add_u32 v67, v62, 2, v67")
    a(f"s_lshl_b32 s{T + 3}, s{T + 1}, 2\nv_lshrrev_b32 v68, 1, v65\nv_add_u32 v68, s{T + 3}, v68")
    a("v_and_b32 v69, 1, v65\nv_lshlrev_b32 v69, 3, v69\nv_lshl_add_u32 v69, v66, 7, v69")
    if sp: a(f"s_mul_i32 s{T + 3}, s{T}, 12288\ns_add_u32 s{T + 3}, s{T + 3}, {prog.WB0}\nv_add_u32 v69, s{T + 3}, v69")
    else: a(f"v_add_u32 v69, {prog.WB0}, v69")
    for c in range(2): a(f"v_add_u32 v70, {2 * c}, v68\nv_xor_b32 v70, v70, v67\nv_lshl_add_u32 v{V_WA[c]}, v70, 4, v69")
    if sp:
        a("v_lshl_add_u32 v70, v62, 2, v66\nv_lshlrev_b32 v70, 5, v70\nv_lshl_add_u32 v70, v65, 3, v70")
        a(f"v_add_u32 v{V_Q[0][0]}, {prog.WB0 + 24576}, v70\nv_xor_b32 v70, 128, v70\nv_add_u32 v{V_Q[0][1]}, {prog.WB0 + 24576}, v70")
    else:
        a("v_mov_b32 v72, 0\nv_mov_b32 v73, 0\nv_mov_b32 v74, 0\nv_mov_b32 v75, 0")
        a(f"v_lshrrev_b32 v64, 3, v0\ns_lshl_b32 s{T + 3}, s{S_WAVE}, 3\nv_add_u32 v64, s{T + 3}, v64\nv_min_u32 v64, 14, v64")
        a("v_mul_u32_u24 v65, 52, v64\nv_lshrrev_b32 v65, 8, v65\nv_mul_u32_u24 v66, 5, v65\nv_sub_u32 v66, v64, v66")
        a(f"v_mul_u32_u24 v65, {prog.QB}, v65\nv_mul_u32_u24 v66, {9 * 128}, v66\nv_add_u32 v65, v65, v66")
        a(f"v_and_b32 v66, 7, v0\nv_lshl_add_u32 v65, v66, 4, v65\nv_add_u32 v65, {prog.QB0}, v65\nds_write_b128 v65, v[72:75]")
    a(f"s_mov_b32 s{S_O + 2}, {XBYTES}\ns_mov_b32 s{S_O + 3}, 0x20000\ns_waitcnt vmcnt(0) lgkmcnt(0)")

def finish(a, cfg):
    a("L_fin:")
    stamp(a, cfg, 5)
    if cfg.echo is not None or cfg.stamps:
        a("s_waitcnt vmcnt(0)"); stamp(a, cfg, 6)
    if cfg.echo is not None:
        a(f"s_memrealtime s[80:81]\ns_waitcnt lgkmcnt(0)\ns_sub_u32 s78, s78, s76\ns_mul_i32 s78, s78, {cfg.echo[1]}")
        a(f"s_cmp_eq_u32 s2, {cfg.echo[2]}\ns_cselect_b32 s78, s78, 0")
        a("L_echo:\ns_memrealtime s[82:83]\ns_waitcnt lgkmcnt(0)\ns_sub_u32 s82, s82, s80\ns_cmp_lt_u32 s82, s78\ns_cbranch_scc1 L_echo")
    if cfg.stamps:
        a(f"s_cmp_lg_u32 s{S_WAVE}, 0\ns_cbranch_scc1 L_end\ns_memrealtime s[{S_ST + 2}:{S_ST + 3}]\ns_load_dwordx2 s[4:5], s[0:1], 64\ns_waitcnt lgkmcnt(0)")
        for i in range(4): a(f"v_mov_b32 v{16 + i}, s{S_ST + i}")
        for i in range(1, 7): a(f"s_sub_u32 s{T}, s{S_ST + 4 + 2 * i}, s{S_ST + 4}\nv_mov_b32 v{18 + 2 * i}, s{T}\nv_mov_b32 v{19 + 2 * i}, 0")
        a(f"s_mul_i32 s{T}, s2, 64\nv_mov_b32 v32, s{T}\nv_cmp_eq_u32 vcc, 0, v0\ns_and_saveexec_b64 s[6:7], vcc")
        for i in range(4): a(f"global_store_dwordx4 v32, v[{16 + 4 * i}:{19 + 4 * i}], s[4:5] offset:{16 * i}")

def gen(cfg):
    a = A()
    a.L.append(open('standalone__batchnorm__sampling.s.ref').read().split('; Override')[0].rstrip())
    a.L.append("; @launch grid=(256,1,1) block=(512,1,1) lds=163840")
    a(f'.amdgcn_target "amdgcn-amd-amdhsa--gfx950"\n.text\n.globl {KNAME}\n.p2align 8\n.type {KNAME},@function\n{KNAME}:')
    pu, sp = Prog(False), Prog(True)
    stamp(a, cfg, 0)
    a("s_cmp_ge_u32 s2, 256\ns_cbranch_scc1 L_end")
    a(f"s_load_dwordx2 s[{S_W}:{S_W + 1}], s[0:1], 8\ns_load_dwordx2 s[{S_X}:{S_X + 1}], s[0:1], 0")
    a(f"s_load_dwordx8 s[8:15], s[0:1], 16\ns_load_dwordx2 s[{S_O}:{S_O + 1}], s[0:1], 48")
    a(f"s_lshr_b32 s{T + 1}, s2, 3")
    if cfg.cpfn:
        a(f"s_getpc_b64 s[58:59]\nL_pc:\ns_and_b32 s{T}, s{T + 1}, {cfg.cpfg - 1}\ns_mul_i32 s{T}, s{T}, {cfg.cpfn * 128}")
        a(f"v_lshl_add_u32 v1, v0, 7, s{T}\nv_min_u32 v1, L_end-L_pc, v1")
        a(f"v_cmp_gt_u32 vcc, {cfg.cpfn}, v0\ns_and_saveexec_b64 s[60:61], vcc\ns_cbranch_execz L_nopf")
        a("global_load_dword v254, v1, s[58:59]\nL_nopf:\ns_mov_b64 exec, s[60:61]")
    a(f"v_lshrrev_b32 v1, 6, v0\nv_and_b32 v0, 63, v0\ns_and_b32 s{T}, s2, 7\nv_readfirstlane_b32 s{S_WAVE}, v1")
    if cfg.spearly:
        a(f"s_and_b32 s{S_M}, s{T}, 3\ns_andn2_b32 s{T}, 4, s{T}\ns_lshl_b32 s{T}, s{T}, 3\ns_add_u32 s{S_T}, s{T}, s{T + 1}")
    else:
        a(f"s_lshr_b32 s{S_M}, s{T}, 1\ns_and_b32 s{T}, s{T}, 1\ns_lshl_b32 s{T}, s{T}, 5\ns_add_u32 s{S_T}, s{T}, s{T + 1}")
    a(f"s_mul_i32 s{S_R}, s{S_T}, 57\ns_lshr_b32 s{S_R}, s{S_R}, 9\ns_mul_i32 s{T}, s{S_R}, 9\ns_sub_u32 s{S_LINE}, s{S_T}, s{T}")
    a(f"s_mul_i32 s{T}, s{S_M}, 7\ns_add_u32 s{S_R}, s{S_R}, s{T}\ns_lshl_b32 s{T}, s{S_M}, 1")
    a(f"s_cmp_eq_u32 s{S_T}, 63\ns_cselect_b32 s{S_LINE}, s{T}, s{S_LINE}\ns_cselect_b32 s{S_R}, 28, s{S_R}\ns_cselect_b32 s{S_SP}, 1, 0")
    a(f"s_mul_i32 s{S_B0}, s{S_R}, {36 * BATB}\ns_mov_b32 s{S_C}, {NLOG2E:#x}\ns_mov_b32 s{S_C + 1}, s{S_C}")
    a(f"s_cmp_ge_u32 s{S_WAVE}, 4\ns_cbranch_scc0 L_comp")
    a(f"s_sub_u32 s{T}, s{S_WAVE}, 4\ns_and_b32 s{T + 1}, s{T}, 1\ns_lshr_b32 s{T + 2}, s{T}, 1\ns_lshl_b32 s{T + 3}, s{T + 1}, 2")
    a(f"v_lshrrev_b32 v10, 3, v0\nv_and_b32 v11, 7, v0\nv_lshrrev_b32 v12, 1, v10\nv_xor_b32 v11, s{T + 3}, v11")
    a(f"v_and_b32 v13, 2, v10\nv_xor_b32 v13, v13, v11\nv_mul_u32_u24 v14, {ROWB}, v10\nv_lshl_add_u32 v{vW}, v13, 4, v14")
    a(f"v_xor_b32 v13, v12, v11\nv_mul_u32_u24 v15, {BATB}, v10\nv_lshl_add_u32 v{vXm}, v13, 4, v15")
    a(f"s_mul_i32 s{sW}, s{T}, {8 * ROWB}\ns_lshl_b32 s{T + 4}, s{S_LINE}, 7\ns_add_u32 s{sW}, s{sW}, s{T + 4}")
    a(f"s_mul_i32 s{sXm}, s{T + 1}, {8 * BATB}\ns_add_u32 s{sXm}, s{sXm}, s{S_B0}")
    a(f"s_mov_b32 s{T + 3}, {pu.WB0}\ns_mov_b32 s{T + 5}, {16 * BATB}\ns_mov_b32 s{T + 6}, {pu.XBT}\ns_cmp_eq_u32 s{S_SP}, 1")
    a(f"s_cselect_b32 s{T + 3}, {sp.WB0}, s{T + 3}\ns_cselect_b32 s{T + 5}, {4 * ROWB}, s{T + 5}\ns_cselect_b32 s{T + 6}, 8192, s{T + 6}")
    a(f"s_lshl_b32 s{mW}, s{T}, 10\ns_add_u32 s{mW}, s{mW}, s{T + 3}\ns_mul_i32 s{T + 5}, s{T + 5}, s{T + 2}\ns_add_u32 s{sXm}, s{sXm}, s{T + 5}")
    a(f"s_mul_i32 s{T + 6}, s{T + 6}, s{T + 2}\ns_lshl_b32 s{mXm}, s{T + 1}, 10\ns_add_u32 s{mXm}, s{mXm}, s{T + 6}")
    a(f"s_mov_b32 s{S_W + 2}, {WBYTES}\ns_mov_b32 s{S_W + 3}, 0x20000\ns_mov_b32 s{S_X + 2}, {XBYTES}\ns_mov_b32 s{S_X + 3}, 0x20000")
    H = Loader(A(), cfg, pu); H.w(0); H.x(0, 0)
    for x in H.a.L[:2]: a(x)
    a("s_waitcnt lgkmcnt(0)")
    if cfg.stamps: Loader(a, cfg, pu).lstamp()
    for x in H.a.L[2:]: a(x)
    a(f"s_cmp_eq_u32 s{S_SP}, 1\ns_cbranch_scc1 L_sp_ld")
    loader_pure(a, cfg, pu, H.seq)
    a(f"L_comp:\ns_cmp_eq_u32 s{S_SP}, 1\ns_cbranch_scc1 L_sp_comp")
    compute_setup(a, cfg, pu)
    stamp(a, cfg, 1); a("s_barrier"); stamp(a, cfg, 2)
    compute_pure(a, cfg, pu)
    finish(a, cfg)
    a("s_endpgm\nL_sp_ld:")
    loader_special(a, cfg, sp, H.seq)
    a("L_sp_comp:")
    compute_setup(a, cfg, sp)
    for wv in range(1, 4): a(f"s_cmp_eq_u32 s{S_WAVE}, {wv}\ns_cbranch_scc1 L_sp{wv}_go")
    for wv in range(4):
        a(f"L_sp{wv}_go:")
        stamp(a, cfg, 1); a("s_barrier"); stamp(a, cfg, 2)
        compute_special(a, cfg, sp, wv)
        a("s_branch L_fin" if cfg.stamps or cfg.echo else "s_endpgm")
    a("L_end:\ns_endpgm")
    a(f""".section .rodata,"a"
.p2align 6
.amdhsa_kernel {KNAME}
  .amdhsa_next_free_vgpr 256
  .amdhsa_next_free_sgpr 102
  .amdhsa_accum_offset 256
  .amdhsa_group_segment_fixed_size 0
  .amdhsa_kernarg_size 72
  .amdhsa_user_sgpr_count 2
  .amdhsa_user_sgpr_kernarg_segment_ptr 1
  .amdhsa_system_sgpr_workgroup_id_x 1
  .amdhsa_float_denorm_mode_32 3
.end_amdhsa_kernel""")
    return a.text() + '\n'

if __name__ == '__main__':
    ap = argparse.ArgumentParser()
    ap.add_argument('-o', default='k.s')
    ap.add_argument('opts', nargs='*')
    args = ap.parse_args()
    kw = {}
    for o in args.opts:
        k, v = o.split('=', 1)
        try: v = eval(v)
        except Exception: pass
        kw[k] = v
    open(args.o, 'w').write(gen(Cfg(**kw)))
```

```python
import sys, argparse, re

KNAME = "standalone__batchnorm__sampling_kernel"
ROWB, BATB, TAPB = 1152, 9216, 663552
XBYTES, WBYTES = 9437184, 1990656
NLOG2E = 0xbfb8aa3b

class Cfg:
    def __init__(self, **kw):
        self.stamps = False; self.lst = False; self.echo = None; self.verbose = False
        self.stflags = 'sc1'; self.stflags_e = ''
        self.cpfg, self.cpfn = 8, 52
        self.wpf = False; self.xspf = True; self.xrot = True; self.wrot = True
        self.qlate = {2: 'Q5 Q6', 4: 'Q7 Q8'}
        self.pre = 'W1 X0b / X1 | W2 W3 X2 | P'
        self.pre_sp = 'W0b W1 X1a'
        self.sp_ahead = 2
        self.barv, self.barw, self.rw = 76, 36, (6,)
        self.lookf, self.npre = 26, 12
        self.lead4, self.bar16, self.budget4, self.epk = 4, 21, 8, 5
        self.rd_span, self.lead, self.budget, self.epk_sp = 36, 2, 8, 3
        self.maxld, self.urgent, self.aged = 1, 10, 10
        self.cvtcost = 4
        self.spearly = 2
        self.vb8 = 14
        self.pre_vb = 'W1 X0b X1a'
        self.extra_vb = {('b', 1): 'P', ('b', 2): 'Q5 Q6', ('b', 4): 'Q7 Q8 C'}
        self.vb = 20
        self.early = False
        self.dual = False
        self.pre_w = 'W1 X0b W2'
        self.dualsel = 0
        self.v0b = 16
        self.zig = True
        self.refresh = 4
        self.xpos, self.xpos_sp = 8, 8
        self.bar_order = None
        for k in kw: assert hasattr(self, k), k
        self.__dict__.update(kw)

class A:
    def __init__(self): self.L = []
    def __call__(self, s):
        for l in s.split('\n'):
            l = l.strip()
            if l: self.L.append(l)
    def text(self):
        return '\n'.join((l if l.endswith(':') or l[0] in '.;' else '  ' + l) for l in self.L)

V_XA = [2, 1]
V_Q = [[3, 4, 5], [11, 12, 13]]
V_WA = [6, 7]
V_OM, V_OE, V_PA, V_PE = 8, 9, 10, 11
SETB = [16, 84]
def XF(s, p): return SETB[s] + 4 * p
def EF(s, t): return SETB[s] + 32 + 4 * t
def WF(s, c, t): return SETB[s] + 44 + 4 * (3 * c + t)
ACC = 152
def TILE(p, c): return ACC + 4 * (2 * p + c)
PS = 224
def P_S(c): return PS + 4 * c
def P_B(c): return PS + 8 + 4 * c
PE_S, PE_B, TMPE = 240, 244, 248
def r4(b): return f"v[{b}:{b+3}]"
def r2(b): return f"v[{b}:{b+1}]"
S_X, S_W, S_O = 20, 24, 28
S_WAVE, S_SP, S_M, S_T, S_R, S_LINE, S_B0 = 33, 35, 36, 37, 38, 39, 40
T = 41
S_OM, S_OM2, S_OE, S_DX, S_DW, S_CNT, S_XOFF, S_XBP, S_C = 48, 49, 50, 51, 52, 53, 54, 55, 56
sXm, sXq, sW, mXm, mXq, mW, sE, mE, sTmp = 62, 63, 64, 65, 66, 67, 68, 69, 70
XR_S = [44, 45, 46, 47, 48, 49, 50, 51]; XR_M = [52, 53, 54, 55, 58, 59, 60, 61]
WR_S = [74, 75, 92]; WR_M = [93, 100, 101]
S_ST = 76

class Prog:
    def __init__(self, special):
        self.special = special
        self.name = 'sp' if special else 'pu'
        if not special:
            self.XB, self.XBT, self.QB0, self.QB = 16384, 49152, 98304, 4864
            self.WB0, self.WS = 112896, 12288
            self.TB = self.WB0 + 4 * self.WS
        else:
            self.XB, self.WB0, self.WS = 16384, 49152, 27648
            self.TB = self.WB0 + 4 * self.WS + 1024

def stamp(a, cfg, i):
    if cfg.echo is not None:
        if i == 0: a("s_memrealtime s[76:77]")
        if i == cfg.echo[0]: a("s_memrealtime s[78:79]")
    if cfg.stamps:
        if i == 0: a(f"s_memrealtime s[{S_ST}:{S_ST + 1}]")
        a(f"s_memtime s[{S_ST + 4 + 2 * i}:{S_ST + 5 + 2 * i}]")
def stamp_l(cfg, i):
    t = A(); stamp(t, cfg, i); return t.L

def epi_stream(prog, cfg, R0, order=tuple(range(9))):
    out, pend = [], []
    for n, p in enumerate(order):
        R = R0 if n == 0 else TILE(order[n - 1], 0)
        Tt, e = [TILE(p, 0), TILE(p, 1)], [TMPE, TMPE + 4]
        ps = [PE_S] * 2 if p == 8 and prog.special else [P_S(0), P_S(1)]
        pb = [PE_B] * 2 if p == 8 and prog.special else [P_B(0), P_B(1)]
        if n >= (cfg.epk_sp if prog.special else cfg.epk):
            fma = lambda c: [(f"v_pk_fma_f32 {r2(Tt[c] + i)}, {r2(Tt[c] + i)}, {r2(ps[c] + i)}, {r2(pb[c] + i)}", 4) for i in (0, 2)]
            fmu = lambda c: [(f"v_pk_fma_f32 {r2(e[c] + i)}, {r2(e[c] + i)}, s[{S_C}:{S_C + 1}], s[{S_C}:{S_C + 1}]", 4) for i in (0, 2)]
            mul = lambda c: [(f"v_pk_mul_f32 {r2(Tt[c] + i)}, {r2(Tt[c] + i)}, {r2(e[c] + i)}", 4) for i in (0, 2)]
        else:
            fma = lambda c: [(f"v_fma_f32 v{Tt[c] + i}, v{Tt[c] + i}, v{ps[c] + i}, v{pb[c] + i}", 4) for i in range(4)]
            fmu = lambda c: [(f"v_fma_f32 v{e[c] + i}, v{e[c] + i}, s{S_C}, s{S_C}", 4) for i in range(4)]
            mul = lambda c: [(f"v_mul_f32 v{Tt[c] + i}, v{Tt[c] + i}, v{e[c] + i}", 4) for i in range(4)]
        exp = lambda c: [(f"v_exp_f32 v{e[c] + i}, v{Tt[c] + i}", 8) for i in range(4)]
        rcp = lambda c: [(f"v_rcp_f32 v{e[c] + i}, v{e[c] + i}", 8) for i in range(4)]
        cvt = lambda c: [(f"v_cvt_pk_bf16_f32 v{R + 2 * c + i}, v{Tt[c] + 2 * i}, v{Tt[c] + 2 * i + 1}", cfg.cvtcost) for i in range(2)]
        ops = fma(0) + exp(0) + fma(1) + exp(1) + fmu(0) + rcp(0) + fmu(1) + rcp(1) + mul(0) + cvt(0) + mul(1) + cvt(1)
        ops = [(t, c, []) for t, c in ops]
        ops[-1] = (ops[-1][0], ops[-1][1], [Tt[1]] if n < 8 else [])
        if n >= 2: ops[3] = (ops[3][0], ops[3][1], [TILE(order[n - 2], 0)])
        out.append(ops[:2] + pend + ops[2:])
        so = f"s{S_OM} offen offset:{p * ROWB}" if p < 4 else f"s{S_OM2} offen offset:{(p - 4) * ROWB}" if p < 8 else f"s{S_OE} offen"
        pend = [(f"v_permlane16_swap_b32 v{R}, v{R + 2}", 8, []), (f"v_permlane16_swap_b32 v{R + 1}, v{R + 3}", 8, []),
                (f"buffer_store_dwordx4 {r4(R)}, v{V_OM if p < 8 else V_OE}, s[{S_O}:{S_O + 3}], {so} {cfg.stflags_e if p == 8 and prog.special else cfg.stflags}", 4, [])]
    out[-1] += [("s_nop 1", 8, [])] + pend
    return out

class Sched:
    def __init__(self, cfg):
        self.cfg, self.out, self.reg, self.free = cfg, [], {}, []
        self.nds = self.done = self.nm = 0
        self.ldpos, self.dsat, self.report = {}, [], []
    def emit(self, x):
        self.out.append(x)
        if x.startswith('ds_'): self.nds += 1; self.dsat.append(self.nm)
        if x.startswith('v_mfma'): self.nm += 1
    def need(self, keys):
        k = max([self.ldpos.get(x, 0) for x in keys] + [0])
        if k > self.done:
            k = max(k, sum(1 for m in self.dsat if m <= self.nm - self.cfg.aged))
            n = min(self.nds - k, 15)
            self.emit(f"s_waitcnt lgkmcnt({n})")
            self.done = self.nds - n
    def run(self, mf, loads, bars, pre, epi, budget, look, czero=False, fixed={}, release=False, mark=[], retire=None, order=tuple(range(9))):
        cfg = self.cfg
        first, last, lastm, pos_last, seen = {}, {}, {}, {}, set()
        for i, m in enumerate(mf):
            for k in (m[1], m[2]): first.setdefault(k, i); last[k] = i
            if m[4]: lastm[m[3]] = i
        st = dict(ld=0, sub=[], key=None, ep=0, ei=0, i=-1)
        def try_load(i):
            if not st['sub']:
                if st['ld'] >= len(loads): return False
                key, mingap, fn, latest = loads[st['ld']]
                if i < mingap or i < min(first.get(key, 0) - look, latest): return False
                if key in fixed: r = fixed[key]
                elif not self.free: return False
                else: r = self.free.pop(0)
                self.reg[key] = r; st['sub'] = list(fn(r)); st['key'] = key; st['ld'] += 1
                self.report.append((key, first.get(key, 0) - i))
            self.emit(st['sub'].pop(0))
            if not st['sub']: self.ldpos[st['key']] = self.nds
            return True
        def emit_epi(b, final=False):
            spent = 0
            while epi and st['ep'] < len(epi) and (final or spent < b):
                p = st['ep']
                if order[p] not in pos_last: break
                if st['ei'] == 0:
                    if any(l[0][0] == 'P' and l[0] not in self.ldpos for l in loads): assert not final; break
                    if retire: assert not ({self.reg[k] for k in self.reg if last.get(k, -1) > st['i']} & set(retire[1]))
                    dist = len(self.out) - pos_last[order[p]] - 1
                    if dist < 8:
                        if not final: break
                        self.emit(f"s_nop {8 - dist - 1}")
                    self.need([k for k in self.ldpos if k[0] == 'P'])
                txt, cost, frees = epi[p][st['ei']]
                self.emit(txt); spent += cost; self.free += frees
                st['ei'] += 1
                if st['ei'] == len(epi[p]): st['ep'] += 1; st['ei'] = 0
        while try_load(-1): pass
        for i, (tile, ak, bk, pair, final) in enumerate(mf):
            while ak not in self.ldpos and ak not in self.given or bk not in self.ldpos and bk not in self.given:
                assert try_load(i - 1), ('fragment cannot be loaded in time', ak, bk, i)
            st['i'] = i
            self.need([ak, bk])
            c = '0' if czero and tile not in seen else r4(tile)
            seen.add(tile)
            self.emit(f"v_mfma_f32_16x16x32_bf16 {r4(tile)}, {r4(self.reg[ak])}, {r4(self.reg[bk])}, {c}")
            if lastm.get(pair) == i: pos_last[pair] = len(self.out) - 1
            if release: self.free += [self.reg[k] for k in (ak, bk) if last[k] == i]
            if retire and i >= retire[0]: self.free = [r for r in self.free if r not in retire[1]]
            if i in bars:
                for k in bars[i]: assert k in self.ldpos, ('not read before the barrier', k, i)
                self.need(bars[i]); self.emit("s_barrier")
            spent = nl = 0
            for x in pre.get(i, []):
                assert not x.startswith('v_add') or (st['ld'] == len(loads) and not st['sub']), 'address advanced under pending reads'
                self.emit(x); spent += 4
            while spent < 8 and try_load(i):
                spent += 4; nl += 1
                nk = st['key'] if st['sub'] else (loads[st['ld']][0] if st['ld'] < len(loads) else None)
                if nl >= cfg.maxld and first.get(nk, 10 ** 6) - i > cfg.urgent: break
            if spent < budget: emit_epi(budget - spent)
        while try_load(10 ** 6): pass
        self.out += mark
        emit_epi(0, True)
    given = ()

def group(prog, wv, steps, p, final, zig=False):
    out = []
    for c in range(2):
        if p < 8: items = [(('W', s, c, t), ('X', s, p + t - 1)) for t in range(3) if 0 <= p + t - 1 < 8 for s in steps]
        elif not prog.special: items = [(('W', s, c, t), ('E', s, t)) for t in range(3) for s in steps]
        else: items = [(('E', s, t), ('X', s, 2 * wv + c + t - 1)) for t in range(3) if 0 <= 2 * wv + c + t - 1 < 8 for s in steps]
        if zig and c == 1: items = items[::-1]
        out += [(TILE(p, c), ak, bk, p, final) for ak, bk in items]
    return out

def wavefront(prog, wv, A_, B_, lead, zig=False, po=tuple(range(9))):
    order = [(A_, po[n]) for n in range(lead)]
    for n in range(9):
        order.append((B_, po[n]))
        if n + lead < 9: order.append((A_, po[n + lead]))
    return [m for st, p in order for m in group(prog, wv, st, p, st is B_, zig)]

def ld_fn(prog, key, half, xoff, qoff, woff):
    if key[0] == 'X': return lambda r: [f"ds_read_b128 {r4(r)}, v{V_XA[half]} offset:{xoff + key[2] * 2048}"]
    if key[0] == 'W':
        o = woff + key[3] * 4096
        return lambda r: [f"ds_read_b64_tr_b16 {r2(r)}, v{V_WA[key[2]]} offset:{o}", f"ds_read_b64_tr_b16 {r2(r + 2)}, v{V_WA[key[2]]} offset:{o + 512}"]
    if not prog.special: return lambda r: [f"ds_read_b128 {r4(r)}, v{V_Q[half][key[2]]} offset:{qoff}"]
    o = woff + key[2] * 1024
    return lambda r: [f"ds_read_b64_tr_b16 {r2(r)}, v{V_Q[0][0]} offset:{o}", f"ds_read_b64_tr_b16 {r2(r + 2)}, v{V_Q[0][1]} offset:{o}"]

def param_loads(prog):
    t = []
    for c in range(2):
        t += [f"ds_read_b128 {r4(P_S(c))}, v{V_PA} offset:{64 * c}", f"ds_read_b128 {r4(P_B(c))}, v{V_PA} offset:{64 * c + 256}"]
    if prog.special: t += [f"ds_read_b128 {r4(PE_S)}, v{V_PE}", f"ds_read_b128 {r4(PE_B)}, v{V_PE} offset:256"]
    return [(('P', n), 0, (lambda x: (lambda r: [x]))(x), 10 ** 6) for n, x in enumerate(t)], {('P', n): 0 for n in range(len(t))}

def compute_pure(a, cfg, prog):
    mf, start = [], {}
    for t in range(7):
        start[t] = len(mf)
        for p in range(9): mf += group(prog, None, [2 * t, 2 * t + 1], p, False, cfg.zig)
    start[7] = nb = len(mf)
    po = list(range(8)); po.insert(cfg.xpos, 8)
    mf += wavefront(prog, None, [14, 15], [16, 17], cfg.lead4, False, po)
    first = {}
    for i, m in enumerate(mf):
        for k in (m[1], m[2]): first.setdefault(k, i)
    vis = {0: -1, 8: nb + cfg.bar16}
    for t in range(1, 8): vis[t] = start[t - 1] + cfg.barv
    bars = {}
    for t in range(1, 9):
        bars[vis[t]] = [k for k in first if k[1] >> 1 == t - 1 and (t <= 6 or (t == 7 and k[0] == 'W' and 6 not in cfg.rw))]
    for t in cfg.rw:
        bars[start[t] + cfg.barw] = [k for k in first if k[0] == 'W' and k[1] >> 1 == t]
    visb = {}
    if cfg.vb is not None:
        for t in cfg.rw: del bars[start[t] + cfg.barw]
        for t in range(8): visb[t] = start[t] + cfg.vb
        visb[8] = first[('X', 16, 4)] - cfg.vb8
        while visb[8] in bars or visb[8] == visb[7]: visb[8] += 1
        assert vis[8] != visb[7]
        for t in range(9): bars[visb[t]] = [k for k in first if k[0] == 'W' and k[1] >> 1 == t and (cfg.early or cfg.dual or t in cfg.rw) and t < 7]
    elif cfg.v0b is not None: bars[cfg.v0b] = []; visb[0] = cfg.v0b
    loads = []
    for n, k in enumerate(sorted(first, key=lambda k: first[k])):
        t = k[1] >> 1
        latest = vis[t + 1] - 10 if t <= 6 else 10 ** 6
        if cfg.vb is not None:
            if k[0] == 'W' and (cfg.early or cfg.dual or t in cfg.rw) and t < 7: latest = min(latest, visb[t] - 8)
        elif k[0] == 'W' and t in cfg.rw: latest = min(latest, start[t] + cfg.barw - 10)
        mg = vis[t] if t or n < cfg.npre else 0
        if t in visb and (k[0] == 'E' or (k[0] == 'X' and k[2] >= 4)): mg = visb[t]
        loads.append((k, mg, ld_fn(prog, k, k[1] & 1, (t % 3) * prog.XB, (t % 3) * prog.QB, (k[1] & 3) * prog.WS), latest))
    for i in range(len(loads) - 2, -1, -1):
        if loads[i][3] > loads[i + 1][3]: loads[i] = loads[i][:3] + (loads[i + 1][3],)
    cfg.bar_order = [n for i, n in sorted([(vis[t], ('a', t)) for t in range(9)] + [(visb[t], ('b', t)) for t in visb])]
    pl, fx = param_loads(prog)
    k = max(i for i, l in enumerate(loads) if l[0][0] == 'W' and l[0][1] < 16)
    loads = loads[:k + 1] + pl + loads[k + 1:]
    sc = Sched(cfg)
    sc.free = [16 + 4 * i for i in range(34)] + [PE_B, TMPE, TMPE + 4]
    sc.run(mf, loads, bars, {nb - 1: stamp_l(cfg, 3)}, epi_stream(prog, cfg, PE_S, po), cfg.budget4, cfg.lookf, czero=True, fixed=fx,
           release=True, mark=stamp_l(cfg, 4), retire=(vis[7], [TMPE, TMPE + 4]), order=po)
    if cfg.verbose: print('pu load distance', sorted([r for r in sc.report if r[0][0] in 'XWE' and r[0][1] > 1], key=lambda z: z[1])[:10], file=sys.stderr)
    for x in sc.out: a(x)

def key_order(s):
    return [('W', s, 0, 1), ('X', s, 0), ('W', s, 0, 2), ('X', s, 1), ('W', s, 1, 2), ('W', s, 1, 1), ('W', s, 0, 0), ('X', s, 2),
            ('W', s, 1, 0)] + [('X', s, p) for p in range(3, 8)] + [('E', s, t) for t in range(3)]
def set_regs(s, step):
    d = {('X', step, p): XF(s, p) for p in range(8)}
    d.update({('E', step, t): EF(s, t) for t in range(3)})
    d.update({('W', step, c, t): WF(s, c, t) for c in range(2) for t in range(3)})
    return d

def compute_special(a, cfg, prog, wv):
    n, XB, WS, BIG = f"sp{wv}", prog.XB, prog.WS, 10 ** 6
    a(f"s_mov_b32 s{S_CNT}, 7\ns_mov_b32 s{S_XOFF}, 1\ns_mov_b32 s{S_DW}, {2 * WS}\ns_mov_b32 s{S_XBP}, {XB}\ns_mov_b32 s{S_DX}, {XB}")
    stage = [f"v_add_u32 v{r}, s{S_DX}, v{r}" for r in V_XA] + [f"v_add_u32 v{r}, s{S_DW}, v{r}" for r in V_WA + V_Q[0][:2]] + [
        f"s_cmp_eq_u32 s{S_XOFF}, 2", f"s_cselect_b32 s{S_DX}, {(-2 * XB) & 0xffffffff}, s{S_XBP}",
        f"s_cselect_b32 s{S_XOFF}, -1, s{S_XOFF}", f"s_add_u32 s{S_XOFF}, s{S_XOFF}, 1", f"s_sub_u32 s{S_DW}, 0, s{S_DW}"]
    def spread(l, i0):
        d = {}
        for i, x in enumerate(l): d.setdefault(i0 + i // 2, []).append(x)
        return d
    def step_loads(step, g0, span):
        ko = key_order(step)
        return [(k, g0 + (i * span) // len(ko), ld_fn(prog, k, step & 1, 0, 0, (step & 1) * WS), BIG) for i, k in enumerate(ko)]
    def step(s, nxt, g1, pre, head=[], czero=False):
        sc = Sched(cfg)
        fx = set_regs(s & 1, s); fx.update(set_regs(nxt & 1, nxt))
        if not head:
            sc.reg.update(fx); sc.given = set(set_regs(s & 1, s)); a("s_waitcnt lgkmcnt(0)")
        mf = [m for p in range(9) for m in group(prog, wv, [s], p, False, True)]
        sc.run(mf, head + step_loads(nxt, g1, cfg.rd_span), {g1: [l[0] for l in head]}, pre, None, 0, BIG, czero=czero, fixed=fx)
        for x in sc.out: a(x)
    step(0, 1, 3, spread(stage, cfg.rd_span + 4), head=step_loads(0, -1, 0), czero=True)
    a(f"L_{n}_loop:")
    step(1, 2, 0, {})
    step(2, 3, 0, spread(stage + [f"s_sub_u32 s{S_CNT}, s{S_CNT}, 1", f"s_cmp_lg_u32 s{S_CNT}, 0"], cfg.rd_span + 1))
    a(f"s_cbranch_scc1 L_{n}_loop")
    stamp(a, cfg, 3)
    a("s_waitcnt lgkmcnt(0)")
    sc = Sched(cfg)
    sc.reg.update(set_regs(1, 15)); sc.given = set(set_regs(1, 15))
    sc.free = [SETB[0] + 4 * i for i in range(17)]
    mf = [m for p in range(9) for m in group(prog, wv, [15], p, False, True)]
    nb = len(mf)
    po = list(range(8)); po.insert(cfg.xpos_sp, 8)
    mf += wavefront(prog, wv, [16], [17], cfg.lead, True, po)
    pl, fx = param_loads(prog)
    sc.run(mf, step_loads(16, 0, cfg.rd_span) + pl + step_loads(17, nb, 0), {0: [], nb: []}, {}, epi_stream(prog, cfg, 12, po), cfg.budget, BIG,
           fixed=fx, release=True, mark=stamp_l(cfg, 4), order=po)
    for x in sc.out: a(x)

vXm, vXq, vW, vE = 2, 3, 4, 5
class Loader:
    def __init__(self, a, cfg, prog):
        self.a, self.cfg, self.prog = a, cfg, prog
        self.seq, self.rot, self.xstate, self.lg = [], False, {}, 0
    def lstamp(self):
        if self.cfg.stamps and self.cfg.lst and self.lg < 64:
            self.a(f"s_memtime s[94:95]\ns_waitcnt lgkmcnt(0)\ns_sub_u32 s94, s94, s{S_ST + 4}\nv_writelane_b32 v40, s94, {self.lg}")
            self.lg += 1
    def dma(self, v, srd, sbase, soff, mbase, moff, tag):
        self.a(f"s_add_u32 m0, s{mbase}, {moff}\ns_add_u32 s{sTmp}, s{sbase}, {soff}\nbuffer_load_dwordx4 v{v}, s[{srd}:{srd + 3}], s{sTmp} offen lds")
        self.seq.append(tag)
    def x(self, t, part=None):
        p = self.prog
        ns = 4 if p.special else 8
        rng = range(ns) if part is None else range(ns // 2) if part == 0 else range(ns // 2, ns)
        assert self.cfg.vb is not None or self.xstate.setdefault(t, self.rot) == self.rot
        for s in rng:
            if self.rot and self.cfg.xrot: self.dma(vXm, S_X, XR_S[s], t * 128, XR_M[s], (t % 3) * p.XB, ('x', t))
            else: self.dma(vXm, S_X, sXm, s * ROWB + t * 128, mXm, (t % 3) * p.XB + s * 2048, ('x', t))
        if not p.special and part != 0: self.dma(vXq, S_X, sXq, t * 128, mXq, (t % 3) * p.QB, ('x', t))
    def w(self, j, part=None):
        p = self.prog
        buf = (j & 3) * p.WS
        for k, tap in enumerate((1, 2, 0)):
            if self.rot and self.cfg.wrot: self.dma(vW, S_W, WR_S[k], j * 32 * ROWB, WR_M[k], buf, ('w', j)); continue
            if part != 1: self.dma(vW, S_W, sW, tap * TAPB + j * 32 * ROWB, mW, buf + tap * 4096, ('w', j))
            if p.special and part != 0: self.dma(vW, S_W, sW, tap * TAPB + j * 32 * ROWB + 128, mW, buf + 12288 + tap * 4096, ('w', j))
        if p.special and part != 0:
            self.a(f"s_mul_i32 s{sTmp + 1}, s{sTmp + 2}, {j & 3}\ns_add_u32 m0, s{mE}, s{sTmp + 1}\ns_add_u32 s{sTmp}, s{sE}, {j * 32 * ROWB}")
            self.a(f"buffer_load_dwordx4 v{vE}, s[{S_W}:{S_W + 3}], s{sTmp} offen lds")
            self.seq.append(('w', j))
    def issue(self, l, relw, relx):
        a, cfg = self.a, self.cfg
        if cfg.verbose: print(self.prog.name, l, file=sys.stderr)
        for it in l.split():
            part = 'ab'.index(it[-1]) if it[-1] in 'ab' else None
            if it == 'B':
                for i, sp in enumerate((8, 10, 12, 14)):
                    a(f"global_load_ushort v{20 + i}, v6, s[{sp}:{sp + 1}]"); self.seq.append(('b', 0))
            elif it == 'P':
                if cfg.wpf: a(f"buffer_load_dword v30, v8, s[{S_W}:{S_W + 3}], 0 offen"); self.seq.append(('p', 0))
                if cfg.xspf: a(f"buffer_load_dword v31, v9, s[{S_X}:{S_X + 3}], 0 offen"); self.seq.append(('p', 0))
            elif it == 'C':
                a("global_load_dword v30, v18, s[96:97]"); self.seq.append(('p', 0))
            elif it[0] == 'Q':
                a(f"s_add_u32 s{sTmp}, s72, {int(it[1:]) * 128}\nbuffer_load_dword v30, v17, s[{S_X}:{S_X + 3}], s{sTmp} offen"); self.seq.append(('p', 0))
            else:
                n = int(it.rstrip('ab')[1:])
                assert n <= (relw if it[0] == 'W' else relx), ('slot still in use', it)
                (self.w if it[0] == 'W' else self.x)(n, part)
    def wait(self, need):
        for t in need:
            full = 4 if t[0] == 'b' else ((7, 4) if self.prog.special else (3, 9))[t[0] == 'x']
            assert self.seq.count(t) == full, t
        self.a(f"s_waitcnt vmcnt({len(self.seq) - 1 - max(i for i, t in enumerate(self.seq) if t in need)})")
    def bn_finish(self):
        a = self.a
        self.wait({('b', 0)})
        for i in range(4): a(f"v_lshlrev_b32 v{20 + i}, 16, v{20 + i}")
        a("v_add_f32 v21, 0x3727c5ac, v21\nv_rsq_f32 v21, v21\ns_nop 0\nv_mul_f32 v21, v21, v22\nv_fma_f32 v23, -v20, v21, v23")
        a(f"v_mul_f32 v21, s{S_C}, v21\nv_mul_f32 v23, s{S_C}, v23\nds_write_b32 v7, v21\nds_write_b32 v7, v23 offset:256")
    def bar(self, need):
        if need: self.wait(need)
        self.lstamp(); self.a("s_barrier"); self.lstamp()
    def end(self):
        a = self.a
        nw, nx = (7, 4) if self.prog.special else (3, 9)
        assert sum(t[0] == 'w' for t in self.seq) == 18 * nw and sum(t[0] == 'x' for t in self.seq) == 9 * nx
        if self.cfg.stamps and self.cfg.lst:
            a(f"s_cmp_lg_u32 s{S_WAVE}, 4\ns_cbranch_scc1 L_end\ns_load_dwordx2 s[4:5], s[0:1], 64\ns_waitcnt lgkmcnt(0)")
            a(f"s_lshl_b32 s{T}, s2, 9\ns_add_u32 s{T}, s{T}, 0x100000\nv_lshl_add_u32 v41, v0, 2, s{T}\nglobal_store_dword v41, v40, s[4:5]")
        a("s_endpgm")

def auto(items, given):
    out = []
    for it in items:
        base = it.rstrip('ab')
        if it in given or base in given or (it == base and base + 'a' in given): continue
        if int(base[1:]) < (18 if it[0] == 'W' else 9): out.append(it)
    return ' ' + ' '.join(out)

def loader_pure(a, cfg, prog, head, far):
    L = Loader(a, cfg, prog); L.seq = list(head); L.xstate[0] = False; L.lg = 1
    a(f"s_mul_i32 s{T + 5}, s{T}, 9\ns_add_u32 s{T + 5}, s{T + 5}, 1")
    a(f"v_add_u32 v13, s{T + 5}, v10\nv_bfe_u32 v13, v13, 1, 3\nv_and_b32 v12, 7, v0\nv_xor_b32 v13, v13, v12\nv_lshl_add_u32 v{vXq}, v13, 4, v14")
    a(f"s_lshl_b32 s{mXq}, s{T + 5}, 7\ns_add_u32 s{mXq}, s{mXq}, {prog.QB0}")
    a(f"s_add_u32 s{T + 5}, s{T}, 32\ns_mul_i32 s{T + 5}, s{T + 5}, {BATB}\ns_add_u32 s{sXq}, s{T + 5}, s{S_B0}")
    parts = cfg.pre.split('|') + [''] * 12
    given = set(' '.join(parts).replace('/', ' ').split())
    if cfg.vb is not None:
        L.issue(cfg.pre_vb, 3, 2)
    elif cfg.v0b is not None:
        p0, p1 = parts[0].split('/')
        L.issue(p0, 3, 2)
        idx = [i for i, t_ in enumerate(L.seq) if t_ in (('w', 0), ('w', 1))] + [i for i, t_ in enumerate(L.seq) if t_ == ('x', 0)][:4]
        a(f"s_waitcnt vmcnt({len(L.seq) - 1 - max(idx)})\ns_barrier")
        L.issue(p1, 3, 2)
    else: L.issue(parts[0], 3, 2)
    L.lstamp()
    def late_setup(L, wlead=False):
        a = L.a
        a(f"v_lshl_add_u32 v6, v0, 1, s{T + 4}\nv_lshlrev_b32 v7, 2, v0\nv_add_u32 v7, {prog.TB}, v7\nv_mov_b32 v13, 0x40000000")
        if cfg.wpf:
            a(f"s_mul_i32 s{T + 6}, s2, 61\ns_lshl_b32 s{T + 5}, s{T}, 4\ns_add_u32 s{T + 6}, s{T + 6}, s{T + 5}")
            a(f"v_cmp_gt_u32 vcc, 16, v0\nv_add_u32 v8, s{T + 6}, v0\nv_lshlrev_b32 v8, 7, v8\nv_cndmask_b32 v8, v13, v8, vcc")
        if cfg.xspf:
            a(f"s_and_b32 s{T + 6}, s{S_T}, 31\ns_mul_i32 s{T + 6}, s{T + 6}, 40\ns_mul_i32 s{T + 5}, s{T}, 10\ns_add_u32 s{T + 6}, s{T + 6}, s{T + 5}")
            a(f"s_add_u32 s{T + 6}, s{T + 6}, {1008 * 72}\ns_cmp_lt_u32 s{S_T}, 32\ns_cselect_b32 s{T + 5}, 0, 10")
            a(f"v_cmp_gt_u32 vcc, s{T + 5}, v0\nv_add_u32 v9, s{T + 6}, v0\nv_lshlrev_b32 v9, 7, v9\nv_cndmask_b32 v9, v13, v9, vcc")
        if cfg.qlate or 'Q' in cfg.pre:
            a(f"s_lshr_b32 s{T + 1}, s{S_T}, 5\ns_mul_i32 s{T + 1}, s{T + 1}, 3\ns_mul_i32 s{T + 2}, s{S_M}, 7\ns_add_u32 s{T + 1}, s{T + 1}, s{T + 2}\ns_mul_i32 s72, s{T + 1}, {288 * ROWB}")
            a(f"s_lshr_b32 s{T + 1}, s2, 3\ns_lshl_b32 s{T + 1}, s{T + 1}, 2\ns_add_u32 s{T + 1}, s{T + 1}, s{T}\ns_mul_i32 s{T + 1}, s{T + 1}, {9 * ROWB}\ns_add_u32 s72, s72, s{T + 1}")
            a(f"v_min_u32 v17, 8, v0\nv_mul_u32_u24 v17, {ROWB}, v17")
        if cfg.refresh:
            a(f"s_getpc_b64 s[96:97]\nL_pc2{'w' if wlead else ''}:\ns_lshr_b32 s{T + 1}, s2, 3\ns_lshl_b32 s{T + 1}, s{T + 1}, 2\ns_add_u32 s{T + 1}, s{T + 1}, s{T}\ns_mul_i32 s{T + 1}, s{T + 1}, 384")
            a(f"v_min_u32 v18, 2, v0\nv_lshl_add_u32 v18, v18, 7, s{T + 1}\nv_min_u32 v18, L_end-L_pc2{'w' if wlead else ''}, v18")
        if cfg.wrot:
            a(f"s_mul_i32 s{T}, s{S_R}, 43\ns_lshr_b32 s{T}, s{T}, 7\ns_mul_i32 s{T}, s{T}, 3\ns_sub_u32 s{T}, s{S_R}, s{T}")
            for k in range(3):
                if k: a(f"s_add_u32 s{T}, s{T}, 1\ns_cmp_eq_u32 s{T}, 3\ns_cselect_b32 s{T}, 0, s{T}")
                a(f"s_mul_i32 s{T + 1}, s{T}, {TAPB}\ns_add_u32 s{WR_S[k]}, s{sW}, s{T + 1}\ns_lshl_b32 s{T + 1}, s{T}, 12\ns_add_u32 s{WR_M[k]}, s{mW}, s{T + 1}")
        if cfg.xrot:
            for k in range(8):
                if cfg.vb is not None: a(f"s_add_u32 s{T}, s{S_LINE}, {k}\ns_and_b32 s{T}, s{T}, 3\ns_or_b32 s{T}, s{T}, {k & 4}\ns_mul_i32 s{T + 1}, s{T}, {ROWB}\ns_add_u32 s{XR_S[k]}, s{sXm}, s{T + 1}")
                else: a(f"s_add_u32 s{T}, s{S_LINE}, {k}\ns_and_b32 s{T}, s{T}, 7\ns_mul_i32 s{T + 1}, s{T}, {ROWB}\ns_add_u32 s{XR_S[k]}, s{sXm}, s{T + 1}")
                a(f"s_lshl_b32 s{T}, s{T}, 11\ns_add_u32 s{XR_M[k]}, s{mXm}, s{T}")
        L.rot = True
    if cfg.vb is not None: return loader_split(a, cfg, L, late_setup, far)
    late_setup(L)
    relw = 3
    for t in range(9):
        if t == 3: a("s_waitcnt lgkmcnt(0)")
        L.bar({('w', 2 * t), ('w', 2 * t + 1), ('x', t)})
        l = parts[t + 1] + (' B' if t == 0 else '')
        if t >= 1:
            relw = max(relw, 2 * t + 3)
            if t - 1 not in cfg.rw: l += auto([f"W{2 * t + 2}", f"W{2 * t + 3}"], given)
            l += auto([f"X{t + 2}"], given)
        L.issue(l + ' ' + cfg.qlate.get(t, '') + (' C' if cfg.refresh and cfg.refresh == t else ''), relw, t + 2)
        if t == 2: L.bn_finish()
        if t in cfg.rw:
            a("s_barrier")
            relw = 2 * t + 5
            L.issue(auto([f"W{2 * t + 4}", f"W{2 * t + 5}"], given), relw, 0)
    L.end()

def loader_split(a, cfg, L, late_setup, far):
    import copy
    def run(L, order, done, relw, relx, wlead):
        a = L.a
        def xidx(t, part):
            idx = [i for i, g in enumerate(L.seq) if g == ('x', t)]
            assert len(idx) >= (4 if part == 0 else 9), (t, part)
            return idx[3] if part == 0 else idx[8]
        def go(items):
            l = [i for i in items if i not in done and int(i.rstrip('ab')[1:]) < (18 if i[0] == 'W' else 9)]
            done.update(l); L.issue(' '.join(l), relw, relx)
        for n, (kind, t) in enumerate(order):
            if kind != '-':
                if kind == 'a':
                    for j in (2 * t, 2 * t + 1): assert L.seq.count(('w', j)) == 3
                    last = max([i for i, g in enumerate(L.seq) if g in (('w', 2 * t), ('w', 2 * t + 1))] + [xidx(t, 0)])
                else: last = xidx(t, 1)
                a(f"s_waitcnt vmcnt({len(L.seq) - 1 - last})" + (" lgkmcnt(0)" if (kind, t) == ('a', 4) else ""))
                L.lstamp(); a("s_barrier"); L.lstamp()
            if kind == 'a':
                relx = t + 2; relw = max(relw, 2 * t + 3)
                if wlead: go([f"X{t + 1}a", f"X{t + 1}b"] + (['X8a'] if t == 6 else []))
                else: go((['X1a'] if t == 0 else []) + [f"W{2 * t + 2}", f"W{2 * t + 3}"] + (['X8b'] if t == 7 else []))
                if t == 3: L.bn_finish()
            else:
                if cfg.dual or t in cfg.rw: relw = 2 * t + 5
                if (kind, t) == ('b', 0) and cfg.dual:
                    if cfg.dualsel == 0: a(f"s_add_u32 s{sTmp}, s{S_R}, s{S_LINE}\ns_bitcmp1_b32 s{sTmp}, 0\ns_cbranch_scc1 L_ld_w")
                    elif cfg.dualsel == 1: a(f"s_and_b32 s{sTmp}, s{S_R}, 3\ns_and_b32 s{sTmp + 1}, s{S_LINE}, 3\ns_cmp_eq_u32 s{sTmp}, s{sTmp + 1}\ns_cbranch_scc1 L_ld_w")
                    else: a("s_branch L_ld_w")
                    L2 = copy.copy(L); L2.seq = list(L.seq); L2.a = far
                    far("L_ld_w:")
                    run(L2, [('-', 0)] + order[n + 1:], set(done), relw, relx, True)
                if wlead: go((['X1b'] if t == 0 else []) + [f"W{2 * t + 4}", f"W{2 * t + 5}"])
                elif t == 6 and 6 in cfg.rw: go(['X7b', 'X8a', 'W16', 'W17'])
                else: go([f"X{t + 1}b", f"X{t + 2}a"])
                if t == 0: late_setup(L, wlead); L.issue('B', 0, 0)
            L.issue(cfg.extra_vb.get((kind, t), ''), 0, 0)
        L.end()
    run(L, cfg.bar_order, set(cfg.pre_vb.split()) | {'W0', 'X0a'}, 3, 2, False)

def loader_special(a, cfg, prog, head):
    L = Loader(a, cfg, prog); L.seq = list(head); L.lg = 1
    a("v_lshrrev_b32 v13, 1, v0\nv_bfe_u32 v14, v0, 4, 1\nv_lshlrev_b32 v14, 2, v14\nv_xor_b32 v13, v13, v14")
    a(f"v_mul_u32_u24 v13, {ROWB}, v13\nv_and_b32 v14, 1, v0\nv_lshl_add_u32 v{vE}, v14, 4, v13")
    a(f"s_mul_i32 s{sE}, s{T}, {TAPB}\ns_lshl_b32 s{T + 5}, s{S_M}, 5\ns_add_u32 s{T + 5}, s{T + 5}, 1024\ns_add_u32 s{sE}, s{sE}, s{T + 5}")
    a(f"s_lshl_b32 s{mE}, s{T}, 10\ns_add_u32 s{mE}, s{mE}, {prog.WB0 + 24576}\ns_cmp_eq_u32 s{T}, 3")
    a(f"s_cselect_b32 s{mE}, {prog.WB0 + 4 * prog.WS}, s{mE}\ns_cselect_b32 s{sTmp + 2}, 0, {prog.WS}\ns_cselect_b32 s{T + 6}, 0x40000000, 0")
    a(f"v_add_u32 v{vE}, s{T + 6}, v{vE}")
    parts = cfg.pre_sp.split('|') + [''] * 20
    given = set(' '.join(parts).split()) | {'X0', 'W0'}
    L.issue(parts[0], 3, 2)
    L.lstamp()
    a(f"s_lshl_b32 s{T + 6}, s{T + 1}, 7\ns_add_u32 s{T + 6}, s{T + 6}, s{T + 4}\ns_cmp_ge_u32 s{T}, 2\ns_cselect_b32 s{T + 6}, s{T + 5}, s{T + 6}")
    a(f"v_lshl_add_u32 v6, v0, 1, s{T + 6}\nv_min_u32 v6, 1150, v6")
    a(f"s_min_u32 s{T + 6}, s{T}, 2\ns_lshl_b32 s{T + 6}, s{T + 6}, 9\ns_add_u32 s{T + 6}, s{T + 6}, {prog.TB}\nv_lshl_add_u32 v7, v0, 2, s{T + 6}")
    for j in range(18):
        if j == 6: a("s_waitcnt lgkmcnt(0)")
        L.bar({('w', j), ('x', j >> 1)})
        d = cfg.sp_ahead
        l = parts[j + 1] + auto([f"W{j + d}", f"X{(j + 3) >> 1}" + 'ba'[j & 1]], given) + (' B' if j == 0 else '')
        L.issue(l, max(3, j + 3), max(2, (j >> 1) + 2))
        if j == 4: L.bn_finish()
    L.end()

def compute_setup(a, cfg, prog):
    sp = prog.special
    a(f"s_lshr_b32 s{T}, s{S_WAVE}, 1\ns_and_b32 s{T + 1}, s{S_WAVE}, 1")
    a("v_and_b32 v60, 15, v0\nv_lshrrev_b32 v61, 4, v0")
    if sp: a(f"s_add_u32 s{S_LINE}, s{S_LINE}, s{T}")
    a(f"s_lshl_b32 s{T + 2}, s{S_LINE}, 7\ns_lshl_b32 s{T + 3}, s{T + 1}, 6\ns_add_u32 s{T + 2}, s{T + 2}, s{T + 3}")
    a(f"s_lshl_b32 s{T + 3}, s{T + 1}, 7\ns_add_u32 s{T + 3}, s{T + 3}, {prog.TB}")
    if sp:
        a(f"s_lshl_b32 s{T + 4}, s{T}, 9\ns_add_u32 s{T + 3}, s{T + 3}, s{T + 4}")
        a(f"v_lshlrev_b32 v{V_PE}, 4, v61\nv_add_u32 v{V_PE}, {prog.TB + 1024}, v{V_PE}")
    a(f"v_lshl_add_u32 v{V_PA}, v61, 4, s{T + 3}")
    a("v_and_b32 v62, 1, v61\nv_lshrrev_b32 v63, 1, v61")
    a(f"v_mul_u32_u24 v{V_OM}, {BATB}, v60\nv_lshl_add_u32 v{V_OM}, v63, 4, v{V_OM}")
    if not sp:
        a(f"v_lshl_add_u32 v{V_OM}, v62, 5, v{V_OM}\nv_lshrrev_b32 v71, 3, v60\nv_and_b32 v72, 7, v60")
        a(f"v_mul_u32_u24 v{V_OE}, {BATB}, v71\nv_mul_u32_u24 v64, {ROWB}, v72\nv_add_u32 v{V_OE}, v{V_OE}, v64")
        a(f"v_lshl_add_u32 v{V_OE}, v63, 4, v{V_OE}\nv_lshl_add_u32 v{V_OE}, v62, 5, v{V_OE}")
        a(f"s_mul_i32 s{T + 3}, s{T}, {16 * BATB}\ns_add_u32 s{S_OM}, s{S_B0}, s{T + 3}\ns_add_u32 s{S_OM}, s{S_OM}, s{T + 2}")
        a(f"s_mul_i32 s{T + 3}, s{T}, {2 * BATB}\ns_add_u32 s{S_OE}, s{S_B0}, s{T + 3}\ns_add_u32 s{S_OE}, s{S_OE}, {32 * BATB}\ns_add_u32 s{S_OE}, s{S_OE}, s{T + 2}")
        a(f"s_mul_i32 s{T + 3}, s{T}, 18\nv_mad_u32_u24 v64, v71, 9, v72\nv_add_u32 v64, s{T + 3}, v64")
        for t in range(3):
            a(f"v_add_u32 v65, {t}, v64\nv_bfe_u32 v66, v65, 1, 3\nv_xor_b32 v66, v66, v61\nv_lshlrev_b32 v66, 4, v66")
            a(f"v_lshl_add_u32 v66, v65, 7, v66\nv_add_u32 v{V_Q[0][t]}, {prog.QB0}, v66\nv_xor_b32 v{V_Q[1][t]}, 64, v{V_Q[0][t]}")
    else:
        a(f"v_mul_u32_u24 v64, {ROWB}, v62\nv_add_u32 v{V_OE}, v{V_OM}, v64\nv_lshl_add_u32 v{V_OM}, v62, 5, v{V_OM}")
        a(f"s_add_u32 s{S_OM}, s{S_B0}, s{T + 2}\ns_mul_i32 s{T + 3}, s{S_WAVE}, {2 * ROWB}\ns_add_u32 s{S_OE}, s{S_B0}, s{T + 3}")
        a(f"s_lshl_b32 s{T + 3}, s{S_M}, 5\ns_add_u32 s{S_OE}, s{S_OE}, s{T + 3}\ns_add_u32 s{S_OE}, s{S_OE}, 1024")
    a(f"s_add_u32 s{S_OM2}, s{S_OM}, {4 * ROWB}")
    a(f"v_lshrrev_b32 v64, 1, v60\nv_xor_b32 v64, v64, v61\nv_lshlrev_b32 v64, 4, v64\nv_lshl_add_u32 v{V_XA[0]}, v60, 7, v64")
    if not sp: a(f"s_mul_i32 s{T + 3}, s{T}, {prog.XBT}\nv_add_u32 v{V_XA[0]}, s{T + 3}, v{V_XA[0]}")
    a(f"v_xor_b32 v{V_XA[1]}, 64, v{V_XA[0]}")
    a("v_lshrrev_b32 v64, 2, v60\nv_and_b32 v65, 3, v60\nv_lshl_add_u32 v66, v61, 3, v64\nv_and_b32 v67, 2, v64\nv_lshl_add_u32 v67, v62, 2, v67")
    a(f"s_lshl_b32 s{T + 3}, s{T + 1}, 2\nv_lshrrev_b32 v68, 1, v65\nv_add_u32 v68, s{T + 3}, v68")
    a("v_and_b32 v69, 1, v65\nv_lshlrev_b32 v69, 3, v69\nv_lshl_add_u32 v69, v66, 7, v69")
    if sp: a(f"s_mul_i32 s{T + 3}, s{T}, 12288\ns_add_u32 s{T + 3}, s{T + 3}, {prog.WB0}\nv_add_u32 v69, s{T + 3}, v69")
    else: a(f"v_add_u32 v69, {prog.WB0}, v69")
    for c in range(2): a(f"v_add_u32 v70, {2 * c}, v68\nv_xor_b32 v70, v70, v67\nv_lshl_add_u32 v{V_WA[c]}, v70, 4, v69")
    if sp:
        a("v_lshl_add_u32 v70, v62, 2, v66\nv_lshlrev_b32 v70, 5, v70\nv_lshl_add_u32 v70, v65, 3, v70")
        a(f"v_add_u32 v{V_Q[0][0]}, {prog.WB0 + 24576}, v70\nv_xor_b32 v70, 128, v70\nv_add_u32 v{V_Q[0][1]}, {prog.WB0 + 24576}, v70")
    else:
        a("v_mov_b32 v72, 0\nv_mov_b32 v73, 0\nv_mov_b32 v74, 0\nv_mov_b32 v75, 0")
        a(f"v_lshrrev_b32 v64, 3, v0\ns_lshl_b32 s{T + 3}, s{S_WAVE}, 3\nv_add_u32 v64, s{T + 3}, v64\nv_min_u32 v64, 14, v64")
        a("v_mul_u32_u24 v65, 52, v64\nv_lshrrev_b32 v65, 8, v65\nv_mul_u32_u24 v66, 5, v65\nv_sub_u32 v66, v64, v66")
        a(f"v_mul_u32_u24 v65, {prog.QB}, v65\nv_mul_u32_u24 v66, {9 * 128}, v66\nv_add_u32 v65, v65, v66")
        a(f"v_and_b32 v66, 7, v0\nv_lshl_add_u32 v65, v66, 4, v65\nv_add_u32 v65, {prog.QB0}, v65\nds_write_b128 v65, v[72:75]")
    a(f"s_mov_b32 s{S_O + 2}, {XBYTES}\ns_mov_b32 s{S_O + 3}, 0x20000\ns_waitcnt vmcnt(0) lgkmcnt(0)")

def finish(a, cfg):
    a("L_fin:")
    stamp(a, cfg, 5)
    if cfg.echo is not None or cfg.stamps:
        a("s_waitcnt vmcnt(0)"); stamp(a, cfg, 6)
    if cfg.echo is not None:
        a(f"s_memrealtime s[80:81]\ns_waitcnt lgkmcnt(0)\ns_sub_u32 s78, s78, s76\ns_mul_i32 s78, s78, {cfg.echo[1]}")
        a(f"s_cmp_eq_u32 s2, {cfg.echo[2]}\ns_cselect_b32 s78, s78, 0")
        a("L_echo:\ns_memrealtime s[82:83]\ns_waitcnt lgkmcnt(0)\ns_sub_u32 s82, s82, s80\ns_cmp_lt_u32 s82, s78\ns_cbranch_scc1 L_echo")
    if cfg.stamps:
        a(f"s_cmp_lg_u32 s{S_WAVE}, 0\ns_cbranch_scc1 L_end\ns_memrealtime s[{S_ST + 2}:{S_ST + 3}]\ns_load_dwordx2 s[4:5], s[0:1], 64\ns_waitcnt lgkmcnt(0)")
        for i in range(4): a(f"v_mov_b32 v{16 + i}, s{S_ST + i}")
        for i in range(1, 7): a(f"s_sub_u32 s{T}, s{S_ST + 4 + 2 * i}, s{S_ST + 4}\nv_mov_b32 v{18 + 2 * i}, s{T}\nv_mov_b32 v{19 + 2 * i}, 0")
        a(f"s_mul_i32 s{T}, s2, 64\nv_mov_b32 v32, s{T}\nv_cmp_eq_u32 vcc, 0, v0\ns_and_saveexec_b64 s[6:7], vcc")
        for i in range(4): a(f"global_store_dwordx4 v32, v[{16 + 4 * i}:{19 + 4 * i}], s[4:5] offset:{16 * i}")

def gen(cfg):
    a = A()
    a.L.append(open('standalone__batchnorm__sampling.s.ref').read().split('; Override')[0].rstrip())
    a.L.append("; @launch grid=(256,1,1) block=(512,1,1) lds=163840")
    a(f'.amdgcn_target "amdgcn-amd-amdhsa--gfx950"\n.text\n.globl {KNAME}\n.p2align 8\n.type {KNAME},@function\n{KNAME}:')
    pu, sp = Prog(False), Prog(True)
    stamp(a, cfg, 0)
    a("s_cmp_ge_u32 s2, 256\ns_cbranch_scc1 L_end")
    a(f"s_load_dwordx2 s[{S_W}:{S_W + 1}], s[0:1], 8\ns_load_dwordx2 s[{S_X}:{S_X + 1}], s[0:1], 0")
    a(f"s_load_dwordx8 s[8:15], s[0:1], 16\ns_load_dwordx2 s[{S_O}:{S_O + 1}], s[0:1], 48")
    a(f"s_lshr_b32 s{T + 1}, s2, 3")
    if cfg.cpfn:
        a(f"s_getpc_b64 s[58:59]\nL_pc:\ns_and_b32 s{T}, s{T + 1}, {cfg.cpfg - 1}\ns_mul_i32 s{T}, s{T}, {cfg.cpfn * 128}")
        a(f"v_lshl_add_u32 v1, v0, 7, s{T}\nv_min_u32 v1, L_end-L_pc, v1")
        a(f"v_cmp_gt_u32 vcc, {cfg.cpfn}, v0\ns_and_saveexec_b64 s[60:61], vcc\ns_cbranch_execz L_nopf")
        a("global_load_dword v254, v1, s[58:59]\nL_nopf:\ns_mov_b64 exec, s[60:61]")
    a(f"v_lshrrev_b32 v1, 6, v0\nv_and_b32 v0, 63, v0\ns_and_b32 s{T}, s2, 7\nv_readfirstlane_b32 s{S_WAVE}, v1")
    if cfg.spearly == 2:
        a(f"s_lshr_b32 s{S_M}, s{T}, 1\ns_andn2_b32 s{T}, 1, s{T}\ns_lshl_b32 s{T}, s{T}, 5\ns_add_u32 s{S_T}, s{T}, s{T + 1}")
    elif cfg.spearly:
        a(f"s_and_b32 s{S_M}, s{T}, 3\ns_andn2_b32 s{T}, 4, s{T}\ns_lshl_b32 s{T}, s{T}, 3\ns_add_u32 s{S_T}, s{T}, s{T + 1}")
    else:
        a(f"s_lshr_b32 s{S_M}, s{T}, 1\ns_and_b32 s{T}, s{T}, 1\ns_lshl_b32 s{T}, s{T}, 5\ns_add_u32 s{S_T}, s{T}, s{T + 1}")
    a(f"s_mul_i32 s{S_R}, s{S_T}, 57\ns_lshr_b32 s{S_R}, s{S_R}, 9\ns_mul_i32 s{T}, s{S_R}, 9\ns_sub_u32 s{S_LINE}, s{S_T}, s{T}")
    a(f"s_mul_i32 s{T}, s{S_M}, 7\ns_add_u32 s{S_R}, s{S_R}, s{T}\ns_lshl_b32 s{T}, s{S_M}, 1")
    a(f"s_cmp_eq_u32 s{S_T}, 63\ns_cselect_b32 s{S_LINE}, s{T}, s{S_LINE}\ns_cselect_b32 s{S_R}, 28, s{S_R}\ns_cselect_b32 s{S_SP}, 1, 0")
    a(f"s_mul_i32 s{S_B0}, s{S_R}, {36 * BATB}\ns_mov_b32 s{S_C}, {NLOG2E:#x}\ns_mov_b32 s{S_C + 1}, s{S_C}")
    a(f"s_cmp_ge_u32 s{S_WAVE}, 4\ns_cbranch_scc0 L_comp")
    a(f"s_sub_u32 s{T}, s{S_WAVE}, 4\ns_and_b32 s{T + 1}, s{T}, 1\ns_lshr_b32 s{T + 2}, s{T}, 1\ns_lshl_b32 s{T + 3}, s{T + 1}, 2")
    a(f"v_lshrrev_b32 v10, 3, v0\nv_and_b32 v11, 7, v0\nv_lshrrev_b32 v12, 1, v10\nv_xor_b32 v11, s{T + 3}, v11")
    a(f"v_and_b32 v13, 2, v10\nv_xor_b32 v13, v13, v11\nv_mul_u32_u24 v14, {ROWB}, v10\nv_lshl_add_u32 v{vW}, v13, 4, v14")
    a(f"v_xor_b32 v13, v12, v11\nv_mul_u32_u24 v15, {BATB}, v10\nv_lshl_add_u32 v{vXm}, v13, 4, v15")
    a(f"s_mul_i32 s{sW}, s{T}, {8 * ROWB}\ns_lshl_b32 s{T + 4}, s{S_LINE}, 7\ns_add_u32 s{sW}, s{sW}, s{T + 4}")
    a(f"s_mul_i32 s{sXm}, s{T + 1}, {8 * BATB}\ns_add_u32 s{sXm}, s{sXm}, s{S_B0}")
    a(f"s_mov_b32 s{T + 3}, {pu.WB0}\ns_mov_b32 s{T + 5}, {16 * BATB}\ns_mov_b32 s{T + 6}, {pu.XBT}\ns_cmp_eq_u32 s{S_SP}, 1")
    a(f"s_cselect_b32 s{T + 3}, {sp.WB0}, s{T + 3}\ns_cselect_b32 s{T + 5}, {4 * ROWB}, s{T + 5}\ns_cselect_b32 s{T + 6}, 8192, s{T + 6}")
    a(f"s_lshl_b32 s{mW}, s{T}, 10\ns_add_u32 s{mW}, s{mW}, s{T + 3}\ns_mul_i32 s{T + 5}, s{T + 5}, s{T + 2}\ns_add_u32 s{sXm}, s{sXm}, s{T + 5}")
    a(f"s_mul_i32 s{T + 6}, s{T + 6}, s{T + 2}\ns_lshl_b32 s{mXm}, s{T + 1}, 10\ns_add_u32 s{mXm}, s{mXm}, s{T + 6}")
    a(f"s_mov_b32 s{S_W + 2}, {WBYTES}\ns_mov_b32 s{S_W + 3}, 0x20000\ns_mov_b32 s{S_X + 2}, {XBYTES}\ns_mov_b32 s{S_X + 3}, 0x20000")
    H = Loader(A(), cfg, pu); H.w(0); H.x(0, 0)
    for x in H.a.L[:2]: a(x)
    a("s_waitcnt lgkmcnt(0)")
    if cfg.stamps: Loader(a, cfg, pu).lstamp()
    for x in H.a.L[2:]: a(x)
    a(f"s_cmp_eq_u32 s{S_SP}, 1\ns_cbranch_scc1 L_sp_ld")
    body = A(); compute_pure(body, cfg, pu)
    far = A()
    loader_pure(a, cfg, pu, H.seq, far)
    a(f"L_comp:\ns_cmp_eq_u32 s{S_SP}, 1\ns_cbranch_scc1 L_sp_comp")
    compute_setup(a, cfg, pu)
    stamp(a, cfg, 1); a("s_barrier"); stamp(a, cfg, 2)
    a.L += body.L
    finish(a, cfg)
    a("s_endpgm")
    a.L += far.L
    a("L_sp_ld:")
    loader_special(a, cfg, sp, H.seq)
    a("L_sp_comp:")
    compute_setup(a, cfg, sp)
    for wv in range(1, 4): a(f"s_cmp_eq_u32 s{S_WAVE}, {wv}\ns_cbranch_scc1 L_sp{wv}_go")
    for wv in range(4):
        a(f"L_sp{wv}_go:")
        stamp(a, cfg, 1); a("s_barrier"); stamp(a, cfg, 2)
        compute_special(a, cfg, sp, wv)
        a("s_branch L_fin" if cfg.stamps or cfg.echo else "s_endpgm")
    a("L_end:\ns_endpgm")
    a(f""".section .rodata,"a"
.p2align 6
.amdhsa_kernel {KNAME}
  .amdhsa_next_free_vgpr 256
  .amdhsa_next_free_sgpr 102
  .amdhsa_accum_offset 256
  .amdhsa_group_segment_fixed_size 0
  .amdhsa_kernarg_size 72
  .amdhsa_user_sgpr_count 2
  .amdhsa_user_sgpr_kernarg_segment_ptr 1
  .amdhsa_system_sgpr_workgroup_id_x 1
  .amdhsa_float_denorm_mode_32 3
.end_amdhsa_kernel""")
    return a.text() + '\n'

if __name__ == '__main__':
    ap = argparse.ArgumentParser()
    ap.add_argument('-o', default='k.s')
    ap.add_argument('opts', nargs='*')
    args = ap.parse_args()
    kw = {}
    for o in args.opts:
        k, v = o.split('=', 1)
        try: v = eval(v)
        except Exception: pass
        kw[k] = v
    open(args.o, 'w').write(gen(Cfg(**kw)))
```

```python
import sys, argparse, re

KNAME = "standalone__batchnorm__sampling_kernel"
ROWB, BATB, TAPB = 1152, 9216, 663552
XBYTES, WBYTES = 9437184, 1990656
NLOG2E = 0xbfb8aa3b

class Cfg:
    def __init__(self, **kw):
        self.stamps = False; self.lst = False; self.echo = None; self.verbose = False
        self.stflags = 'sc1'; self.stflags_e = ''
        self.cpfg, self.cpfn = 8, 57
        self.wpf = False; self.xspf = True; self.xrot = True; self.wrot = True
        self.qlate = {2: 'Q5 Q6', 4: 'Q7 Q8'}
        self.pre = 'W1 X0b / X1 | W2 W3 X2 | P'
        self.pre_sp = 'W0b W1 X1a'
        self.sp_ahead = 2
        self.barv, self.barw, self.rw = 76, 36, (6,)
        self.lookf, self.npre = 26, 12
        self.lead4, self.bar16, self.budget4, self.epk = 4, 21, 8, 5
        self.rd_span, self.lead, self.budget, self.epk_sp = 36, 2, 8, 3
        self.maxld, self.urgent, self.aged = 1, 10, 10
        self.cvtcost = 4
        self.spearly = 2
        self.vb8 = 14
        self.pre_vb = 'W1 w9 X0b X1a'
        self.extra_vb = {('b', 1): 'P', ('b', 2): 'Q5 Q6', ('b', 4): 'Q7 Q8 C'}
        self.vb = 20
        self.early = False
        self.dual = False
        self.pre_w = 'W1 X0b W2'
        self.dualsel = 0
        self.v0b = 16
        self.zig = True
        self.refresh = 4
        self.rfn, self.rfo = 3, 8064
        self.xpos, self.xpos_sp = 8, 8
        self.bar_order = None
        self.kofs = None; self.anchor = {k: 0 for k in ('pu', 'spld', 'sp0', 'sp1', 'sp2', 'sp3')}; self.touch = ('pu', 'sp0', 'sp1', 'sp2', 'sp3')
        self.entry_pad = 3328
        self.pad_sp = 0
        self.align = None
        self.align_sp = None
        for k in kw: assert hasattr(self, k), k
        self.__dict__.update(kw)
        if self.kofs is None: self.kofs = 0xd00 if self.entry_pad is None else (self.entry_pad + 768) % 4096

class A:
    def __init__(self): self.L = []
    def __call__(self, s):
        for l in s.split('\n'):
            l = l.strip()
            if l: self.L.append(l)
    def text(self):
        return '\n'.join((l if l.endswith(':') or l[0] in '.;' else '  ' + l) for l in self.L)

V_XA = [2, 1]
V_Q = [[3, 4, 5], [11, 12, 13]]
V_WA = [6, 7]
V_OM, V_OE, V_PA, V_PE = 8, 9, 10, 11
SETB = [16, 84]
def XF(s, p): return SETB[s] + 4 * p
def EF(s, t): return SETB[s] + 32 + 4 * t
def WF(s, c, t): return SETB[s] + 44 + 4 * (3 * c + t)
ACC = 152
def TILE(p, c): return ACC + 4 * (2 * p + c)
PS = 224
def P_S(c): return PS + 4 * c
def P_B(c): return PS + 8 + 4 * c
PE_S, PE_B, TMPE = 240, 244, 248
def r4(b): return f"v[{b}:{b+3}]"
def r2(b): return f"v[{b}:{b+1}]"
S_X, S_W, S_O = 20, 24, 28
S_WAVE, S_SP, S_M, S_T, S_R, S_LINE, S_B0 = 33, 35, 36, 37, 38, 39, 40
T = 41
S_OM, S_OM2, S_OE, S_DX, S_DW, S_CNT, S_XOFF, S_XBP, S_C = 48, 49, 50, 51, 52, 53, 54, 55, 56
sXm, sXq, sW, mXm, mXq, mW, sE, mE, sTmp = 62, 63, 64, 65, 66, 67, 68, 69, 70
XR_S = [44, 45, 46, 47, 48, 49, 50, 51]; XR_M = [52, 53, 54, 55, 58, 59, 60, 61]
WR_S = [74, 75, 92]; WR_M = [93, 100, 101]
S_ST = 76

class Prog:
    def __init__(self, special):
        self.special = special
        self.name = 'sp' if special else 'pu'
        if not special:
            self.XB, self.XBT, self.QB0, self.QB = 16384, 49152, 98304, 4864
            self.WB0, self.WS = 112896, 12288
            self.TB = self.WB0 + 4 * self.WS
        else:
            self.XB, self.WB0, self.WS = 16384, 49152, 27648
            self.TB = self.WB0 + 4 * self.WS + 1024

def stamp(a, cfg, i):
    if cfg.echo is not None:
        if i == 0: a("s_memrealtime s[76:77]")
        if i == cfg.echo[0]: a("s_memrealtime s[78:79]")
    if cfg.stamps:
        if i == 0: a(f"s_memrealtime s[{S_ST}:{S_ST + 1}]")
        a(f"s_memtime s[{S_ST + 4 + 2 * i}:{S_ST + 5 + 2 * i}]")
def stamp_l(cfg, i):
    t = A(); stamp(t, cfg, i); return t.L

def epi_stream(prog, cfg, R0, order=tuple(range(9))):
    out, pend = [], []
    for n, p in enumerate(order):
        R = R0 if n == 0 else TILE(order[n - 1], 0)
        Tt, e = [TILE(p, 0), TILE(p, 1)], [TMPE, TMPE + 4]
        ps = [PE_S] * 2 if p == 8 and prog.special else [P_S(0), P_S(1)]
        pb = [PE_B] * 2 if p == 8 and prog.special else [P_B(0), P_B(1)]
        if n >= (cfg.epk_sp if prog.special else cfg.epk):
            fma = lambda c: [(f"v_pk_fma_f32 {r2(Tt[c] + i)}, {r2(Tt[c] + i)}, {r2(ps[c] + i)}, {r2(pb[c] + i)}", 4) for i in (0, 2)]
            fmu = lambda c: [(f"v_pk_fma_f32 {r2(e[c] + i)}, {r2(e[c] + i)}, s[{S_C}:{S_C + 1}], s[{S_C}:{S_C + 1}]", 4) for i in (0, 2)]
            mul = lambda c: [(f"v_pk_mul_f32 {r2(Tt[c] + i)}, {r2(Tt[c] + i)}, {r2(e[c] + i)}", 4) for i in (0, 2)]
        else:
            fma = lambda c: [(f"v_fma_f32 v{Tt[c] + i}, v{Tt[c] + i}, v{ps[c] + i}, v{pb[c] + i}", 4) for i in range(4)]
            fmu = lambda c: [(f"v_fma_f32 v{e[c] + i}, v{e[c] + i}, s{S_C}, s{S_C}", 4) for i in range(4)]
            mul = lambda c: [(f"v_mul_f32 v{Tt[c] + i}, v{Tt[c] + i}, v{e[c] + i}", 4) for i in range(4)]
        exp = lambda c: [(f"v_exp_f32 v{e[c] + i}, v{Tt[c] + i}", 8) for i in range(4)]
        rcp = lambda c: [(f"v_rcp_f32 v{e[c] + i}, v{e[c] + i}", 8) for i in range(4)]
        cvt = lambda c: [(f"v_cvt_pk_bf16_f32 v{R + 2 * c + i}, v{Tt[c] + 2 * i}, v{Tt[c] + 2 * i + 1}", cfg.cvtcost) for i in range(2)]
        ops = fma(0) + exp(0) + fma(1) + exp(1) + fmu(0) + rcp(0) + fmu(1) + rcp(1) + mul(0) + cvt(0) + mul(1) + cvt(1)
        ops = [(t, c, []) for t, c in ops]
        ops[-1] = (ops[-1][0], ops[-1][1], [Tt[1]] if n < 8 else [])
        if n >= 2: ops[3] = (ops[3][0], ops[3][1], [TILE(order[n - 2], 0)])
        out.append(ops[:2] + pend + ops[2:])
        so = f"s{S_OM} offen offset:{p * ROWB}" if p < 4 else f"s{S_OM2} offen offset:{(p - 4) * ROWB}" if p < 8 else f"s{S_OE} offen"
        pend = [(f"v_permlane16_swap_b32 v{R}, v{R + 2}", 8, []), (f"v_permlane16_swap_b32 v{R + 1}, v{R + 3}", 8, []),
                (f"buffer_store_dwordx4 {r4(R)}, v{V_OM if p < 8 else V_OE}, s[{S_O}:{S_O + 3}], {so} {cfg.stflags_e if p == 8 and prog.special else cfg.stflags}", 4, [])]
    out[-1] += [("s_nop 1", 8, [])] + pend
    return out

class Sched:
    def __init__(self, cfg):
        self.cfg, self.out, self.reg, self.free = cfg, [], {}, []
        self.nds = self.done = self.nm = 0
        self.ldpos, self.dsat, self.report = {}, [], []
    def emit(self, x):
        self.out.append(x)
        if x.startswith('ds_'): self.nds += 1; self.dsat.append(self.nm)
        if x.startswith('v_mfma'): self.nm += 1
    def need(self, keys):
        k = max([self.ldpos.get(x, 0) for x in keys] + [0])
        if k > self.done:
            k = max(k, sum(1 for m in self.dsat if m <= self.nm - self.cfg.aged))
            n = min(self.nds - k, 15)
            self.emit(f"s_waitcnt lgkmcnt({n})")
            self.done = self.nds - n
    def run(self, mf, loads, bars, pre, epi, budget, look, czero=False, fixed={}, release=False, mark=[], retire=None, order=tuple(range(9))):
        cfg = self.cfg
        first, last, lastm, pos_last, seen = {}, {}, {}, {}, set()
        for i, m in enumerate(mf):
            for k in (m[1], m[2]): first.setdefault(k, i); last[k] = i
            if m[4]: lastm[m[3]] = i
        st = dict(ld=0, sub=[], key=None, ep=0, ei=0, i=-1)
        def try_load(i):
            if not st['sub']:
                if st['ld'] >= len(loads): return False
                key, mingap, fn, latest = loads[st['ld']]
                if i < mingap or i < min(first.get(key, 0) - look, latest): return False
                if key in fixed: r = fixed[key]
                elif not self.free: return False
                else: r = self.free.pop(0)
                self.reg[key] = r; st['sub'] = list(fn(r)); st['key'] = key; st['ld'] += 1
                self.report.append((key, first.get(key, 0) - i))
            self.emit(st['sub'].pop(0))
            if not st['sub']: self.ldpos[st['key']] = self.nds
            return True
        def emit_epi(b, final=False):
            spent = 0
            while epi and st['ep'] < len(epi) and (final or spent < b):
                p = st['ep']
                if order[p] not in pos_last: break
                if st['ei'] == 0:
                    if any(l[0][0] == 'P' and l[0] not in self.ldpos for l in loads): assert not final; break
                    if retire: assert not ({self.reg[k] for k in self.reg if last.get(k, -1) > st['i']} & set(retire[1]))
                    dist = len(self.out) - pos_last[order[p]] - 1
                    if dist < 8:
                        if not final: break
                        self.emit(f"s_nop {8 - dist - 1}")
                    self.need([k for k in self.ldpos if k[0] == 'P'])
                txt, cost, frees = epi[p][st['ei']]
                self.emit(txt); spent += cost; self.free += frees
                st['ei'] += 1
                if st['ei'] == len(epi[p]): st['ep'] += 1; st['ei'] = 0
        while try_load(-1): pass
        for i, (tile, ak, bk, pair, final) in enumerate(mf):
            while ak not in self.ldpos and ak not in self.given or bk not in self.ldpos and bk not in self.given:
                assert try_load(i - 1), ('fragment cannot be loaded in time', ak, bk, i)
            st['i'] = i
            self.need([ak, bk])
            c = '0' if czero and tile not in seen else r4(tile)
            seen.add(tile)
            self.emit(f"v_mfma_f32_16x16x32_bf16 {r4(tile)}, {r4(self.reg[ak])}, {r4(self.reg[bk])}, {c}")
            if lastm.get(pair) == i: pos_last[pair] = len(self.out) - 1
            if release: self.free += [self.reg[k] for k in (ak, bk) if last[k] == i]
            if retire and i >= retire[0]: self.free = [r for r in self.free if r not in retire[1]]
            if i in bars:
                for k in bars[i]: assert k in self.ldpos, ('not read before the barrier', k, i)
                self.need(bars[i]); self.emit("s_barrier")
            spent = nl = 0
            for x in pre.get(i, []):
                assert not x.startswith('v_add') or (st['ld'] == len(loads) and not st['sub']), 'address advanced under pending reads'
                self.emit(x); spent += 4
            while spent < 8 and try_load(i):
                spent += 4; nl += 1
                nk = st['key'] if st['sub'] else (loads[st['ld']][0] if st['ld'] < len(loads) else None)
                if nl >= cfg.maxld and first.get(nk, 10 ** 6) - i > cfg.urgent: break
            if spent < budget: emit_epi(budget - spent)
        while try_load(10 ** 6): pass
        self.out += mark
        emit_epi(0, True)
    given = ()

def group(prog, wv, steps, p, final, zig=False):
    out = []
    for c in range(2):
        if p < 8: items = [(('W', s, c, t), ('X', s, p + t - 1)) for t in range(3) if 0 <= p + t - 1 < 8 for s in steps]
        elif not prog.special: items = [(('W', s, c, t), ('E', s, t)) for t in range(3) for s in steps]
        else: items = [(('E', s, t), ('X', s, 2 * wv + c + t - 1)) for t in range(3) if 0 <= 2 * wv + c + t - 1 < 8 for s in steps]
        if zig and c == 1: items = items[::-1]
        out += [(TILE(p, c), ak, bk, p, final) for ak, bk in items]
    return out

def wavefront(prog, wv, A_, B_, lead, zig=False, po=tuple(range(9))):
    order = [(A_, po[n]) for n in range(lead)]
    for n in range(9):
        order.append((B_, po[n]))
        if n + lead < 9: order.append((A_, po[n + lead]))
    return [m for st, p in order for m in group(prog, wv, st, p, st is B_, zig)]

def ld_fn(prog, key, half, xoff, qoff, woff):
    if key[0] == 'X': return lambda r: [f"ds_read_b128 {r4(r)}, v{V_XA[half]} offset:{xoff + key[2] * 2048}"]
    if key[0] == 'W':
        o = woff + key[3] * 4096
        return lambda r: [f"ds_read_b64_tr_b16 {r2(r)}, v{V_WA[key[2]]} offset:{o}", f"ds_read_b64_tr_b16 {r2(r + 2)}, v{V_WA[key[2]]} offset:{o + 512}"]
    if not prog.special: return lambda r: [f"ds_read_b128 {r4(r)}, v{V_Q[half][key[2]]} offset:{qoff}"]
    o = woff + key[2] * 1024
    return lambda r: [f"ds_read_b64_tr_b16 {r2(r)}, v{V_Q[0][0]} offset:{o}", f"ds_read_b64_tr_b16 {r2(r + 2)}, v{V_Q[0][1]} offset:{o}"]

def param_loads(prog):
    t = []
    for c in range(2):
        t += [f"ds_read_b128 {r4(P_S(c))}, v{V_PA} offset:{64 * c}", f"ds_read_b128 {r4(P_B(c))}, v{V_PA} offset:{64 * c + 256}"]
    if prog.special: t += [f"ds_read_b128 {r4(PE_S)}, v{V_PE}", f"ds_read_b128 {r4(PE_B)}, v{V_PE} offset:256"]
    return [(('P', n), 0, (lambda x: (lambda r: [x]))(x), 10 ** 6) for n, x in enumerate(t)], {('P', n): 0 for n in range(len(t))}

def compute_pure(a, cfg, prog):
    mf, start = [], {}
    for t in range(7):
        start[t] = len(mf)
        for p in range(9): mf += group(prog, None, [2 * t, 2 * t + 1], p, False, cfg.zig)
    start[7] = nb = len(mf)
    po = list(range(8)); po.insert(cfg.xpos, 8)
    mf += wavefront(prog, None, [14, 15], [16, 17], cfg.lead4, False, po)
    first = {}
    for i, m in enumerate(mf):
        for k in (m[1], m[2]): first.setdefault(k, i)
    vis = {0: -1, 8: nb + cfg.bar16}
    for t in range(1, 8): vis[t] = start[t - 1] + cfg.barv
    bars = {}
    for t in range(1, 9):
        bars[vis[t]] = [k for k in first if k[1] >> 1 == t - 1 and (t <= 6 or (t == 7 and k[0] == 'W' and 6 not in cfg.rw))]
    for t in cfg.rw:
        bars[start[t] + cfg.barw] = [k for k in first if k[0] == 'W' and k[1] >> 1 == t]
    visb = {}
    if cfg.vb is not None:
        for t in cfg.rw: del bars[start[t] + cfg.barw]
        for t in range(8): visb[t] = start[t] + cfg.vb
        visb[8] = first[('X', 16, 4)] - cfg.vb8
        while visb[8] in bars or visb[8] == visb[7]: visb[8] += 1
        assert vis[8] != visb[7]
        for t in range(9): bars[visb[t]] = [k for k in first if k[0] == 'W' and k[1] >> 1 == t and (cfg.early or cfg.dual or t in cfg.rw) and t < 7]
    elif cfg.v0b is not None: bars[cfg.v0b] = []; visb[0] = cfg.v0b
    loads = []
    for n, k in enumerate(sorted(first, key=lambda k: first[k])):
        t = k[1] >> 1
        latest = vis[t + 1] - 10 if t <= 6 else 10 ** 6
        if cfg.vb is not None:
            if k[0] == 'W' and (cfg.early or cfg.dual or t in cfg.rw) and t < 7: latest = min(latest, visb[t] - 8)
        elif k[0] == 'W' and t in cfg.rw: latest = min(latest, start[t] + cfg.barw - 10)
        mg = vis[t] if t or n < cfg.npre else 0
        if t in visb and (k[0] == 'E' or (k[0] == 'X' and k[2] >= 4)): mg = visb[t]
        loads.append((k, mg, ld_fn(prog, k, k[1] & 1, (t % 3) * prog.XB, (t % 3) * prog.QB, (k[1] & 3) * prog.WS), latest))
    for i in range(len(loads) - 2, -1, -1):
        if loads[i][3] > loads[i + 1][3]: loads[i] = loads[i][:3] + (loads[i + 1][3],)
    cfg.bar_order = [n for i, n in sorted([(vis[t], ('a', t)) for t in range(9)] + [(visb[t], ('b', t)) for t in visb])]
    pl, fx = param_loads(prog)
    k = max(i for i, l in enumerate(loads) if l[0][0] == 'W' and l[0][1] < 16)
    loads = loads[:k + 1] + pl + loads[k + 1:]
    sc = Sched(cfg)
    sc.free = [16 + 4 * i for i in range(34)] + [PE_B, TMPE, TMPE + 4]
    sc.run(mf, loads, bars, {nb - 1: stamp_l(cfg, 3)}, epi_stream(prog, cfg, PE_S, po), cfg.budget4, cfg.lookf, czero=True, fixed=fx,
           release=True, mark=stamp_l(cfg, 4), retire=(vis[7], [TMPE, TMPE + 4]), order=po)
    if cfg.verbose: print('pu load distance', sorted([r for r in sc.report if r[0][0] in 'XWE' and r[0][1] > 1], key=lambda z: z[1])[:10], file=sys.stderr)
    for x in sc.out: a(x)

def key_order(s):
    return [('W', s, 0, 1), ('X', s, 0), ('W', s, 0, 2), ('X', s, 1), ('W', s, 1, 2), ('W', s, 1, 1), ('W', s, 0, 0), ('X', s, 2),
            ('W', s, 1, 0)] + [('X', s, p) for p in range(3, 8)] + [('E', s, t) for t in range(3)]
def set_regs(s, step):
    d = {('X', step, p): XF(s, p) for p in range(8)}
    d.update({('E', step, t): EF(s, t) for t in range(3)})
    d.update({('W', step, c, t): WF(s, c, t) for c in range(2) for t in range(3)})
    return d

def compute_special(a, cfg, prog, wv):
    n, XB, WS, BIG = f"sp{wv}", prog.XB, prog.WS, 10 ** 6
    a(f"s_mov_b32 s{S_CNT}, 7\ns_mov_b32 s{S_XOFF}, 1\ns_mov_b32 s{S_DW}, {2 * WS}\ns_mov_b32 s{S_XBP}, {XB}\ns_mov_b32 s{S_DX}, {XB}")
    stage = [f"v_add_u32 v{r}, s{S_DX}, v{r}" for r in V_XA] + [f"v_add_u32 v{r}, s{S_DW}, v{r}" for r in V_WA + V_Q[0][:2]] + [
        f"s_cmp_eq_u32 s{S_XOFF}, 2", f"s_cselect_b32 s{S_DX}, {(-2 * XB) & 0xffffffff}, s{S_XBP}",
        f"s_cselect_b32 s{S_XOFF}, -1, s{S_XOFF}", f"s_add_u32 s{S_XOFF}, s{S_XOFF}, 1", f"s_sub_u32 s{S_DW}, 0, s{S_DW}"]
    def spread(l, i0):
        d = {}
        for i, x in enumerate(l): d.setdefault(i0 + i // 2, []).append(x)
        return d
    def step_loads(step, g0, span):
        ko = key_order(step)
        return [(k, g0 + (i * span) // len(ko), ld_fn(prog, k, step & 1, 0, 0, (step & 1) * WS), BIG) for i, k in enumerate(ko)]
    def step(s, nxt, g1, pre, head=[], czero=False):
        sc = Sched(cfg)
        fx = set_regs(s & 1, s); fx.update(set_regs(nxt & 1, nxt))
        if not head:
            sc.reg.update(fx); sc.given = set(set_regs(s & 1, s)); a("s_waitcnt lgkmcnt(0)")
        mf = [m for p in range(9) for m in group(prog, wv, [s], p, False, True)]
        sc.run(mf, head + step_loads(nxt, g1, cfg.rd_span), {g1: [l[0] for l in head]}, pre, None, 0, BIG, czero=czero, fixed=fx)
        for x in sc.out: a(x)
    step(0, 1, 3, spread(stage, cfg.rd_span + 4), head=step_loads(0, -1, 0), czero=True)
    a(f"L_{n}_loop:")
    step(1, 2, 0, {})
    step(2, 3, 0, spread(stage + [f"s_sub_u32 s{S_CNT}, s{S_CNT}, 1", f"s_cmp_lg_u32 s{S_CNT}, 0"], cfg.rd_span + 1))
    a(f"s_cbranch_scc1 L_{n}_loop")
    a(f";@at {n}\n;@region {n}")
    stamp(a, cfg, 3)
    a("s_waitcnt vmcnt(0) lgkmcnt(0)")
    sc = Sched(cfg)
    sc.reg.update(set_regs(1, 15)); sc.given = set(set_regs(1, 15))
    sc.free = [SETB[0] + 4 * i for i in range(17)]
    mf = [m for p in range(9) for m in group(prog, wv, [15], p, False, True)]
    nb = len(mf)
    po = list(range(8)); po.insert(cfg.xpos_sp, 8)
    mf += wavefront(prog, wv, [16], [17], cfg.lead, True, po)
    pl, fx = param_loads(prog)
    sc.run(mf, step_loads(16, 0, cfg.rd_span) + pl + step_loads(17, nb, 0), {0: [], nb: []}, {}, epi_stream(prog, cfg, 12, po), cfg.budget, BIG,
           fixed=fx, release=True, mark=stamp_l(cfg, 4), order=po)
    for x in sc.out: a(x)

vXm, vXq, vW, vE = 2, 3, 4, 5
class Loader:
    def __init__(self, a, cfg, prog):
        self.a, self.cfg, self.prog = a, cfg, prog
        self.seq, self.rot, self.xstate, self.lg = [], False, {}, 0
    def lstamp(self):
        if self.cfg.stamps and self.cfg.lst and self.lg < 64:
            self.a(f"s_memtime s[94:95]\ns_waitcnt lgkmcnt(0)\ns_sub_u32 s94, s94, s{S_ST + 4}\nv_writelane_b32 v40, s94, {self.lg}")
            self.lg += 1
    def dma(self, v, srd, sbase, soff, mbase, moff, tag):
        self.a(f"s_add_u32 m0, s{mbase}, {moff}\ns_add_u32 s{sTmp}, s{sbase}, {soff}\nbuffer_load_dwordx4 v{v}, s[{srd}:{srd + 3}], s{sTmp} offen lds")
        self.seq.append(tag)
    def x(self, t, part=None):
        p = self.prog
        ns = 4 if p.special else 8
        rng = range(ns) if part is None else range(ns // 2) if part == 0 else range(ns // 2, ns)
        assert self.cfg.vb is not None or self.xstate.setdefault(t, self.rot) == self.rot
        for s in rng:
            if self.rot and self.cfg.xrot: self.dma(vXm, S_X, XR_S[s], t * 128, XR_M[s], (t % 3) * p.XB, ('x', t))
            else: self.dma(vXm, S_X, sXm, s * ROWB + t * 128, mXm, (t % 3) * p.XB + s * 2048, ('x', t))
        if not p.special and part != 0: self.dma(vXq, S_X, sXq, t * 128, mXq, (t % 3) * p.QB, ('x', t))
    def w(self, j, part=None):
        p = self.prog
        buf = (j & 3) * p.WS
        for k, tap in enumerate((1, 2, 0)):
            if self.rot and self.cfg.wrot: self.dma(vW, S_W, WR_S[k], j * 32 * ROWB, WR_M[k], buf, ('w', j)); continue
            if part != 1: self.dma(vW, S_W, sW, tap * TAPB + j * 32 * ROWB, mW, buf + tap * 4096, ('w', j))
            if p.special and part != 0: self.dma(vW, S_W, sW, tap * TAPB + j * 32 * ROWB + 128, mW, buf + 12288 + tap * 4096, ('w', j))
        if p.special and part != 0:
            self.a(f"s_mul_i32 s{sTmp + 1}, s{sTmp + 2}, {j & 3}\ns_add_u32 m0, s{mE}, s{sTmp + 1}\ns_add_u32 s{sTmp}, s{sE}, {j * 32 * ROWB}")
            self.a(f"buffer_load_dwordx4 v{vE}, s[{S_W}:{S_W + 3}], s{sTmp} offen lds")
            self.seq.append(('w', j))
    def issue(self, l, relw, relx):
        a, cfg = self.a, self.cfg
        if cfg.verbose: print(self.prog.name, l, file=sys.stderr)
        for it in l.split():
            part = 'ab'.index(it[-1]) if it[-1] in 'ab' else None
            if it == 'B':
                for i, sp in enumerate((8, 10, 12, 14)):
                    a(f"global_load_ushort v{20 + i}, v6, s[{sp}:{sp + 1}]"); self.seq.append(('b', 0))
            elif it == 'P':
                if cfg.wpf: a(f"buffer_load_dword v30, v8, s[{S_W}:{S_W + 3}], 0 offen"); self.seq.append(('p', 0))
                if cfg.xspf: a(f"buffer_load_dword v31, v9, s[{S_X}:{S_X + 3}], 0 offen"); self.seq.append(('p', 0))
            elif it == 'O':
                a(f"s_mov_b32 s{S_O + 2}, {XBYTES}\ns_mov_b32 s{S_O + 3}, 0x20000\nv_min_u32 v19, 1, v0\nv_mul_u32_u24 v19, {(16 if self.prog.special else 36) * BATB - 128}, v19")
                a(f"buffer_load_dword v30, v19, s[{S_O}:{S_O + 3}], s{S_B0} offen"); self.seq.append(('p', 0))
            elif it[0] == 'w':
                a(f"s_waitcnt vmcnt({it[1:]})")
            elif it == 'C':
                a("global_load_dword v30, v18, s[96:97]"); self.seq.append(('p', 0))
            elif it[0] == 'Q':
                a(f"s_add_u32 s{sTmp}, s72, {int(it[1:]) * 128}\nbuffer_load_dword v30, v17, s[{S_X}:{S_X + 3}], s{sTmp} offen"); self.seq.append(('p', 0))
            else:
                n = int(it.rstrip('ab')[1:])
                assert n <= (relw if it[0] == 'W' else relx), ('slot still in use', it)
                (self.w if it[0] == 'W' else self.x)(n, part)
    def wait(self, need):
        for t in need:
            full = 4 if t[0] == 'b' else ((7, 4) if self.prog.special else (3, 9))[t[0] == 'x']
            assert self.seq.count(t) == full, t
        self.a(f"s_waitcnt vmcnt({len(self.seq) - 1 - max(i for i, t in enumerate(self.seq) if t in need)})")
    def bn_finish(self):
        a = self.a
        self.wait({('b', 0)})
        for i in range(4): a(f"v_lshlrev_b32 v{20 + i}, 16, v{20 + i}")
        a("v_add_f32 v21, 0x3727c5ac, v21\nv_rsq_f32 v21, v21\ns_nop 0\nv_mul_f32 v21, v21, v22\nv_fma_f32 v23, -v20, v21, v23")
        a(f"v_mul_f32 v21, s{S_C}, v21\nv_mul_f32 v23, s{S_C}, v23\nds_write_b32 v7, v21\nds_write_b32 v7, v23 offset:256")
    def bar(self, need):
        if need: self.wait(need)
        self.lstamp(); self.a("s_barrier"); self.lstamp()
    def end(self):
        a = self.a
        nw, nx = (7, 4) if self.prog.special else (3, 9)
        assert sum(t[0] == 'w' for t in self.seq) == 18 * nw and sum(t[0] == 'x' for t in self.seq) == 9 * nx
        if self.cfg.stamps and self.cfg.lst:
            a(f"s_cmp_lg_u32 s{S_WAVE}, 4\ns_cbranch_scc1 L_end\ns_load_dwordx2 s[4:5], s[0:1], 64\ns_waitcnt lgkmcnt(0)")
            a(f"s_lshl_b32 s{T}, s2, 9\ns_add_u32 s{T}, s{T}, 0x100000\nv_lshl_add_u32 v41, v0, 2, s{T}\nglobal_store_dword v41, v40, s[4:5]")
        a("s_endpgm")

def auto(items, given):
    out = []
    for it in items:
        base = it.rstrip('ab')
        if it in given or base in given or (it == base and base + 'a' in given): continue
        if int(base[1:]) < (18 if it[0] == 'W' else 9): out.append(it)
    return ' ' + ' '.join(out)

def loader_pure(a, cfg, prog, head, far):
    L = Loader(a, cfg, prog); L.seq = list(head); L.xstate[0] = False; L.lg = 1
    a(f"s_mul_i32 s{T + 5}, s{T}, 9\ns_add_u32 s{T + 5}, s{T + 5}, 1")
    a(f"v_add_u32 v13, s{T + 5}, v10\nv_bfe_u32 v13, v13, 1, 3\nv_and_b32 v12, 7, v0\nv_xor_b32 v13, v13, v12\nv_lshl_add_u32 v{vXq}, v13, 4, v14")
    a(f"s_lshl_b32 s{mXq}, s{T + 5}, 7\ns_add_u32 s{mXq}, s{mXq}, {prog.QB0}")
    a(f"s_add_u32 s{T + 5}, s{T}, 32\ns_mul_i32 s{T + 5}, s{T + 5}, {BATB}\ns_add_u32 s{sXq}, s{T + 5}, s{S_B0}")
    parts = cfg.pre.split('|') + [''] * 12
    given = set(' '.join(parts).replace('/', ' ').split())
    if cfg.vb is not None:
        L.issue(cfg.pre_vb, 3, 2)
    elif cfg.v0b is not None:
        p0, p1 = parts[0].split('/')
        L.issue(p0, 3, 2)
        idx = [i for i, t_ in enumerate(L.seq) if t_ in (('w', 0), ('w', 1))] + [i for i, t_ in enumerate(L.seq) if t_ == ('x', 0)][:4]
        a(f"s_waitcnt vmcnt({len(L.seq) - 1 - max(idx)})\ns_barrier")
        L.issue(p1, 3, 2)
    else: L.issue(parts[0], 3, 2)
    L.lstamp()
    def late_setup(L, wlead=False):
        a = L.a
        a(f"v_lshl_add_u32 v6, v0, 1, s{T + 4}\nv_lshlrev_b32 v7, 2, v0\nv_add_u32 v7, {prog.TB}, v7\nv_mov_b32 v13, 0x40000000")
        if cfg.wpf:
            a(f"s_mul_i32 s{T + 6}, s2, 61\ns_lshl_b32 s{T + 5}, s{T}, 4\ns_add_u32 s{T + 6}, s{T + 6}, s{T + 5}")
            a(f"v_cmp_gt_u32 vcc, 16, v0\nv_add_u32 v8, s{T + 6}, v0\nv_lshlrev_b32 v8, 7, v8\nv_cndmask_b32 v8, v13, v8, vcc")
        if cfg.xspf:
            a(f"s_and_b32 s{T + 6}, s{S_T}, 31\ns_mul_i32 s{T + 6}, s{T + 6}, 40\ns_mul_i32 s{T + 5}, s{T}, 10\ns_add_u32 s{T + 6}, s{T + 6}, s{T + 5}")
            a(f"s_add_u32 s{T + 6}, s{T + 6}, {1008 * 72}\ns_cmp_lt_u32 s{S_T}, 32\ns_cselect_b32 s{T + 5}, 0, 10")
            a(f"v_cmp_gt_u32 vcc, s{T + 5}, v0\nv_add_u32 v9, s{T + 6}, v0\nv_lshlrev_b32 v9, 7, v9\nv_cndmask_b32 v9, v13, v9, vcc")
        if cfg.qlate or 'Q' in cfg.pre:
            a(f"s_lshr_b32 s{T + 1}, s{S_T}, 5\ns_mul_i32 s{T + 1}, s{T + 1}, 3\ns_mul_i32 s{T + 2}, s{S_M}, 7\ns_add_u32 s{T + 1}, s{T + 1}, s{T + 2}\ns_mul_i32 s72, s{T + 1}, {288 * ROWB}")
            a(f"s_lshr_b32 s{T + 1}, s2, 3\ns_lshl_b32 s{T + 1}, s{T + 1}, 2\ns_add_u32 s{T + 1}, s{T + 1}, s{T}\ns_mul_i32 s{T + 1}, s{T + 1}, {9 * ROWB}\ns_add_u32 s72, s72, s{T + 1}")
            a(f"v_min_u32 v17, 8, v0\nv_mul_u32_u24 v17, {ROWB}, v17")
        if cfg.refresh:
            a(f"s_getpc_b64 s[96:97]\nL_pc2{'w' if wlead else ''}:")
            if wlead: a("s_sub_u32 s96, s96, L_pc2w-L_pc2\ns_subb_u32 s97, s97, 0")
            a(f"s_lshr_b32 s{T + 1}, s2, 3\ns_lshl_b32 s{T + 1}, s{T + 1}, 2\ns_add_u32 s{T + 1}, s{T + 1}, s{T}\ns_mul_i32 s{T + 1}, s{T + 1}, {128 * cfg.rfn}")
            if cfg.rfo: a(f"s_add_u32 s{T + 1}, s{T + 1}, {cfg.rfo}")
            a(f"v_min_u32 v18, {cfg.rfn - 1}, v0\nv_lshl_add_u32 v18, v18, 7, s{T + 1}\nv_min_u32 v18, L_end-L_pc2, v18")
        if cfg.wrot:
            a(f"s_mul_i32 s{T}, s{S_R}, 43\ns_lshr_b32 s{T}, s{T}, 7\ns_mul_i32 s{T}, s{T}, 3\ns_sub_u32 s{T}, s{S_R}, s{T}")
            for k in range(3):
                if k: a(f"s_add_u32 s{T}, s{T}, 1\ns_cmp_eq_u32 s{T}, 3\ns_cselect_b32 s{T}, 0, s{T}")
                a(f"s_mul_i32 s{T + 1}, s{T}, {TAPB}\ns_add_u32 s{WR_S[k]}, s{sW}, s{T + 1}\ns_lshl_b32 s{T + 1}, s{T}, 12\ns_add_u32 s{WR_M[k]}, s{mW}, s{T + 1}")
        if cfg.xrot:
            for k in range(8):
                if cfg.vb is not None: a(f"s_add_u32 s{T}, s{S_LINE}, {k}\ns_and_b32 s{T}, s{T}, 3\ns_or_b32 s{T}, s{T}, {k & 4}\ns_mul_i32 s{T + 1}, s{T}, {ROWB}\ns_add_u32 s{XR_S[k]}, s{sXm}, s{T + 1}")
                else: a(f"s_add_u32 s{T}, s{S_LINE}, {k}\ns_and_b32 s{T}, s{T}, 7\ns_mul_i32 s{T + 1}, s{T}, {ROWB}\ns_add_u32 s{XR_S[k]}, s{sXm}, s{T + 1}")
                a(f"s_lshl_b32 s{T}, s{T}, 11\ns_add_u32 s{XR_M[k]}, s{mXm}, s{T}")
        L.rot = True
    if cfg.vb is not None: return loader_split(a, cfg, L, late_setup, far)
    late_setup(L)
    relw = 3
    for t in range(9):
        if t == 3: a("s_waitcnt lgkmcnt(0)")
        L.bar({('w', 2 * t), ('w', 2 * t + 1), ('x', t)})
        l = parts[t + 1] + (' B' if t == 0 else '')
        if t >= 1:
            relw = max(relw, 2 * t + 3)
            if t - 1 not in cfg.rw: l += auto([f"W{2 * t + 2}", f"W{2 * t + 3}"], given)
            l += auto([f"X{t + 2}"], given)
        L.issue(l + ' ' + cfg.qlate.get(t, '') + (' C' if cfg.refresh and cfg.refresh == t else ''), relw, t + 2)
        if t == 2: L.bn_finish()
        if t in cfg.rw:
            a("s_barrier")
            relw = 2 * t + 5
            L.issue(auto([f"W{2 * t + 4}", f"W{2 * t + 5}"], given), relw, 0)
    L.end()

def loader_split(a, cfg, L, late_setup, far):
    import copy
    def run(L, order, done, relw, relx, wlead):
        a = L.a
        def xidx(t, part):
            idx = [i for i, g in enumerate(L.seq) if g == ('x', t)]
            assert len(idx) >= (4 if part == 0 else 9), (t, part)
            return idx[3] if part == 0 else idx[8]
        def go(items):
            l = [i for i in items if i not in done and int(i.rstrip('ab')[1:]) < (18 if i[0] == 'W' else 9)]
            done.update(l); L.issue(' '.join(l), relw, relx)
        for n, (kind, t) in enumerate(order):
            if kind != '-':
                if kind == 'a':
                    for j in (2 * t, 2 * t + 1): assert L.seq.count(('w', j)) == 3
                    last = max([i for i, g in enumerate(L.seq) if g in (('w', 2 * t), ('w', 2 * t + 1))] + [xidx(t, 0)])
                else: last = xidx(t, 1)
                a(f"s_waitcnt vmcnt({len(L.seq) - 1 - last})" + (" lgkmcnt(0)" if (kind, t) == ('a', 4) else ""))
                L.lstamp(); a("s_barrier"); L.lstamp()
            if kind == 'a':
                relx = t + 2; relw = max(relw, 2 * t + 3)
                if wlead: go([f"X{t + 1}a", f"X{t + 1}b"] + (['X8a'] if t == 6 else []))
                else: go((['X1a'] if t == 0 else []) + [f"W{2 * t + 2}", f"W{2 * t + 3}"] + (['X8b'] if t == 7 else []))
                if t == 3: L.bn_finish()
            else:
                if cfg.dual or t in cfg.rw: relw = 2 * t + 5
                if (kind, t) == ('b', 0) and cfg.dual:
                    if cfg.dualsel == 0: a(f"s_add_u32 s{sTmp}, s{S_R}, s{S_LINE}\ns_bitcmp1_b32 s{sTmp}, 0\ns_cbranch_scc1 L_ld_w")
                    elif cfg.dualsel == 1: a(f"s_and_b32 s{sTmp}, s{S_R}, 3\ns_and_b32 s{sTmp + 1}, s{S_LINE}, 3\ns_cmp_eq_u32 s{sTmp}, s{sTmp + 1}\ns_cbranch_scc1 L_ld_w")
                    else: a("s_branch L_ld_w")
                    L2 = copy.copy(L); L2.seq = list(L.seq); L2.a = far
                    far("L_ld_w:")
                    run(L2, [('-', 0)] + order[n + 1:], set(done), relw, relx, True)
                if wlead: go((['X1b'] if t == 0 else []) + [f"W{2 * t + 4}", f"W{2 * t + 5}"])
                elif t == 6 and 6 in cfg.rw: go(['X7b', 'X8a', 'W16', 'W17'])
                else: go([f"X{t + 1}b", f"X{t + 2}a"])
                if t == 0:
                    late_setup(L, wlead); L.issue('B', 0, 0)
                    if not wlead: a(";@touch ld seq\n;@region ld")
            L.issue(cfg.extra_vb.get((kind, t), ''), 0, 0)
        L.end()
    run(L, cfg.bar_order, set(cfg.pre_vb.split()) | {'W0', 'X0a'}, 3, 2, False)

def loader_special(a, cfg, prog, head):
    L = Loader(a, cfg, prog); L.seq = list(head); L.lg = 1
    a("v_lshrrev_b32 v13, 1, v0\nv_bfe_u32 v14, v0, 4, 1\nv_lshlrev_b32 v14, 2, v14\nv_xor_b32 v13, v13, v14")
    a(f"v_mul_u32_u24 v13, {ROWB}, v13\nv_and_b32 v14, 1, v0\nv_lshl_add_u32 v{vE}, v14, 4, v13")
    a(f"s_mul_i32 s{sE}, s{T}, {TAPB}\ns_lshl_b32 s{T + 5}, s{S_M}, 5\ns_add_u32 s{T + 5}, s{T + 5}, 1024\ns_add_u32 s{sE}, s{sE}, s{T + 5}")
    a(f"s_lshl_b32 s{mE}, s{T}, 10\ns_add_u32 s{mE}, s{mE}, {prog.WB0 + 24576}\ns_cmp_eq_u32 s{T}, 3")
    a(f"s_cselect_b32 s{mE}, {prog.WB0 + 4 * prog.WS}, s{mE}\ns_cselect_b32 s{sTmp + 2}, 0, {prog.WS}\ns_cselect_b32 s{T + 6}, 0x40000000, 0")
    a(f"v_add_u32 v{vE}, s{T + 6}, v{vE}")
    parts = cfg.pre_sp.split('|') + [''] * 20
    given = set(' '.join(parts).split()) | {'X0', 'W0'}
    L.issue(parts[0], 3, 2)
    L.lstamp()
    a(f"s_lshl_b32 s{T + 6}, s{T + 1}, 7\ns_add_u32 s{T + 6}, s{T + 6}, s{T + 4}\ns_cmp_ge_u32 s{T}, 2\ns_cselect_b32 s{T + 6}, s{T + 5}, s{T + 6}")
    a(f"v_lshl_add_u32 v6, v0, 1, s{T + 6}\nv_min_u32 v6, 1150, v6")
    a(f"s_min_u32 s{T + 6}, s{T}, 2\ns_lshl_b32 s{T + 6}, s{T + 6}, 9\ns_add_u32 s{T + 6}, s{T + 6}, {prog.TB}\nv_lshl_add_u32 v7, v0, 2, s{T + 6}")
    for j in range(18):
        if j == 6: a("s_waitcnt lgkmcnt(0)")
        L.bar({('w', j), ('x', j >> 1)})
        d = cfg.sp_ahead
        l = parts[j + 1] + auto([f"W{j + d}", f"X{(j + 3) >> 1}" + 'ba'[j & 1]], given) + (' B' if j == 0 else '')
        L.issue(l, max(3, j + 3), max(2, (j >> 1) + 2))
        if j == 1: a(";@touch spld seq\n;@region spld")
        if j == 4: L.bn_finish()
    L.end()

def compute_setup(a, cfg, prog):
    sp = prog.special
    a(f"s_lshr_b32 s{T}, s{S_WAVE}, 1\ns_and_b32 s{T + 1}, s{S_WAVE}, 1")
    a("v_and_b32 v60, 15, v0\nv_lshrrev_b32 v61, 4, v0")
    if sp: a(f"s_add_u32 s{S_LINE}, s{S_LINE}, s{T}")
    a(f"s_lshl_b32 s{T + 2}, s{S_LINE}, 7\ns_lshl_b32 s{T + 3}, s{T + 1}, 6\ns_add_u32 s{T + 2}, s{T + 2}, s{T + 3}")
    a(f"s_lshl_b32 s{T + 3}, s{T + 1}, 7\ns_add_u32 s{T + 3}, s{T + 3}, {prog.TB}")
    if sp:
        a(f"s_lshl_b32 s{T + 4}, s{T}, 9\ns_add_u32 s{T + 3}, s{T + 3}, s{T + 4}")
        a(f"v_lshlrev_b32 v{V_PE}, 4, v61\nv_add_u32 v{V_PE}, {prog.TB + 1024}, v{V_PE}")
    a(f"v_lshl_add_u32 v{V_PA}, v61, 4, s{T + 3}")
    a("v_and_b32 v62, 1, v61\nv_lshrrev_b32 v63, 1, v61")
    a(f"v_mul_u32_u24 v{V_OM}, {BATB}, v60\nv_lshl_add_u32 v{V_OM}, v63, 4, v{V_OM}")
    if not sp:
        a(f"v_lshl_add_u32 v{V_OM}, v62, 5, v{V_OM}\nv_lshrrev_b32 v71, 3, v60\nv_and_b32 v72, 7, v60")
        a(f"v_mul_u32_u24 v{V_OE}, {BATB}, v71\nv_mul_u32_u24 v64, {ROWB}, v72\nv_add_u32 v{V_OE}, v{V_OE}, v64")
        a(f"v_lshl_add_u32 v{V_OE}, v63, 4, v{V_OE}\nv_lshl_add_u32 v{V_OE}, v62, 5, v{V_OE}")
        a(f"s_mul_i32 s{T + 3}, s{T}, {16 * BATB}\ns_add_u32 s{S_OM}, s{S_B0}, s{T + 3}\ns_add_u32 s{S_OM}, s{S_OM}, s{T + 2}")
        a(f"s_mul_i32 s{T + 3}, s{T}, {2 * BATB}\ns_add_u32 s{S_OE}, s{S_B0}, s{T + 3}\ns_add_u32 s{S_OE}, s{S_OE}, {32 * BATB}\ns_add_u32 s{S_OE}, s{S_OE}, s{T + 2}")
        a(f"s_mul_i32 s{T + 3}, s{T}, 18\nv_mad_u32_u24 v64, v71, 9, v72\nv_add_u32 v64, s{T + 3}, v64")
        for t in range(3):
            a(f"v_add_u32 v65, {t}, v64\nv_bfe_u32 v66, v65, 1, 3\nv_xor_b32 v66, v66, v61\nv_lshlrev_b32 v66, 4, v66")
            a(f"v_lshl_add_u32 v66, v65, 7, v66\nv_add_u32 v{V_Q[0][t]}, {prog.QB0}, v66\nv_xor_b32 v{V_Q[1][t]}, 64, v{V_Q[0][t]}")
    else:
        a(f"v_mul_u32_u24 v64, {ROWB}, v62\nv_add_u32 v{V_OE}, v{V_OM}, v64\nv_lshl_add_u32 v{V_OM}, v62, 5, v{V_OM}")
        a(f"s_add_u32 s{S_OM}, s{S_B0}, s{T + 2}\ns_mul_i32 s{T + 3}, s{S_WAVE}, {2 * ROWB}\ns_add_u32 s{S_OE}, s{S_B0}, s{T + 3}")
        a(f"s_lshl_b32 s{T + 3}, s{S_M}, 5\ns_add_u32 s{S_OE}, s{S_OE}, s{T + 3}\ns_add_u32 s{S_OE}, s{S_OE}, 1024")
    a(f"s_add_u32 s{S_OM2}, s{S_OM}, {4 * ROWB}")
    a(f"v_lshrrev_b32 v64, 1, v60\nv_xor_b32 v64, v64, v61\nv_lshlrev_b32 v64, 4, v64\nv_lshl_add_u32 v{V_XA[0]}, v60, 7, v64")
    if not sp: a(f"s_mul_i32 s{T + 3}, s{T}, {prog.XBT}\nv_add_u32 v{V_XA[0]}, s{T + 3}, v{V_XA[0]}")
    a(f"v_xor_b32 v{V_XA[1]}, 64, v{V_XA[0]}")
    a("v_lshrrev_b32 v64, 2, v60\nv_and_b32 v65, 3, v60\nv_lshl_add_u32 v66, v61, 3, v64\nv_and_b32 v67, 2, v64\nv_lshl_add_u32 v67, v62, 2, v67")
    a(f"s_lshl_b32 s{T + 3}, s{T + 1}, 2\nv_lshrrev_b32 v68, 1, v65\nv_add_u32 v68, s{T + 3}, v68")
    a("v_and_b32 v69, 1, v65\nv_lshlrev_b32 v69, 3, v69\nv_lshl_add_u32 v69, v66, 7, v69")
    if sp: a(f"s_mul_i32 s{T + 3}, s{T}, 12288\ns_add_u32 s{T + 3}, s{T + 3}, {prog.WB0}\nv_add_u32 v69, s{T + 3}, v69")
    else: a(f"v_add_u32 v69, {prog.WB0}, v69")
    for c in range(2): a(f"v_add_u32 v70, {2 * c}, v68\nv_xor_b32 v70, v70, v67\nv_lshl_add_u32 v{V_WA[c]}, v70, 4, v69")
    if sp:
        a("v_lshl_add_u32 v70, v62, 2, v66\nv_lshlrev_b32 v70, 5, v70\nv_lshl_add_u32 v70, v65, 3, v70")
        a(f"v_add_u32 v{V_Q[0][0]}, {prog.WB0 + 24576}, v70\nv_xor_b32 v70, 128, v70\nv_add_u32 v{V_Q[0][1]}, {prog.WB0 + 24576}, v70")
    else:
        a("v_mov_b32 v72, 0\nv_mov_b32 v73, 0\nv_mov_b32 v74, 0\nv_mov_b32 v75, 0")
        a(f"v_lshrrev_b32 v64, 3, v0\ns_lshl_b32 s{T + 3}, s{S_WAVE}, 3\nv_add_u32 v64, s{T + 3}, v64\nv_min_u32 v64, 14, v64")
        a("v_mul_u32_u24 v65, 52, v64\nv_lshrrev_b32 v65, 8, v65\nv_mul_u32_u24 v66, 5, v65\nv_sub_u32 v66, v64, v66")
        a(f"v_mul_u32_u24 v65, {prog.QB}, v65\nv_mul_u32_u24 v66, {9 * 128}, v66\nv_add_u32 v65, v65, v66")
        a(f"v_and_b32 v66, 7, v0\nv_lshl_add_u32 v65, v66, 4, v65\nv_add_u32 v65, {prog.QB0}, v65\nds_write_b128 v65, v[72:75]")
    a(f"s_mov_b32 s{S_O + 2}, {XBYTES}\ns_mov_b32 s{S_O + 3}, 0x20000\ns_waitcnt lgkmcnt(0)")

def finish_head(a, cfg):
    stamp(a, cfg, 5)
    if cfg.echo is not None or cfg.stamps:
        a("s_waitcnt vmcnt(0)"); stamp(a, cfg, 6)
    if cfg.stamps: a(f"s_memrealtime s[{S_ST + 2}:{S_ST + 3}]")
def finish(a, cfg):
    a("L_fin:")
    if cfg.echo is not None:
        a(f"s_memrealtime s[80:81]\ns_waitcnt lgkmcnt(0)\ns_sub_u32 s78, s78, s76\ns_mul_i32 s78, s78, {cfg.echo[1]}")
        a(f"s_cmp_eq_u32 s2, {cfg.echo[2]}\ns_cselect_b32 s78, s78, 0")
        a("L_echo:\ns_memrealtime s[82:83]\ns_waitcnt lgkmcnt(0)\ns_sub_u32 s82, s82, s80\ns_cmp_lt_u32 s82, s78\ns_cbranch_scc1 L_echo")
    if cfg.stamps:
        a(f"s_load_dwordx2 s[4:5], s[0:1], 64\ns_waitcnt lgkmcnt(0)")
        for i in range(4): a(f"v_mov_b32 v{16 + i}, s{S_ST + i}")
        for i in range(1, 7): a(f"s_sub_u32 s{T}, s{S_ST + 4 + 2 * i}, s{S_ST + 4}\nv_mov_b32 v{18 + 2 * i}, s{T}\nv_mov_b32 v{19 + 2 * i}, 0")
        a(f"s_lshl_b32 s{T}, s{S_WAVE}, 8\ns_add_u32 s{T}, s{T}, s2\ns_mul_i32 s{T}, s{T}, 64\nv_mov_b32 v32, s{T}\nv_cmp_eq_u32 vcc, 0, v0\ns_and_saveexec_b64 s[6:7], vcc")
        for i in range(4): a(f"global_store_dwordx4 v32, v[{16 + 4 * i}:{19 + 4 * i}], s[4:5] offset:{16 * i}")

def insn_sizes(L):
    import subprocess, tempfile, os
    idx = [i for i, l in enumerate(L) if not (l.endswith(':') or l[0] in '.;')]
    with tempfile.TemporaryDirectory() as d:
        keep = [l for l in L if not l.startswith(('.fill', '.p2align', '.globl', '.type'))]
        open(d + '/a.s', 'w').write('\n'.join(keep) + '\n')
        subprocess.run(['clang', '-x', 'assembler', '-target', 'amdgcn-amd-amdhsa', '-mcpu=gfx950', '-c', d + '/a.s', '-o', d + '/a.o'], check=True)
        out = subprocess.run(['llvm-objdump', '-d', '-z', d + '/a.o'], capture_output=True, text=True).stdout
    sz = [4 * (len(m.group(1).split())) for m in re.finditer(r'// [0-9A-F]{12}: ([0-9A-F ]+?)(?: <.*)?$', out, re.M)]
    assert len(sz) == len(idx), (len(sz), len(idx))
    r = [0] * len(L)
    for i, z in zip(idx, sz): r[i] = z
    return r

def layout(L, cfg):
    sz = insn_sizes(L)
    k0 = L.index(KNAME + ':')
    blocks, cur = [], ['entry', []]
    for l, z in list(zip(L, sz))[k0:]:
        if l.startswith(';@block'): blocks.append(cur); cur = [l.split()[1], []]
        else: cur[1].append((l, z))
    blocks.append(cur)
    out, off = L[:k0], cfg.kofs
    for name, B in blocks:
        def build(start, nst):
            o, res, reg, found, at, nxt = start, [], None, {}, None, None
            for l, z in B:
                if l.startswith(';@at'): at = o; continue
                if l.startswith(';@touch'):
                    _, r, how = l.split()
                    n = nst.get(r, 0)
                    if how == 'wave':
                        for k in range(n): res += [f"s_cmp_eq_u32 s{S_WAVE}, {k}", f"s_cbranch_scc1 L_t_{r}_{k}"]
                        res += [f"L_r_{r}_{k}:" for k in range(n)]; o += 8 * n
                    else:
                        for k in range(n): res += ["s_cmp_eq_u32 0, 0", f"s_branch L_t_{r}_{k}", f"L_r_{r}_{k}:"]
                        o += 8 * n
                    if n and how == 'wave': res.append("s_cmp_eq_u32 0, 1"); o += 4
                    continue
                if l.startswith(';@region'):
                    reg = l.split()[1] if l.split()[1] in cfg.touch else None
                    nxt = -(-o // 4096) * 4096
                    continue
                if reg and z and o >= nxt:
                    k = found.get(reg, 0); found[reg] = k + 1
                    if k < nst.get(reg, 0):
                        if reg in ('ld', 'spld'): res.append("s_cmp_eq_u32 0, 1"); o += 4
                        res += [f"L_t_{reg}_{k}:", f"s_cbranch_scc1 L_r_{reg}_{k}"]; o += 4
                    nxt += 4096
                if l == 's_endpgm' or l.startswith('s_branch') or l == 'L_fin:': reg = None
                if l.startswith('.fill'): o += int(l.split()[1].rstrip(',')) * 4
                res.append(l); o += z
            return res, o, at, found
        nst = {}
        for it in range(8):
            start = off
            if name in cfg.anchor:
                at = build(0, nst)[2]
                start = off + (-(off + at - cfg.anchor[name])) % 4096
            res, end, at, found = build(start, nst)
            if found == nst: break
            nst = found
        else: assert False, name
        if start != off:
            out.append(f".fill (({start % 4096} - (. - L_base)) & 4095) / 4, 4, 0xbf810000")
        if cfg.verbose: print(f"block {name}: {start:#x}..{end:#x} stubs {nst}", file=sys.stderr)
        out += res; off = end
    return out

def gen(cfg):
    a = A()
    a.L.append(open('standalone__batchnorm__sampling.s.ref').read().split('; Override')[0].rstrip())
    a.L.append("; @launch grid=(256,1,1) block=(512,1,1) lds=163840")
    a(f'.amdgcn_target "amdgcn-amd-amdhsa--gfx950"\n.text')
    if cfg.entry_pad is not None: a(f".p2align 12\nL_base:\n.fill {cfg.entry_pad // 4}, 4, 0xbf810000")
    a(f'.globl {KNAME}\n.p2align 8\n.type {KNAME},@function\n{KNAME}:')
    pu, sp = Prog(False), Prog(True)
    stamp(a, cfg, 0)
    a("s_cmp_ge_u32 s2, 256\ns_cbranch_scc1 L_end")
    a(f"s_load_dwordx2 s[{S_W}:{S_W + 1}], s[0:1], 8\ns_load_dwordx2 s[{S_X}:{S_X + 1}], s[0:1], 0")
    a(f"s_load_dwordx8 s[8:15], s[0:1], 16\ns_load_dwordx2 s[{S_O}:{S_O + 1}], s[0:1], 48")
    a(f"s_lshr_b32 s{T + 1}, s2, 3")
    if cfg.cpfn:
        a(f"s_getpc_b64 s[58:59]\nL_pc:\ns_and_b32 s{T}, s{T + 1}, {cfg.cpfg - 1}\ns_mul_i32 s{T}, s{T}, {cfg.cpfn * 128}")
        a(f"v_lshl_add_u32 v1, v0, 7, s{T}\nv_min_u32 v1, L_end-L_pc, v1")
        a(f"v_cmp_gt_u32 vcc, {cfg.cpfn}, v0\ns_and_saveexec_b64 s[60:61], vcc\ns_cbranch_execz L_nopf")
        a("global_load_dword v15, v1, s[58:59]\nL_nopf:\ns_mov_b64 exec, s[60:61]")
    a(f"v_lshrrev_b32 v1, 6, v0\nv_and_b32 v0, 63, v0\ns_and_b32 s{T}, s2, 7\nv_readfirstlane_b32 s{S_WAVE}, v1")
    if cfg.spearly == 2:
        a(f"s_lshr_b32 s{S_M}, s{T}, 1\ns_andn2_b32 s{T}, 1, s{T}\ns_lshl_b32 s{T}, s{T}, 5\ns_add_u32 s{S_T}, s{T}, s{T + 1}")
    elif cfg.spearly:
        a(f"s_and_b32 s{S_M}, s{T}, 3\ns_andn2_b32 s{T}, 4, s{T}\ns_lshl_b32 s{T}, s{T}, 3\ns_add_u32 s{S_T}, s{T}, s{T + 1}")
    else:
        a(f"s_lshr_b32 s{S_M}, s{T}, 1\ns_and_b32 s{T}, s{T}, 1\ns_lshl_b32 s{T}, s{T}, 5\ns_add_u32 s{S_T}, s{T}, s{T + 1}")
    a(f"s_mul_i32 s{S_R}, s{S_T}, 57\ns_lshr_b32 s{S_R}, s{S_R}, 9\ns_mul_i32 s{T}, s{S_R}, 9\ns_sub_u32 s{S_LINE}, s{S_T}, s{T}")
    a(f"s_mul_i32 s{T}, s{S_M}, 7\ns_add_u32 s{S_R}, s{S_R}, s{T}\ns_lshl_b32 s{T}, s{S_M}, 1")
    a(f"s_cmp_eq_u32 s{S_T}, 63\ns_cselect_b32 s{S_LINE}, s{T}, s{S_LINE}\ns_cselect_b32 s{S_R}, 28, s{S_R}\ns_cselect_b32 s{S_SP}, 1, 0")
    a(f"s_mul_i32 s{S_B0}, s{S_R}, {36 * BATB}\ns_mov_b32 s{S_C}, {NLOG2E:#x}\ns_mov_b32 s{S_C + 1}, s{S_C}")
    a(f"s_cmp_ge_u32 s{S_WAVE}, 4\ns_cbranch_scc0 L_comp")
    a(f"s_sub_u32 s{T}, s{S_WAVE}, 4\ns_and_b32 s{T + 1}, s{T}, 1\ns_lshr_b32 s{T + 2}, s{T}, 1\ns_lshl_b32 s{T + 3}, s{T + 1}, 2")
    a(f"v_lshrrev_b32 v10, 3, v0\nv_and_b32 v11, 7, v0\nv_lshrrev_b32 v12, 1, v10\nv_xor_b32 v11, s{T + 3}, v11")
    a(f"v_and_b32 v13, 2, v10\nv_xor_b32 v13, v13, v11\nv_mul_u32_u24 v14, {ROWB}, v10\nv_lshl_add_u32 v{vW}, v13, 4, v14")
    a(f"v_xor_b32 v13, v12, v11\nv_mul_u32_u24 v15, {BATB}, v10\nv_lshl_add_u32 v{vXm}, v13, 4, v15")
    a(f"s_mul_i32 s{sW}, s{T}, {8 * ROWB}\ns_lshl_b32 s{T + 4}, s{S_LINE}, 7\ns_add_u32 s{sW}, s{sW}, s{T + 4}")
    a(f"s_mul_i32 s{sXm}, s{T + 1}, {8 * BATB}\ns_add_u32 s{sXm}, s{sXm}, s{S_B0}")
    a(f"s_mov_b32 s{T + 3}, {pu.WB0}\ns_mov_b32 s{T + 5}, {16 * BATB}\ns_mov_b32 s{T + 6}, {pu.XBT}\ns_cmp_eq_u32 s{S_SP}, 1")
    a(f"s_cselect_b32 s{T + 3}, {sp.WB0}, s{T + 3}\ns_cselect_b32 s{T + 5}, {4 * ROWB}, s{T + 5}\ns_cselect_b32 s{T + 6}, 8192, s{T + 6}")
    a(f"s_lshl_b32 s{mW}, s{T}, 10\ns_add_u32 s{mW}, s{mW}, s{T + 3}\ns_mul_i32 s{T + 5}, s{T + 5}, s{T + 2}\ns_add_u32 s{sXm}, s{sXm}, s{T + 5}")
    a(f"s_mul_i32 s{T + 6}, s{T + 6}, s{T + 2}\ns_lshl_b32 s{mXm}, s{T + 1}, 10\ns_add_u32 s{mXm}, s{mXm}, s{T + 6}")
    a(f"s_mov_b32 s{S_W + 2}, {WBYTES}\ns_mov_b32 s{S_W + 3}, 0x20000\ns_mov_b32 s{S_X + 2}, {XBYTES}\ns_mov_b32 s{S_X + 3}, 0x20000")
    H = Loader(A(), cfg, pu); H.w(0); H.x(0, 0)
    for x in H.a.L[:2]: a(x)
    a("s_waitcnt lgkmcnt(0)")
    if cfg.stamps: Loader(a, cfg, pu).lstamp()
    for x in H.a.L[2:]: a(x)
    a(f"s_cmp_eq_u32 s{S_SP}, 1\ns_cbranch_scc1 L_sp_ld")
    body = A(); compute_pure(body, cfg, pu)
    far = A()
    loader_pure(a, cfg, pu, H.seq, far)
    a(f";@block pu\nL_comp:\ns_cmp_eq_u32 s{S_SP}, 1\ns_cbranch_scc1 L_sp_comp")
    compute_setup(a, cfg, pu)
    a(";@touch pu wave\n;@region pu")
    if cfg.align is not None:
        import align
        a(".p2align 3")
        t = A(); stamp(t, cfg, 1); t("s_barrier"); stamp(t, cfg, 2)
        a.L += align.run(t.L + body.L, cfg.align, lambda x: x if x.startswith('s_waitcnt') else 's_nop 0')
    else:
        stamp(a, cfg, 1); a("s_barrier"); stamp(a, cfg, 2)
        a.L += body.L
    finish_head(a, cfg)
    a("s_branch L_fin" if cfg.stamps or cfg.echo else "s_endpgm")
    a(";@at pu")
    a.L += far.L
    if cfg.pad_sp: a(f".fill {cfg.pad_sp // 4}, 4, 0xbf810000")
    a(";@block spld\n;@at spld\nL_sp_ld:")
    loader_special(a, cfg, sp, H.seq)
    a(";@block sp0\nL_sp_comp:")
    compute_setup(a, cfg, sp)
    for wv in range(1, 4): a(f"s_cmp_eq_u32 s{S_WAVE}, {wv}\ns_cbranch_scc1 L_sp{wv}_go")
    for wv in range(4):
        if wv: a(f";@block sp{wv}")
        a(f"L_sp{wv}_go:\n;@touch sp{wv} seq")
        stamp(a, cfg, 1); a("s_barrier"); stamp(a, cfg, 2)
        compute_special(a, cfg, sp, wv)
        finish_head(a, cfg)
        a("s_branch L_fin" if cfg.stamps or cfg.echo else "s_endpgm")
    a(";@block end")
    if cfg.stamps or cfg.echo: finish(a, cfg)
    a("L_end:\ns_endpgm")
    a.L = layout(a.L, cfg)
    a(f""".section .rodata,"a"
.p2align 6
.amdhsa_kernel {KNAME}
  .amdhsa_next_free_vgpr 256
  .amdhsa_next_free_sgpr 102
  .amdhsa_accum_offset 256
  .amdhsa_group_segment_fixed_size 0
  .amdhsa_kernarg_size 72
  .amdhsa_user_sgpr_count 2
  .amdhsa_user_sgpr_kernarg_segment_ptr 1
  .amdhsa_system_sgpr_workgroup_id_x 1
  .amdhsa_float_denorm_mode_32 3
.end_amdhsa_kernel""")
    return a.text() + '\n'

if __name__ == '__main__':
    ap = argparse.ArgumentParser()
    ap.add_argument('-o', default='k.s')
    ap.add_argument('opts', nargs='*')
    args = ap.parse_args()
    kw = {}
    for o in args.opts:
        k, v = o.split('=', 1)
        try: v = eval(v)
        except Exception: pass
        kw[k] = v
    open(args.o, 'w').write(gen(Cfg(**kw)))
```

```python
import sys, argparse, re

KNAME = "standalone__batchnorm__sampling_kernel"
ROWB, BATB, TAPB = 1152, 9216, 663552
XBYTES, WBYTES = 9437184, 1990656
NLOG2E = 0xbfb8aa3b

class Cfg:
    def __init__(self, **kw):
        self.stamps = False; self.lst = False; self.echo = None; self.verbose = False
        self.stflags = 'sc1'; self.stflags_e = ''
        self.cpfg, self.cpfn = 8, 57
        self.wpf = False; self.xspf = True; self.xrot = True; self.wrot = True
        self.qlate = {2: 'Q5 Q6', 4: 'Q7 Q8'}
        self.pre = 'W1 X0b / X1 | W2 W3 X2 | P'
        self.pre_sp = 'W0b W1 X1a'
        self.sp_ahead = 2
        self.barv, self.barw, self.rw = 76, 36, (6,)
        self.lookf, self.npre = 26, 12
        self.lead4, self.bar16, self.budget4, self.epk = 4, 21, 8, 5
        self.rd_span, self.lead, self.budget, self.epk_sp = 36, 2, 8, 4
        self.maxld, self.urgent, self.aged = 1, 10, 10
        self.cvtcost = 4
        self.spearly = 2
        self.vb8 = 14
        self.pre_vb = 'W1 w9 X0b X1a'
        self.extra_vb = {('a', 0): 'P', ('b', 2): 'Q5 Q6', ('b', 4): 'Q7 Q8 C'}
        self.vb = 20
        self.early = False
        self.dual = False
        self.pre_w = 'W1 X0b W2'
        self.dualsel = 0
        self.v0b = 16
        self.zig = True
        self.refresh = 4
        self.rfn, self.rfo = 3, 8064
        self.xpos, self.xpos_sp = 8, 8
        self.bar_order = None
        self.sp4 = (5, 30, 32, 33, 22); self.sp_ramp = (9, 1); self.xpos4 = (8, 8, 8, 8); self.reread = True; self.sp_j0 = 99; self.sp_x8 = None
        self.p_early = 1
        self.kofs = None; self.anchor = {k: 0 for k in ('pu', 'spld', 'sp0', 'sp1', 'sp2', 'sp3')}; self.touch = ('pu', 'sp0', 'sp1', 'sp2', 'sp3')
        self.entry_pad = 3328
        self.pad_sp = 0
        self.align = None
        self.align_sp = None
        for k in kw: assert hasattr(self, k), k
        self.__dict__.update(kw)
        if self.kofs is None: self.kofs = 0xd00 if self.entry_pad is None else (self.entry_pad + 768) % 4096

class A:
    def __init__(self): self.L = []
    def __call__(self, s):
        for l in s.split('\n'):
            l = l.strip()
            if l: self.L.append(l)
    def text(self):
        return '\n'.join((l if l.endswith(':') or l[0] in '.;' else '  ' + l) for l in self.L)

V_XA = [2, 1]
V_Q = [[3, 4, 5], [11, 12, 13]]
V_WA = [6, 7]
V_OM, V_OE, V_PA, V_PE = 8, 9, 10, 11
SETB = [16, 84]
def XF(s, p): return SETB[s] + 4 * p
def EF(s, t): return SETB[s] + 32 + 4 * t
def WF(s, c, t): return SETB[s] + 44 + 4 * (3 * c + t)
ACC = 152
def TILE(p, c): return ACC + 4 * (2 * p + c)
PS = 224
def P_S(c): return PS + 4 * c
def P_B(c): return PS + 8 + 4 * c
PE_S, PE_B, TMPE = 240, 244, 248
def r4(b): return f"v[{b}:{b+3}]"
def r2(b): return f"v[{b}:{b+1}]"
S_X, S_W, S_O = 20, 24, 28
S_WAVE, S_SP, S_M, S_T, S_R, S_LINE, S_B0 = 33, 35, 36, 37, 38, 39, 40
T = 41
S_OM, S_OM2, S_OE, S_DX, S_DW, S_CNT, S_XOFF, S_XBP, S_C = 48, 49, 50, 51, 52, 53, 54, 55, 56
sXm, sXq, sW, mXm, mXq, mW, sE, mE, sTmp = 62, 63, 64, 65, 66, 67, 68, 69, 70
XR_S = [44, 45, 46, 47, 48, 49, 50, 51]; XR_M = [52, 53, 54, 55, 58, 59, 60, 61]
WR_S = [74, 75, 92]; WR_M = [93, 100, 101]
S_ST = 76

class Prog:
    def __init__(self, special):
        self.special = special
        self.name = 'sp' if special else 'pu'
        if not special:
            self.XB, self.XBT, self.QB0, self.QB = 16384, 49152, 98304, 4864
            self.WB0, self.WS = 112896, 12288
            self.TB = self.WB0 + 4 * self.WS
        else:
            self.XB, self.WB0, self.WS = 16384, 49152, 27648
            self.TB = self.WB0 + 4 * self.WS + 1024

def stamp(a, cfg, i):
    if cfg.echo is not None:
        op = 's_memtime' if len(cfg.echo) > 3 else 's_memrealtime'
        if i == (cfg.echo[3] if len(cfg.echo) > 3 else 0): a(f"{op} s[76:77]")
        if i == cfg.echo[0]: a(f"{op} s[78:79]")
    if cfg.stamps:
        if i == 0: a(f"s_memrealtime s[{S_ST}:{S_ST + 1}]")
        a(f"s_memtime s[{S_ST + 4 + 2 * i}:{S_ST + 5 + 2 * i}]")
def stamp_l(cfg, i):
    t = A(); stamp(t, cfg, i); return t.L

def epi_stream(prog, cfg, R0, order=tuple(range(9)), pe=(PE_S, PE_B)):
    out, pend = [], []
    for n, p in enumerate(order):
        R = R0 if n == 0 else TILE(order[n - 1], 0)
        Tt, e = [TILE(p, 0), TILE(p, 1)], [TMPE, TMPE + 4]
        ps = [pe[0]] * 2 if p == 8 and prog.special else [P_S(0), P_S(1)]
        pb = [pe[1]] * 2 if p == 8 and prog.special else [P_B(0), P_B(1)]
        if n >= (cfg.epk_sp if prog.special else cfg.epk):
            fma = lambda c: [(f"v_pk_fma_f32 {r2(Tt[c] + i)}, {r2(Tt[c] + i)}, {r2(ps[c] + i)}, {r2(pb[c] + i)}", 4) for i in (0, 2)]
            fmu = lambda c: [(f"v_pk_fma_f32 {r2(e[c] + i)}, {r2(e[c] + i)}, s[{S_C}:{S_C + 1}], s[{S_C}:{S_C + 1}]", 4) for i in (0, 2)]
            mul = lambda c: [(f"v_pk_mul_f32 {r2(Tt[c] + i)}, {r2(Tt[c] + i)}, {r2(e[c] + i)}", 4) for i in (0, 2)]
        else:
            fma = lambda c: [(f"v_fma_f32 v{Tt[c] + i}, v{Tt[c] + i}, v{ps[c] + i}, v{pb[c] + i}", 4) for i in range(4)]
            fmu = lambda c: [(f"v_fma_f32 v{e[c] + i}, v{e[c] + i}, s{S_C}, s{S_C}", 4) for i in range(4)]
            mul = lambda c: [(f"v_mul_f32 v{Tt[c] + i}, v{Tt[c] + i}, v{e[c] + i}", 4) for i in range(4)]
        exp = lambda c: [(f"v_exp_f32 v{e[c] + i}, v{Tt[c] + i}", 8) for i in range(4)]
        rcp = lambda c: [(f"v_rcp_f32 v{e[c] + i}, v{e[c] + i}", 8) for i in range(4)]
        cvt = lambda c: [(f"v_cvt_pk_bf16_f32 v{R + 2 * c + i}, v{Tt[c] + 2 * i}, v{Tt[c] + 2 * i + 1}", cfg.cvtcost) for i in range(2)]
        ops = fma(0) + exp(0) + fma(1) + exp(1) + fmu(0) + rcp(0) + fmu(1) + rcp(1) + mul(0) + cvt(0) + mul(1) + cvt(1)
        ops = [(t, c, []) for t, c in ops]
        ops[-1] = (ops[-1][0], ops[-1][1], [Tt[1]] if n < 8 else [])
        if n >= 2: ops[3] = (ops[3][0], ops[3][1], [TILE(order[n - 2], 0)])
        out.append(ops[:2] + pend + ops[2:])
        so = f"s{S_OM} offen offset:{p * ROWB}" if p < 4 else f"s{S_OM2} offen offset:{(p - 4) * ROWB}" if p < 8 else f"s{S_OE} offen"
        pend = [(f"v_permlane16_swap_b32 v{R}, v{R + 2}", 8, []), (f"v_permlane16_swap_b32 v{R + 1}, v{R + 3}", 8, []),
                (f"buffer_store_dwordx4 {r4(R)}, v{V_OM if p < 8 else V_OE}, s[{S_O}:{S_O + 3}], {so} {cfg.stflags_e if p == 8 and prog.special else cfg.stflags}", 4, [])]
    out[-1] += [("s_nop 1", 8, [])] + pend
    return out

class Sched:
    def __init__(self, cfg):
        self.cfg, self.out, self.reg, self.free = cfg, [], {}, []
        self.nds = self.done = self.nm = 0
        self.ldpos, self.dsat, self.report = {}, [], []
    def emit(self, x):
        self.out.append(x)
        if x.startswith('ds_'): self.nds += 1; self.dsat.append(self.nm)
        if x.startswith('v_mfma'): self.nm += 1
    def need(self, keys):
        k = max([self.ldpos.get(x, 0) for x in keys] + [0])
        if k > self.done:
            k = max(k, sum(1 for m in self.dsat if m <= self.nm - self.cfg.aged))
            n = min(self.nds - k, 15)
            self.emit(f"s_waitcnt lgkmcnt({n})")
            self.done = self.nds - n
    def run(self, mf, loads, bars, pre, epi, budget, look, czero=False, fixed={}, release=False, mark=[], retire=None, order=tuple(range(9))):
        cfg = self.cfg
        first, last, lastm, pos_last, seen = {}, {}, {}, {}, set()
        for i, m in enumerate(mf):
            for k in (m[1], m[2]): first.setdefault(k, i); last[k] = i
            if m[4]: lastm[m[3]] = i
        st = dict(ld=0, sub=[], key=None, ep=0, ei=0, i=-1)
        def try_load(i):
            if not st['sub']:
                if st['ld'] >= len(loads): return False
                key, mingap, fn, latest = loads[st['ld']]
                if i < mingap or i < min(first.get(key, 0) - look, latest): return False
                if key in fixed: r = fixed[key]
                elif not self.free: return False
                else: r = self.free.pop(0)
                self.reg[key] = r; st['sub'] = list(fn(r)); st['key'] = key; st['ld'] += 1
                self.report.append((key, first.get(key, 0) - i))
            self.emit(st['sub'].pop(0))
            if not st['sub']: self.ldpos[st['key']] = self.nds
            return True
        def emit_epi(b, final=False):
            spent = 0
            while epi and st['ep'] < len(epi) and (final or spent < b):
                p = st['ep']
                if order[p] not in pos_last: break
                if st['ei'] == 0:
                    if any(l[0][0] == 'P' and l[0] not in self.ldpos for l in loads): assert not final; break
                    if retire: assert not ({self.reg[k] for k in self.reg if last.get(k, -1) > st['i']} & set(retire[1]))
                    dist = len(self.out) - pos_last[order[p]] - 1
                    if dist < 8:
                        if not final: break
                        self.emit(f"s_nop {8 - dist - 1}")
                    self.need([k for k in self.ldpos if k[0] == 'P'])
                txt, cost, frees = epi[p][st['ei']]
                if re.search(r'[12]00\d', txt):
                    if ('R', 1) not in self.ldpos: assert not final; break
                    self.need([('R', 0), ('R', 1)])
                    txt = re.sub(r'\b(v\[?|:)?([12])00(\d)\b', lambda m: m.group(0) if m.group(1) is None else m.group(1) + str(self.reg[('R', int(m.group(2)) - 1)] + int(m.group(3))), txt)
                self.emit(txt); spent += cost; self.free += frees
                st['ei'] += 1
                if st['ei'] == len(epi[p]): st['ep'] += 1; st['ei'] = 0
        while try_load(-1): pass
        for i, (tile, ak, bk, pair, final) in enumerate(mf):
            while ak not in self.ldpos and ak not in self.given or bk not in self.ldpos and bk not in self.given:
                assert try_load(i - 1), ('fragment cannot be loaded in time', ak, bk, i)
            st['i'] = i
            self.need([ak, bk])
            c = '0' if czero and tile not in seen else r4(tile)
            seen.add(tile)
            self.emit(f"v_mfma_f32_16x16x32_bf16 {r4(tile)}, {r4(self.reg[ak])}, {r4(self.reg[bk])}, {c}")
            if lastm.get(pair) == i: pos_last[pair] = len(self.out) - 1
            if release: self.free += [self.reg[k] for k in (ak, bk) if last[k] == i]
            if retire and i >= retire[0]: self.free = [r for r in self.free if r not in retire[1]]
            if i in bars:
                for k in bars[i]: assert k in self.ldpos, ('not read before the barrier', k, i)
                self.need(bars[i]); self.emit("s_barrier")
            spent = nl = 0
            for x in pre.get(i, []):
                assert not x.startswith('v_add') or (st['ld'] == len(loads) and not st['sub']), 'address advanced under pending reads'
                self.emit(x); spent += 4
            while spent < 8 and try_load(i):
                spent += 4; nl += 1
                nk = st['key'] if st['sub'] else (loads[st['ld']][0] if st['ld'] < len(loads) else None)
                if nl >= cfg.maxld and first.get(nk, 10 ** 6) - i > cfg.urgent: break
            if spent < budget: emit_epi(budget - spent)
        while try_load(10 ** 6): pass
        self.out += mark
        emit_epi(0, True)
    given = ()

def group(prog, wv, steps, p, final, zig=False, reread=False):
    out = []
    for c in range(2):
        if p < 8: items = [(('W', s, c, t), ('X', s, p + t - 1)) for t in range(3) if 0 <= p + t - 1 < 8 for s in steps]
        elif not prog.special: items = [(('W', s, c, t), ('E', s, t)) for t in range(3) for s in steps]
        else: items = [(('E', s, t), ('Y' if reread and len(steps) > 1 else 'X', s, 2 * wv + c + t - 1)) for t in range(3) if 0 <= 2 * wv + c + t - 1 < 8 for s in steps]
        if zig and c == 1: items = items[::-1]
        out += [(TILE(p, c), ak, bk, p, final) for ak, bk in items]
    return out

def wavefront(prog, wv, A_, B_, lead, zig=False, po=tuple(range(9)), reread=False):
    order = [(A_, po[n]) for n in range(lead)]
    for n in range(9):
        order.append((B_, po[n]))
        if n + lead < 9: order.append((A_, po[n + lead]))
    return [m for st, p in order for m in group(prog, wv, st, p, st is B_, zig, reread)]

def ld_fn(prog, key, half, xoff, qoff, woff):
    if key[0] in 'XY': return lambda r: [f"ds_read_b128 {r4(r)}, v{V_XA[half]} offset:{xoff + key[2] * 2048}"]
    if key[0] == 'W':
        o = woff + key[3] * 4096
        return lambda r: [f"ds_read_b64_tr_b16 {r2(r)}, v{V_WA[key[2]]} offset:{o}", f"ds_read_b64_tr_b16 {r2(r + 2)}, v{V_WA[key[2]]} offset:{o + 512}"]
    if not prog.special: return lambda r: [f"ds_read_b128 {r4(r)}, v{V_Q[half][key[2]]} offset:{qoff}"]
    o = woff + key[2] * 1024
    return lambda r: [f"ds_read_b64_tr_b16 {r2(r)}, v{V_Q[0][0]} offset:{o}", f"ds_read_b64_tr_b16 {r2(r + 2)}, v{V_Q[0][1]} offset:{o}"]

def param_loads(prog):
    t = []
    for c in range(2):
        t += [f"ds_read_b128 {r4(P_S(c))}, v{V_PA} offset:{64 * c}", f"ds_read_b128 {r4(P_B(c))}, v{V_PA} offset:{64 * c + 256}"]
    if prog.special: t += [f"ds_read_b128 {r4(PE_S)}, v{V_PE}", f"ds_read_b128 {r4(PE_B)}, v{V_PE} offset:256"]
    return [(('P', n), 0, (lambda x: (lambda r: [x]))(x), 10 ** 6) for n, x in enumerate(t)], {('P', n): 0 for n in range(len(t))}

def compute_pure(a, cfg, prog):
    mf, start = [], {}
    for t in range(7):
        start[t] = len(mf)
        for p in range(9): mf += group(prog, None, [2 * t, 2 * t + 1], p, False, cfg.zig)
    start[7] = nb = len(mf)
    po = list(range(8)); po.insert(cfg.xpos, 8)
    mf += wavefront(prog, None, [14, 15], [16, 17], cfg.lead4, False, po)
    first = {}
    for i, m in enumerate(mf):
        for k in (m[1], m[2]): first.setdefault(k, i)
    vis = {0: -1, 8: nb + cfg.bar16}
    for t in range(1, 8): vis[t] = start[t - 1] + cfg.barv
    bars = {}
    for t in range(1, 9):
        bars[vis[t]] = [k for k in first if k[1] >> 1 == t - 1 and (t <= 6 or (t == 7 and k[0] == 'W' and 6 not in cfg.rw))]
    for t in cfg.rw:
        bars[start[t] + cfg.barw] = [k for k in first if k[0] == 'W' and k[1] >> 1 == t]
    visb = {}
    if cfg.vb is not None:
        for t in cfg.rw: del bars[start[t] + cfg.barw]
        for t in range(8): visb[t] = start[t] + cfg.vb
        visb[8] = first[('X', 16, 4)] - cfg.vb8
        while visb[8] in bars or visb[8] == visb[7]: visb[8] += 1
        assert vis[8] != visb[7]
        for t in range(9): bars[visb[t]] = [k for k in first if k[0] == 'W' and k[1] >> 1 == t and (cfg.early or cfg.dual or t in cfg.rw) and t < 7]
    elif cfg.v0b is not None: bars[cfg.v0b] = []; visb[0] = cfg.v0b
    loads = []
    for n, k in enumerate(sorted(first, key=lambda k: first[k])):
        t = k[1] >> 1
        latest = vis[t + 1] - 10 if t <= 6 else 10 ** 6
        if cfg.vb is not None:
            if k[0] == 'W' and (cfg.early or cfg.dual or t in cfg.rw) and t < 7: latest = min(latest, visb[t] - 8)
        elif k[0] == 'W' and t in cfg.rw: latest = min(latest, start[t] + cfg.barw - 10)
        mg = vis[t] if t or n < cfg.npre else 0
        if t in visb and (k[0] == 'E' or (k[0] == 'X' and k[2] >= 4)): mg = visb[t]
        loads.append((k, mg, ld_fn(prog, k, k[1] & 1, (t % 3) * prog.XB, (t % 3) * prog.QB, (k[1] & 3) * prog.WS), latest))
    for i in range(len(loads) - 2, -1, -1):
        if loads[i][3] > loads[i + 1][3]: loads[i] = loads[i][:3] + (loads[i + 1][3],)
    cfg.bar_order = [n for i, n in sorted([(vis[t], ('a', t)) for t in range(9)] + [(visb[t], ('b', t)) for t in visb])]
    pl, fx = param_loads(prog)
    k = max(i for i, l in enumerate(loads) if l[0][0] == 'W' and l[0][1] < 16)
    loads = loads[:k + 1] + pl + loads[k + 1:]
    sc = Sched(cfg)
    sc.free = [16 + 4 * i for i in range(34)] + [PE_B, TMPE, TMPE + 4]
    sc.run(mf, loads, bars, {nb - 1: stamp_l(cfg, 3)}, epi_stream(prog, cfg, PE_S, po), cfg.budget4, cfg.lookf, czero=True, fixed=fx,
           release=True, mark=stamp_l(cfg, 4), retire=(vis[7], [TMPE, TMPE + 4]), order=po)
    if cfg.verbose: print('pu load distance', sorted([r for r in sc.report if r[0][0] in 'XWE' and r[0][1] > 1], key=lambda z: z[1])[:10], file=sys.stderr)
    for x in sc.out: a(x)

def key_order(s):
    return [('W', s, 0, 1), ('X', s, 0), ('W', s, 0, 2), ('X', s, 1), ('W', s, 1, 2), ('W', s, 1, 1), ('W', s, 0, 0), ('X', s, 2),
            ('W', s, 1, 0)] + [('X', s, p) for p in range(3, 8)] + [('E', s, t) for t in range(3)]
def set_regs(s, step):
    d = {('X', step, p): XF(s, p) for p in range(8)}
    d.update({('E', step, t): EF(s, t) for t in range(3)})
    d.update({('W', step, c, t): WF(s, c, t) for c in range(2) for t in range(3)})
    return d

def compute_special(a, cfg, prog, wv):
    n, XB, WS, BIG = f"sp{wv}", prog.XB, prog.WS, 10 ** 6
    a(f"s_mov_b32 s{S_CNT}, {6 if cfg.sp4 else 7}\ns_mov_b32 s{S_XOFF}, 1\ns_mov_b32 s{S_DW}, {2 * WS}\ns_mov_b32 s{S_XBP}, {XB}\ns_mov_b32 s{S_DX}, {XB}")
    stage = [f"v_add_u32 v{r}, s{S_DX}, v{r}" for r in V_XA] + [f"v_add_u32 v{r}, s{S_DW}, v{r}" for r in V_WA + V_Q[0][:2]] + [
        f"s_cmp_eq_u32 s{S_XOFF}, 2", f"s_cselect_b32 s{S_DX}, {(-2 * XB) & 0xffffffff}, s{S_XBP}",
        f"s_cselect_b32 s{S_XOFF}, -1, s{S_XOFF}", f"s_add_u32 s{S_XOFF}, s{S_XOFF}, 1", f"s_sub_u32 s{S_DW}, 0, s{S_DW}"]
    def spread(l, i0):
        d = {}
        for i, x in enumerate(l): d.setdefault(i0 + i // 2, []).append(x)
        return d
    def step_loads(step, g0, span):
        ko = key_order(step)
        return [(k, g0 + (i * span) // len(ko), ld_fn(prog, k, step & 1, 0, 0, (step & 1) * WS), BIG) for i, k in enumerate(ko)]
    def step(s, nxt, g1, pre, head=[], czero=False):
        sc = Sched(cfg)
        fx = set_regs(s & 1, s); fx.update(set_regs(nxt & 1, nxt))
        if not head:
            sc.reg.update(fx); sc.given = set(set_regs(s & 1, s)); a("s_waitcnt lgkmcnt(0)")
        mf = [m for p in range(9) for m in group(prog, wv, [s], p, False, True)]
        sc.run(mf, head + step_loads(nxt, g1, cfg.rd_span), {g1: [l[0] for l in head]}, pre, None, 0, BIG, czero=czero, fixed=fx)
        for x in sc.out: a(x)
    step(0, 1, 3, spread(stage, cfg.rd_span + 4), head=step_loads(0, -1, 0), czero=True)
    a(f"L_{n}_loop:")
    step(1, 2, 0, {})
    step(2, 3, 0, spread(stage + [f"s_sub_u32 s{S_CNT}, s{S_CNT}, 1", f"s_cmp_lg_u32 s{S_CNT}, 0"], cfg.rd_span + 1))
    a(f"s_cbranch_scc1 L_{n}_loop")
    a(f";@region {n}" if cfg.sp4 else f";@at {n}\n;@region {n}")
    stamp(a, cfg, 3)
    a("s_waitcnt vmcnt(0) lgkmcnt(0)")
    sc = Sched(cfg)
    if cfg.sp4:
        lead, b15, b16, b17, look = cfg.sp4
        sc.reg.update(set_regs(1, 13)); sc.given = set(set_regs(1, 13))
        sc.free = [SETB[0] + 4 * i for i in range(17)] + [PE_S, PE_B]
        mf = [m for p in range(9) for m in group(prog, wv, [13], p, False, True)]
        nb = len(mf)
        po = list(range(8)); po.insert(cfg.xpos4[wv], 8)
        mf += wavefront(prog, wv, [14, 15], [16, 17], lead, False, po, cfg.reread)
        first = {}
        for i, m in enumerate(mf):
            for k in (m[1], m[2]):
                if k[1] > 13: first.setdefault(k, i)
        vis = {14: 0, 15: b15, 16: nb + b16, 17: nb + b17}
        loads, moved = [], set()
        for k in sorted(first, key=lambda k: first[k]):
            fn = ld_fn(prog, k, k[1] & 1, XB * (k[1] >= 16), 0, (k[1] & 1) * WS)
            if k[1] >= 16 and k[0] in 'WE' and k[0] not in moved:
                moved.add(k[0])
                fn = (lambda f, regs: lambda r: [f"v_subrev_u32 v{x}, {2 * WS}, v{x}" for x in regs] + f(r))(fn, V_WA if k[0] == 'W' else V_Q[0][:2])
            assert k[1] >= 16 or k[0] not in moved
            loads.append((k, vis[k[1] & ~1] if k[0] in 'XY' else vis[k[1]], fn, BIG))
        pl, fx = param_loads(prog)
        k = max(i for i, l in enumerate(loads) if l[0][0] == 'W' and l[0][1] < 16)
        loads = loads[:k + 1] + pl[:4] + loads[k + 1:]
        k = max(i for i, l in enumerate(loads) if l[0][0] == 'E')
        loads[k + 1:k + 1] = [(('R', n), 0, (lambda n: lambda r: [f"ds_read_b128 {r4(r)}, v{V_PE} offset:{256 * n}"])(n), BIG) for n in range(2)]
        sc.run(mf, loads, {v: [] for v in vis.values()}, {}, epi_stream(prog, cfg, 12, po, (1000, 2000)), cfg.budget, look, fixed=fx, release=True,
               mark=stamp_l(cfg, 4), order=po)
        for x in sc.out: a(x)
        return
    sc.reg.update(set_regs(1, 15)); sc.given = set(set_regs(1, 15))
    sc.free = [SETB[0] + 4 * i for i in range(17)]
    mf = [m for p in range(9) for m in group(prog, wv, [15], p, False, True)]
    nb = len(mf)
    po = list(range(8)); po.insert(cfg.xpos_sp, 8)
    mf += wavefront(prog, wv, [16], [17], cfg.lead, True, po)
    pl, fx = param_loads(prog)
    sc.run(mf, step_loads(16, 0, cfg.rd_span) + pl + step_loads(17, nb, 0), {0: [], nb: []}, {}, epi_stream(prog, cfg, 12, po), cfg.budget, BIG,
           fixed=fx, release=True, mark=stamp_l(cfg, 4), order=po)
    for x in sc.out: a(x)

vXm, vXq, vW, vE = 2, 3, 4, 5
class Loader:
    def __init__(self, a, cfg, prog):
        self.a, self.cfg, self.prog = a, cfg, prog
        self.seq, self.rot, self.xstate, self.lg = [], False, {}, 0
    def lstamp(self):
        if self.cfg.stamps and self.cfg.lst and self.lg < 64:
            self.a(f"s_memtime s[94:95]\ns_waitcnt lgkmcnt(0)\ns_sub_u32 s94, s94, s{S_ST + 4}\nv_writelane_b32 v40, s94, {self.lg}")
            self.lg += 1
    def dma(self, v, srd, sbase, soff, mbase, moff, tag):
        self.a(f"s_add_u32 m0, s{mbase}, {moff}\ns_add_u32 s{sTmp}, s{sbase}, {soff}\nbuffer_load_dwordx4 v{v}, s[{srd}:{srd + 3}], s{sTmp} offen lds")
        self.seq.append(tag)
    def x(self, t, part=None):
        p = self.prog
        ns = 4 if p.special else 8
        rng = range(ns) if part is None else range(ns // 2) if part == 0 else range(ns // 2, ns)
        assert self.cfg.vb is not None or self.xstate.setdefault(t, self.rot) == self.rot
        for s in rng:
            if self.rot and self.cfg.xrot: self.dma(vXm, S_X, XR_S[s], t * 128, XR_M[s], (t % 3) * p.XB, ('x', t))
            else: self.dma(vXm, S_X, sXm, s * ROWB + t * 128, mXm, (t % 3) * p.XB + s * 2048, ('x', t))
        if not p.special and part != 0: self.dma(vXq, S_X, sXq, t * 128, mXq, (t % 3) * p.QB, ('x', t))
    def w(self, j, part=None, rng=None):
        p = self.prog
        buf = (j & 3) * p.WS
        todo = []
        for k, tap in enumerate((1, 2, 0)):
            if self.rot and self.cfg.wrot: todo.append((vW, S_W, WR_S[k], j * 32 * ROWB, WR_M[k], buf, ('w', j))); continue
            if part != 1: todo.append((vW, S_W, sW, tap * TAPB + j * 32 * ROWB, mW, buf + tap * 4096, ('w', j)))
            if p.special and part != 0: todo.append((vW, S_W, sW, tap * TAPB + j * 32 * ROWB + 128, mW, buf + 12288 + tap * 4096, ('w', j)))
        if p.special and part != 0: todo.append(None)
        for d in todo[rng[0]:rng[1]] if rng else todo:
            if d: self.dma(*d); continue
            self.a(f"s_mul_i32 s{sTmp + 1}, s{sTmp + 2}, {j & 3}\ns_add_u32 m0, s{mE}, s{sTmp + 1}\ns_add_u32 s{sTmp}, s{sE}, {j * 32 * ROWB}")
            self.a(f"buffer_load_dwordx4 v{vE}, s[{S_W}:{S_W + 3}], s{sTmp} offen lds")
            self.seq.append(('w', j))
    def issue(self, l, relw, relx):
        a, cfg = self.a, self.cfg
        if cfg.verbose: print(self.prog.name, l, file=sys.stderr)
        for it in l.split():
            part = 'ab'.index(it[-1]) if it[-1] in 'ab' else None
            if it == 'B':
                for i, sp in enumerate((8, 10, 12, 14)):
                    a(f"global_load_ushort v{20 + i}, v6, s[{sp}:{sp + 1}]"); self.seq.append(('b', 0))
            elif it == 'P':
                if cfg.wpf: a(f"buffer_load_dword v30, v8, s[{S_W}:{S_W + 3}], 0 offen"); self.seq.append(('p', 0))
                if cfg.xspf: a(f"buffer_load_dword v31, v9, s[{S_X}:{S_X + 3}], 0 offen"); self.seq.append(('p', 0))
            elif it == 'O':
                a(f"s_mov_b32 s{S_O + 2}, {XBYTES}\ns_mov_b32 s{S_O + 3}, 0x20000\nv_min_u32 v19, 1, v0\nv_mul_u32_u24 v19, {(16 if self.prog.special else 36) * BATB - 128}, v19")
                a(f"buffer_load_dword v30, v19, s[{S_O}:{S_O + 3}], s{S_B0} offen"); self.seq.append(('p', 0))
            elif it[0] == 'w':
                a(f"s_waitcnt vmcnt({it[1:]})")
            elif it == 'C':
                a("global_load_dword v30, v18, s[96:97]"); self.seq.append(('p', 0))
            elif it[0] == 'Q':
                a(f"s_add_u32 s{sTmp}, s72, {int(it[1:]) * 128}\nbuffer_load_dword v30, v17, s[{S_X}:{S_X + 3}], s{sTmp} offen"); self.seq.append(('p', 0))
            elif ':' in it:
                n, r0, r1 = map(int, it[1:].split(':'))
                assert n <= relw, ('slot still in use', it)
                if n < 18: self.w(n, None, (r0, r1))
            else:
                n = int(it.rstrip('ab')[1:])
                assert n <= (relw if it[0] == 'W' else relx), ('slot still in use', it)
                (self.w if it[0] == 'W' else self.x)(n, part)
    def wait(self, need):
        for t in need:
            full = 4 if t[0] == 'b' else ((7, 4) if self.prog.special else (3, 9))[t[0] == 'x']
            assert self.seq.count(t) == full, t
        self.a(f"s_waitcnt vmcnt({len(self.seq) - 1 - max(i for i, t in enumerate(self.seq) if t in need)})")
    def bn_finish(self):
        a = self.a
        self.wait({('b', 0)})
        for i in range(4): a(f"v_lshlrev_b32 v{20 + i}, 16, v{20 + i}")
        a("v_add_f32 v21, 0x3727c5ac, v21\nv_rsq_f32 v21, v21\ns_nop 0\nv_mul_f32 v21, v21, v22\nv_fma_f32 v23, -v20, v21, v23")
        a(f"v_mul_f32 v21, s{S_C}, v21\nv_mul_f32 v23, s{S_C}, v23\nds_write_b32 v7, v21\nds_write_b32 v7, v23 offset:256")
    def bar(self, need):
        if need: self.wait(need)
        self.lstamp(); self.a("s_barrier"); self.lstamp()
    def end(self):
        a = self.a
        nw, nx = (7, 4) if self.prog.special else (3, 9)
        assert sum(t[0] == 'w' for t in self.seq) == 18 * nw and sum(t[0] == 'x' for t in self.seq) == 9 * nx
        if self.cfg.stamps and self.cfg.lst:
            a(f"s_cmp_lg_u32 s{S_WAVE}, 4\ns_cbranch_scc1 L_end\ns_load_dwordx2 s[4:5], s[0:1], 64\ns_waitcnt lgkmcnt(0)")
            a(f"s_lshl_b32 s{T}, s2, 9\ns_add_u32 s{T}, s{T}, 0x100000\nv_lshl_add_u32 v41, v0, 2, s{T}\nglobal_store_dword v41, v40, s[4:5]")
        a("s_endpgm")

def auto(items, given):
    out = []
    for it in items:
        base = it.rstrip('ab')
        if it in given or base in given or (it == base and base + 'a' in given): continue
        if int(base[1:]) < (18 if it[0] == 'W' else 9): out.append(it)
    return ' ' + ' '.join(out)

def loader_pure(a, cfg, prog, head, far):
    L = Loader(a, cfg, prog); L.seq = list(head); L.xstate[0] = False; L.lg = 1
    a(f"s_mul_i32 s{T + 5}, s{T}, 9\ns_add_u32 s{T + 5}, s{T + 5}, 1")
    a(f"v_add_u32 v13, s{T + 5}, v10\nv_bfe_u32 v13, v13, 1, 3\nv_and_b32 v12, 7, v0\nv_xor_b32 v13, v13, v12\nv_lshl_add_u32 v{vXq}, v13, 4, v14")
    a(f"s_lshl_b32 s{mXq}, s{T + 5}, 7\ns_add_u32 s{mXq}, s{mXq}, {prog.QB0}")
    a(f"s_add_u32 s{T + 5}, s{T}, 32\ns_mul_i32 s{T + 5}, s{T + 5}, {BATB}\ns_add_u32 s{sXq}, s{T + 5}, s{S_B0}")
    parts = cfg.pre.split('|') + [''] * 12
    given = set(' '.join(parts).replace('/', ' ').split())
    if cfg.vb is not None:
        L.issue(cfg.pre_vb, 3, 2)
    elif cfg.v0b is not None:
        p0, p1 = parts[0].split('/')
        L.issue(p0, 3, 2)
        idx = [i for i, t_ in enumerate(L.seq) if t_ in (('w', 0), ('w', 1))] + [i for i, t_ in enumerate(L.seq) if t_ == ('x', 0)][:4]
        a(f"s_waitcnt vmcnt({len(L.seq) - 1 - max(idx)})\ns_barrier")
        L.issue(p1, 3, 2)
    else: L.issue(parts[0], 3, 2)
    def xspf_setup(a):
        a(f"s_and_b32 s{T + 6}, s{S_T}, 31\ns_mul_i32 s{T + 6}, s{T + 6}, 40\ns_mul_i32 s{T + 5}, s{T}, 10\ns_add_u32 s{T + 6}, s{T + 6}, s{T + 5}")
        a(f"s_add_u32 s{T + 6}, s{T + 6}, {1008 * 72}\ns_cmp_lt_u32 s{S_T}, 32\ns_cselect_b32 s{T + 5}, 0, 10\nv_mov_b32 v13, 0x40000000")
        a(f"v_cmp_gt_u32 vcc, s{T + 5}, v0\nv_add_u32 v9, s{T + 6}, v0\nv_lshlrev_b32 v9, 7, v9\nv_cndmask_b32 v9, v13, v9, vcc")
    if cfg.p_early: xspf_setup(a)
    if cfg.p_early == 2: L.issue('P', 0, 0)
    L.lstamp()
    def late_setup(L, wlead=False):
        a = L.a
        a(f"v_lshl_add_u32 v6, v0, 1, s{T + 4}\nv_lshlrev_b32 v7, 2, v0\nv_add_u32 v7, {prog.TB}, v7")
        assert not cfg.wpf
        if cfg.wpf:
            a(f"s_mul_i32 s{T + 6}, s2, 61\ns_lshl_b32 s{T + 5}, s{T}, 4\ns_add_u32 s{T + 6}, s{T + 6}, s{T + 5}")
            a(f"v_cmp_gt_u32 vcc, 16, v0\nv_add_u32 v8, s{T + 6}, v0\nv_lshlrev_b32 v8, 7, v8\nv_cndmask_b32 v8, v13, v8, vcc")
        if cfg.xspf and not cfg.p_early: xspf_setup(a)
        if cfg.qlate or 'Q' in cfg.pre:
            a(f"s_lshr_b32 s{T + 1}, s{S_T}, 5\ns_mul_i32 s{T + 1}, s{T + 1}, 3\ns_mul_i32 s{T + 2}, s{S_M}, 7\ns_add_u32 s{T + 1}, s{T + 1}, s{T + 2}\ns_mul_i32 s72, s{T + 1}, {288 * ROWB}")
            a(f"s_lshr_b32 s{T + 1}, s2, 3\ns_lshl_b32 s{T + 1}, s{T + 1}, 2\ns_add_u32 s{T + 1}, s{T + 1}, s{T}\ns_mul_i32 s{T + 1}, s{T + 1}, {9 * ROWB}\ns_add_u32 s72, s72, s{T + 1}")
            a(f"v_min_u32 v17, 8, v0\nv_mul_u32_u24 v17, {ROWB}, v17")
        if cfg.refresh:
            a(f"s_getpc_b64 s[96:97]\nL_pc2{'w' if wlead else ''}:")
            if wlead: a("s_sub_u32 s96, s96, L_pc2w-L_pc2\ns_subb_u32 s97, s97, 0")
            a(f"s_lshr_b32 s{T + 1}, s2, 3\ns_lshl_b32 s{T + 1}, s{T + 1}, 2\ns_add_u32 s{T + 1}, s{T + 1}, s{T}\ns_mul_i32 s{T + 1}, s{T + 1}, {128 * cfg.rfn}")
            if cfg.rfo: a(f"s_add_u32 s{T + 1}, s{T + 1}, {cfg.rfo}")
            a(f"v_min_u32 v18, {cfg.rfn - 1}, v0\nv_lshl_add_u32 v18, v18, 7, s{T + 1}\nv_min_u32 v18, L_end-L_pc2, v18")
        if cfg.wrot:
            a(f"s_mul_i32 s{T}, s{S_R}, 43\ns_lshr_b32 s{T}, s{T}, 7\ns_mul_i32 s{T}, s{T}, 3\ns_sub_u32 s{T}, s{S_R}, s{T}")
            for k in range(3):
                if k: a(f"s_add_u32 s{T}, s{T}, 1\ns_cmp_eq_u32 s{T}, 3\ns_cselect_b32 s{T}, 0, s{T}")
                a(f"s_mul_i32 s{T + 1}, s{T}, {TAPB}\ns_add_u32 s{WR_S[k]}, s{sW}, s{T + 1}\ns_lshl_b32 s{T + 1}, s{T}, 12\ns_add_u32 s{WR_M[k]}, s{mW}, s{T + 1}")
        if cfg.xrot:
            for k in range(8):
                if cfg.vb is not None: a(f"s_add_u32 s{T}, s{S_LINE}, {k}\ns_and_b32 s{T}, s{T}, 3\ns_or_b32 s{T}, s{T}, {k & 4}\ns_mul_i32 s{T + 1}, s{T}, {ROWB}\ns_add_u32 s{XR_S[k]}, s{sXm}, s{T + 1}")
                else: a(f"s_add_u32 s{T}, s{S_LINE}, {k}\ns_and_b32 s{T}, s{T}, 7\ns_mul_i32 s{T + 1}, s{T}, {ROWB}\ns_add_u32 s{XR_S[k]}, s{sXm}, s{T + 1}")
                a(f"s_lshl_b32 s{T}, s{T}, 11\ns_add_u32 s{XR_M[k]}, s{mXm}, s{T}")
        L.rot = True
    if cfg.vb is not None: return loader_split(a, cfg, L, late_setup, far)
    late_setup(L)
    relw = 3
    for t in range(9):
        if t == 3: a("s_waitcnt lgkmcnt(0)")
        L.bar({('w', 2 * t), ('w', 2 * t + 1), ('x', t)})
        l = parts[t + 1] + (' B' if t == 0 else '')
        if t >= 1:
            relw = max(relw, 2 * t + 3)
            if t - 1 not in cfg.rw: l += auto([f"W{2 * t + 2}", f"W{2 * t + 3}"], given)
            l += auto([f"X{t + 2}"], given)
        L.issue(l + ' ' + cfg.qlate.get(t, '') + (' C' if cfg.refresh and cfg.refresh == t else ''), relw, t + 2)
        if t == 2: L.bn_finish()
        if t in cfg.rw:
            a("s_barrier")
            relw = 2 * t + 5
            L.issue(auto([f"W{2 * t + 4}", f"W{2 * t + 5}"], given), relw, 0)
    L.end()

def loader_split(a, cfg, L, late_setup, far):
    import copy
    def run(L, order, done, relw, relx, wlead):
        a = L.a
        def xidx(t, part):
            idx = [i for i, g in enumerate(L.seq) if g == ('x', t)]
            assert len(idx) >= (4 if part == 0 else 9), (t, part)
            return idx[3] if part == 0 else idx[8]
        def go(items):
            l = [i for i in items if i not in done and int(i.rstrip('ab')[1:]) < (18 if i[0] == 'W' else 9)]
            done.update(l); L.issue(' '.join(l), relw, relx)
        for n, (kind, t) in enumerate(order):
            if kind != '-':
                if kind == 'a':
                    for j in (2 * t, 2 * t + 1): assert L.seq.count(('w', j)) == 3
                    last = max([i for i, g in enumerate(L.seq) if g in (('w', 2 * t), ('w', 2 * t + 1))] + [xidx(t, 0)])
                else: last = xidx(t, 1)
                a(f"s_waitcnt vmcnt({len(L.seq) - 1 - last})" + (" lgkmcnt(0)" if (kind, t) == ('a', 4) else ""))
                L.lstamp(); a("s_barrier"); L.lstamp()
            if kind == 'a':
                relx = t + 2; relw = max(relw, 2 * t + 3)
                if wlead: go([f"X{t + 1}a", f"X{t + 1}b"] + (['X8a'] if t == 6 else []))
                else: go((['X1a'] if t == 0 else []) + [f"W{2 * t + 2}", f"W{2 * t + 3}"] + (['X8b'] if t == 7 else []))
                if t == 3: L.bn_finish()
            else:
                if cfg.dual or t in cfg.rw: relw = 2 * t + 5
                if (kind, t) == ('b', 0) and cfg.dual:
                    if cfg.dualsel == 0: a(f"s_add_u32 s{sTmp}, s{S_R}, s{S_LINE}\ns_bitcmp1_b32 s{sTmp}, 0\ns_cbranch_scc1 L_ld_w")
                    elif cfg.dualsel == 1: a(f"s_and_b32 s{sTmp}, s{S_R}, 3\ns_and_b32 s{sTmp + 1}, s{S_LINE}, 3\ns_cmp_eq_u32 s{sTmp}, s{sTmp + 1}\ns_cbranch_scc1 L_ld_w")
                    else: a("s_branch L_ld_w")
                    L2 = copy.copy(L); L2.seq = list(L.seq); L2.a = far
                    far("L_ld_w:")
                    run(L2, [('-', 0)] + order[n + 1:], set(done), relw, relx, True)
                if wlead: go((['X1b'] if t == 0 else []) + [f"W{2 * t + 4}", f"W{2 * t + 5}"])
                elif t == 6 and 6 in cfg.rw: go(['X7b', 'X8a', 'W16', 'W17'])
                else: go([f"X{t + 1}b", f"X{t + 2}a"])
                if t == 0:
                    late_setup(L, wlead); L.issue('B', 0, 0)
                    if not wlead: a(";@touch ld seq\n;@region ld")
            L.issue(cfg.extra_vb.get((kind, t), ''), 0, 0)
        L.end()
    run(L, cfg.bar_order, set(cfg.pre_vb.split()) | {'W0', 'X0a'}, 3, 2, False)

def loader_special(a, cfg, prog, head):
    L = Loader(a, cfg, prog); L.seq = list(head); L.lg = 1
    a("v_lshrrev_b32 v13, 1, v0\nv_bfe_u32 v14, v0, 4, 1\nv_lshlrev_b32 v14, 2, v14\nv_xor_b32 v13, v13, v14")
    a(f"v_mul_u32_u24 v13, {ROWB}, v13\nv_and_b32 v14, 1, v0\nv_lshl_add_u32 v{vE}, v14, 4, v13")
    a(f"s_mul_i32 s{sE}, s{T}, {TAPB}\ns_lshl_b32 s{T + 5}, s{S_M}, 5\ns_add_u32 s{T + 5}, s{T + 5}, 1024\ns_add_u32 s{sE}, s{sE}, s{T + 5}")
    a(f"s_lshl_b32 s{mE}, s{T}, 10\ns_add_u32 s{mE}, s{mE}, {prog.WB0 + 24576}\ns_cmp_eq_u32 s{T}, 3")
    a(f"s_cselect_b32 s{mE}, {prog.WB0 + 4 * prog.WS}, s{mE}\ns_cselect_b32 s{sTmp + 2}, 0, {prog.WS}\ns_cselect_b32 s{T + 6}, 0x40000000, 0")
    a(f"v_add_u32 v{vE}, s{T + 6}, v{vE}")
    parts = cfg.pre_sp.split('|') + [''] * 20
    given = set(' '.join(parts).split()) | {'X0', 'W0'}
    L.issue(parts[0], 3, 2)
    L.lstamp()
    a(f"s_lshl_b32 s{T + 6}, s{T + 1}, 7\ns_add_u32 s{T + 6}, s{T + 6}, s{T + 4}\ns_cmp_ge_u32 s{T}, 2\ns_cselect_b32 s{T + 6}, s{T + 5}, s{T + 6}")
    a(f"v_lshl_add_u32 v6, v0, 1, s{T + 6}\nv_min_u32 v6, 1150, v6")
    a(f"s_min_u32 s{T + 6}, s{T}, 2\ns_lshl_b32 s{T + 6}, s{T + 6}, 9\ns_add_u32 s{T + 6}, s{T + 6}, {prog.TB}\nv_lshl_add_u32 v7, v0, 2, s{T + 6}")
    for j in range(18):
        if j == 6: a("s_waitcnt lgkmcnt(0)")
        L.bar({('w', j), ('x', j >> 1)})
        d = cfg.sp_ahead
        ws = [f"W{j + d}"] if j < cfg.sp_j0 else [f"W{j + d}", f"W{j + d + 1}"] if j == cfg.sp_j0 else [f"W{j + d + 1}"]
        xs = [f"X{(j + 3) >> 1}" + 'ba'[j & 1]]
        if cfg.sp_x8 is not None and j >= cfg.sp_x8: xs = xs + ['X8a', 'X8b'] if j == cfg.sp_x8 and j < 13 else ['X8a', 'X8b'] if j == cfg.sp_x8 else [x for x in xs if x[1] != '8']
        l = parts[j + 1] + auto(ws + xs, given) + (' B' if j == 0 else '')
        if cfg.sp_ramp and j >= cfg.sp_ramp[0]:
            j0, q = cfg.sp_ramp
            k0, k1 = min(7, (j - j0) * q), min(7, (j - j0 + 1) * q)
            l = f"W{j + d}:{k0}:7" + auto(xs, given) + f" W{j + d + 1}:0:{k1}"
        L.issue(l, max(3, j + 3), max(2, (j >> 1) + 2))
        if j == 1: a(";@touch spld seq\n;@region spld")
        if j == 4: L.bn_finish()
    L.end()

def compute_setup(a, cfg, prog):
    sp = prog.special
    a(f"s_lshr_b32 s{T}, s{S_WAVE}, 1\ns_and_b32 s{T + 1}, s{S_WAVE}, 1")
    a("v_and_b32 v60, 15, v0\nv_lshrrev_b32 v61, 4, v0")
    if sp: a(f"s_add_u32 s{S_LINE}, s{S_LINE}, s{T}")
    a(f"s_lshl_b32 s{T + 2}, s{S_LINE}, 7\ns_lshl_b32 s{T + 3}, s{T + 1}, 6\ns_add_u32 s{T + 2}, s{T + 2}, s{T + 3}")
    a(f"s_lshl_b32 s{T + 3}, s{T + 1}, 7\ns_add_u32 s{T + 3}, s{T + 3}, {prog.TB}")
    if sp:
        a(f"s_lshl_b32 s{T + 4}, s{T}, 9\ns_add_u32 s{T + 3}, s{T + 3}, s{T + 4}")
        a(f"v_lshlrev_b32 v{V_PE}, 4, v61\nv_add_u32 v{V_PE}, {prog.TB + 1024}, v{V_PE}")
    a(f"v_lshl_add_u32 v{V_PA}, v61, 4, s{T + 3}")
    a("v_and_b32 v62, 1, v61\nv_lshrrev_b32 v63, 1, v61")
    a(f"v_mul_u32_u24 v{V_OM}, {BATB}, v60\nv_lshl_add_u32 v{V_OM}, v63, 4, v{V_OM}")
    if not sp:
        a(f"v_lshl_add_u32 v{V_OM}, v62, 5, v{V_OM}\nv_lshrrev_b32 v71, 3, v60\nv_and_b32 v72, 7, v60")
        a(f"v_mul_u32_u24 v{V_OE}, {BATB}, v71\nv_mul_u32_u24 v64, {ROWB}, v72\nv_add_u32 v{V_OE}, v{V_OE}, v64")
        a(f"v_lshl_add_u32 v{V_OE}, v63, 4, v{V_OE}\nv_lshl_add_u32 v{V_OE}, v62, 5, v{V_OE}")
        a(f"s_mul_i32 s{T + 3}, s{T}, {16 * BATB}\ns_add_u32 s{S_OM}, s{S_B0}, s{T + 3}\ns_add_u32 s{S_OM}, s{S_OM}, s{T + 2}")
        a(f"s_mul_i32 s{T + 3}, s{T}, {2 * BATB}\ns_add_u32 s{S_OE}, s{S_B0}, s{T + 3}\ns_add_u32 s{S_OE}, s{S_OE}, {32 * BATB}\ns_add_u32 s{S_OE}, s{S_OE}, s{T + 2}")
        a(f"s_mul_i32 s{T + 3}, s{T}, 18\nv_mad_u32_u24 v64, v71, 9, v72\nv_add_u32 v64, s{T + 3}, v64")
        for t in range(3):
            a(f"v_add_u32 v65, {t}, v64\nv_bfe_u32 v66, v65, 1, 3\nv_xor_b32 v66, v66, v61\nv_lshlrev_b32 v66, 4, v66")
            a(f"v_lshl_add_u32 v66, v65, 7, v66\nv_add_u32 v{V_Q[0][t]}, {prog.QB0}, v66\nv_xor_b32 v{V_Q[1][t]}, 64, v{V_Q[0][t]}")
    else:
        a(f"v_mul_u32_u24 v64, {ROWB}, v62\nv_add_u32 v{V_OE}, v{V_OM}, v64\nv_lshl_add_u32 v{V_OM}, v62, 5, v{V_OM}")
        a(f"s_add_u32 s{S_OM}, s{S_B0}, s{T + 2}\ns_mul_i32 s{T + 3}, s{S_WAVE}, {2 * ROWB}\ns_add_u32 s{S_OE}, s{S_B0}, s{T + 3}")
        a(f"s_lshl_b32 s{T + 3}, s{S_M}, 5\ns_add_u32 s{S_OE}, s{S_OE}, s{T + 3}\ns_add_u32 s{S_OE}, s{S_OE}, 1024")
    a(f"s_add_u32 s{S_OM2}, s{S_OM}, {4 * ROWB}")
    a(f"v_lshrrev_b32 v64, 1, v60\nv_xor_b32 v64, v64, v61\nv_lshlrev_b32 v64, 4, v64\nv_lshl_add_u32 v{V_XA[0]}, v60, 7, v64")
    if not sp: a(f"s_mul_i32 s{T + 3}, s{T}, {prog.XBT}\nv_add_u32 v{V_XA[0]}, s{T + 3}, v{V_XA[0]}")
    a(f"v_xor_b32 v{V_XA[1]}, 64, v{V_XA[0]}")
    a("v_lshrrev_b32 v64, 2, v60\nv_and_b32 v65, 3, v60\nv_lshl_add_u32 v66, v61, 3, v64\nv_and_b32 v67, 2, v64\nv_lshl_add_u32 v67, v62, 2, v67")
    a(f"s_lshl_b32 s{T + 3}, s{T + 1}, 2\nv_lshrrev_b32 v68, 1, v65\nv_add_u32 v68, s{T + 3}, v68")
    a("v_and_b32 v69, 1, v65\nv_lshlrev_b32 v69, 3, v69\nv_lshl_add_u32 v69, v66, 7, v69")
    if sp: a(f"s_mul_i32 s{T + 3}, s{T}, 12288\ns_add_u32 s{T + 3}, s{T + 3}, {prog.WB0}\nv_add_u32 v69, s{T + 3}, v69")
    else: a(f"v_add_u32 v69, {prog.WB0}, v69")
    for c in range(2): a(f"v_add_u32 v70, {2 * c}, v68\nv_xor_b32 v70, v70, v67\nv_lshl_add_u32 v{V_WA[c]}, v70, 4, v69")
    if sp:
        a("v_lshl_add_u32 v70, v62, 2, v66\nv_lshlrev_b32 v70, 5, v70\nv_lshl_add_u32 v70, v65, 3, v70")
        a(f"v_add_u32 v{V_Q[0][0]}, {prog.WB0 + 24576}, v70\nv_xor_b32 v70, 128, v70\nv_add_u32 v{V_Q[0][1]}, {prog.WB0 + 24576}, v70")
    else:
        a("v_mov_b32 v72, 0\nv_mov_b32 v73, 0\nv_mov_b32 v74, 0\nv_mov_b32 v75, 0")
        a(f"v_lshrrev_b32 v64, 3, v0\ns_lshl_b32 s{T + 3}, s{S_WAVE}, 3\nv_add_u32 v64, s{T + 3}, v64\nv_min_u32 v64, 14, v64")
        a("v_mul_u32_u24 v65, 52, v64\nv_lshrrev_b32 v65, 8, v65\nv_mul_u32_u24 v66, 5, v65\nv_sub_u32 v66, v64, v66")
        a(f"v_mul_u32_u24 v65, {prog.QB}, v65\nv_mul_u32_u24 v66, {9 * 128}, v66\nv_add_u32 v65, v65, v66")
        a(f"v_and_b32 v66, 7, v0\nv_lshl_add_u32 v65, v66, 4, v65\nv_add_u32 v65, {prog.QB0}, v65\nds_write_b128 v65, v[72:75]")
    a(f"s_mov_b32 s{S_O + 2}, {XBYTES}\ns_mov_b32 s{S_O + 3}, 0x20000\ns_waitcnt lgkmcnt(0)")

def finish_head(a, cfg):
    stamp(a, cfg, 5)
    if cfg.echo is not None or cfg.stamps:
        a("s_waitcnt vmcnt(0)"); stamp(a, cfg, 6)
    if cfg.stamps: a(f"s_memrealtime s[{S_ST + 2}:{S_ST + 3}]")
def finish(a, cfg):
    a("L_fin:")
    if cfg.echo is not None:
        a(f"s_memrealtime s[80:81]\ns_waitcnt lgkmcnt(0)\ns_sub_u32 s78, s78, s76\ns_mul_i32 s78, s78, {cfg.echo[1]}")
        a(f"s_cmp_eq_u32 s2, {cfg.echo[2]}\ns_cselect_b32 s78, s78, 0")
        a("L_echo:\ns_memrealtime s[82:83]\ns_waitcnt lgkmcnt(0)\ns_sub_u32 s82, s82, s80\ns_cmp_lt_u32 s82, s78\ns_cbranch_scc1 L_echo")
    if cfg.stamps:
        a(f"s_load_dwordx2 s[4:5], s[0:1], 64\ns_waitcnt lgkmcnt(0)")
        for i in range(4): a(f"v_mov_b32 v{16 + i}, s{S_ST + i}")
        for i in range(1, 7): a(f"s_sub_u32 s{T}, s{S_ST + 4 + 2 * i}, s{S_ST + 4}\nv_mov_b32 v{18 + 2 * i}, s{T}\nv_mov_b32 v{19 + 2 * i}, 0")
        a(f"s_lshl_b32 s{T}, s{S_WAVE}, 8\ns_add_u32 s{T}, s{T}, s2\ns_mul_i32 s{T}, s{T}, 64\nv_mov_b32 v32, s{T}\nv_cmp_eq_u32 vcc, 0, v0\ns_and_saveexec_b64 s[6:7], vcc")
        for i in range(4): a(f"global_store_dwordx4 v32, v[{16 + 4 * i}:{19 + 4 * i}], s[4:5] offset:{16 * i}")

def insn_sizes(L):
    import subprocess, tempfile, os
    idx = [i for i, l in enumerate(L) if not (l.endswith(':') or l[0] in '.;')]
    with tempfile.TemporaryDirectory() as d:
        keep = [l for l in L if not l.startswith(('.fill', '.p2align', '.globl', '.type'))]
        open(d + '/a.s', 'w').write('\n'.join(keep) + '\n')
        subprocess.run(['clang', '-x', 'assembler', '-target', 'amdgcn-amd-amdhsa', '-mcpu=gfx950', '-c', d + '/a.s', '-o', d + '/a.o'], check=True)
        out = subprocess.run(['llvm-objdump', '-d', '-z', d + '/a.o'], capture_output=True, text=True).stdout
    sz = [4 * (len(m.group(1).split())) for m in re.finditer(r'// [0-9A-F]{12}: ([0-9A-F ]+?)(?: <.*)?$', out, re.M)]
    assert len(sz) == len(idx), (len(sz), len(idx))
    r = [0] * len(L)
    for i, z in zip(idx, sz): r[i] = z
    return r

def layout(L, cfg):
    sz = insn_sizes(L)
    k0 = L.index(KNAME + ':')
    blocks, cur = [], ['entry', []]
    for l, z in list(zip(L, sz))[k0:]:
        if l.startswith(';@block'): blocks.append(cur); cur = [l.split()[1], []]
        else: cur[1].append((l, z))
    blocks.append(cur)
    out, off = L[:k0], cfg.kofs
    for name, B in blocks:
        def build(start, nst):
            o, res, reg, found, at, nxt = start, [], None, {}, None, None
            for l, z in B:
                if l.startswith(';@at'): at = o; continue
                if l.startswith(';@touch'):
                    _, r, how = l.split()
                    n = nst.get(r, 0)
                    if how == 'wave':
                        for k in range(n): res += [f"s_cmp_eq_u32 s{S_WAVE}, {k}", f"s_cbranch_scc1 L_t_{r}_{k}"]
                        res += [f"L_r_{r}_{k}:" for k in range(n)]; o += 8 * n
                    else:
                        for k in range(n): res += ["s_cmp_eq_u32 0, 0", f"s_branch L_t_{r}_{k}", f"L_r_{r}_{k}:"]
                        o += 8 * n
                    if n and how == 'wave': res.append("s_cmp_eq_u32 0, 1"); o += 4
                    continue
                if l.startswith(';@region'):
                    reg = l.split()[1] if l.split()[1] in cfg.touch else None
                    nxt = -(-o // 4096) * 4096
                    continue
                if reg and z and o >= nxt:
                    k = found.get(reg, 0); found[reg] = k + 1
                    if k < nst.get(reg, 0):
                        if reg in ('ld', 'spld'): res.append("s_cmp_eq_u32 0, 1"); o += 4
                        res += [f"L_t_{reg}_{k}:", f"s_cbranch_scc1 L_r_{reg}_{k}"]; o += 4
                    nxt += 4096
                if l == 's_endpgm' or l.startswith('s_branch') or l == 'L_fin:': reg = None
                if l.startswith('.fill'): o += int(l.split()[1].rstrip(',')) * 4
                res.append(l); o += z
            return res, o, at, found
        nst = {}
        for it in range(8):
            start = off
            if name in cfg.anchor:
                at = build(0, nst)[2]
                start = off + (-(off + at - cfg.anchor[name])) % 4096
            res, end, at, found = build(start, nst)
            if found == nst: break
            nst = found
        else: assert False, name
        if start != off:
            out.append(f".fill (({start % 4096} - (. - L_base)) & 4095) / 4, 4, 0xbf810000")
        if cfg.verbose: print(f"block {name}: {start:#x}..{end:#x} stubs {nst}", file=sys.stderr)
        out += res; off = end
    return out

def gen(cfg):
    a = A()
    a.L.append(open('standalone__batchnorm__sampling.s.ref').read().split('; Override')[0].rstrip())
    a.L.append("; @launch grid=(256,1,1) block=(512,1,1) lds=163840")
    a(f'.amdgcn_target "amdgcn-amd-amdhsa--gfx950"\n.text')
    if cfg.entry_pad is not None: a(f".p2align 12\nL_base:\n.fill {cfg.entry_pad // 4}, 4, 0xbf810000")
    a(f'.globl {KNAME}\n.p2align 8\n.type {KNAME},@function\n{KNAME}:')
    pu, sp = Prog(False), Prog(True)
    stamp(a, cfg, 0)
    a("s_cmp_ge_u32 s2, 256\ns_cbranch_scc1 L_end")
    a(f"s_load_dwordx2 s[{S_W}:{S_W + 1}], s[0:1], 8\ns_load_dwordx2 s[{S_X}:{S_X + 1}], s[0:1], 0")
    a(f"s_load_dwordx8 s[8:15], s[0:1], 16\ns_load_dwordx2 s[{S_O}:{S_O + 1}], s[0:1], 48")
    a(f"s_lshr_b32 s{T + 1}, s2, 3")
    if cfg.cpfn:
        a(f"s_getpc_b64 s[58:59]\nL_pc:\ns_and_b32 s{T}, s{T + 1}, {cfg.cpfg - 1}\ns_mul_i32 s{T}, s{T}, {cfg.cpfn * 128}")
        a(f"v_lshl_add_u32 v1, v0, 7, s{T}\nv_min_u32 v1, L_end-L_pc, v1")
        a(f"v_cmp_gt_u32 vcc, {cfg.cpfn}, v0\ns_and_saveexec_b64 s[60:61], vcc\ns_cbranch_execz L_nopf")
        a("global_load_dword v15, v1, s[58:59]\nL_nopf:\ns_mov_b64 exec, s[60:61]")
    a(f"v_lshrrev_b32 v1, 6, v0\nv_and_b32 v0, 63, v0\ns_and_b32 s{T}, s2, 7\nv_readfirstlane_b32 s{S_WAVE}, v1")
    if cfg.spearly == 3:
        a(f"s_sub_u32 s{S_T}, s{T + 1}, 1\ns_and_b32 s{S_T}, s{S_T}, 31\ns_lshr_b32 s{S_M}, s{T}, 1\ns_andn2_b32 s{T}, 1, s{T}\ns_lshl_b32 s{T}, s{T}, 5\ns_add_u32 s{S_T}, s{T}, s{S_T}")
    elif cfg.spearly == 2:
        a(f"s_lshr_b32 s{S_M}, s{T}, 1\ns_andn2_b32 s{T}, 1, s{T}\ns_lshl_b32 s{T}, s{T}, 5\ns_add_u32 s{S_T}, s{T}, s{T + 1}")
    elif cfg.spearly:
        a(f"s_and_b32 s{S_M}, s{T}, 3\ns_andn2_b32 s{T}, 4, s{T}\ns_lshl_b32 s{T}, s{T}, 3\ns_add_u32 s{S_T}, s{T}, s{T + 1}")
    else:
        a(f"s_lshr_b32 s{S_M}, s{T}, 1\ns_and_b32 s{T}, s{T}, 1\ns_lshl_b32 s{T}, s{T}, 5\ns_add_u32 s{S_T}, s{T}, s{T + 1}")
    a(f"s_mul_i32 s{S_R}, s{S_T}, 57\ns_lshr_b32 s{S_R}, s{S_R}, 9\ns_mul_i32 s{T}, s{S_R}, 9\ns_sub_u32 s{S_LINE}, s{S_T}, s{T}")
    a(f"s_mul_i32 s{T}, s{S_M}, 7\ns_add_u32 s{S_R}, s{S_R}, s{T}\ns_lshl_b32 s{T}, s{S_M}, 1")
    a(f"s_cmp_eq_u32 s{S_T}, 63\ns_cselect_b32 s{S_LINE}, s{T}, s{S_LINE}\ns_cselect_b32 s{S_R}, 28, s{S_R}\ns_cselect_b32 s{S_SP}, 1, 0")
    a(f"s_mul_i32 s{S_B0}, s{S_R}, {36 * BATB}\ns_mov_b32 s{S_C}, {NLOG2E:#x}\ns_mov_b32 s{S_C + 1}, s{S_C}")
    a(f"s_cmp_ge_u32 s{S_WAVE}, 4\ns_cbranch_scc0 L_comp")
    a(f"s_sub_u32 s{T}, s{S_WAVE}, 4\ns_and_b32 s{T + 1}, s{T}, 1\ns_lshr_b32 s{T + 2}, s{T}, 1\ns_lshl_b32 s{T + 3}, s{T + 1}, 2")
    a(f"v_lshrrev_b32 v10, 3, v0\nv_and_b32 v11, 7, v0\nv_lshrrev_b32 v12, 1, v10\nv_xor_b32 v11, s{T + 3}, v11")
    a(f"v_and_b32 v13, 2, v10\nv_xor_b32 v13, v13, v11\nv_mul_u32_u24 v14, {ROWB}, v10\nv_lshl_add_u32 v{vW}, v13, 4, v14")
    a(f"v_xor_b32 v13, v12, v11\nv_mul_u32_u24 v15, {BATB}, v10\nv_lshl_add_u32 v{vXm}, v13, 4, v15")
    a(f"s_mul_i32 s{sW}, s{T}, {8 * ROWB}\ns_lshl_b32 s{T + 4}, s{S_LINE}, 7\ns_add_u32 s{sW}, s{sW}, s{T + 4}")
    a(f"s_mul_i32 s{sXm}, s{T + 1}, {8 * BATB}\ns_add_u32 s{sXm}, s{sXm}, s{S_B0}")
    a(f"s_mov_b32 s{T + 3}, {pu.WB0}\ns_mov_b32 s{T + 5}, {16 * BATB}\ns_mov_b32 s{T + 6}, {pu.XBT}\ns_cmp_eq_u32 s{S_SP}, 1")
    a(f"s_cselect_b32 s{T + 3}, {sp.WB0}, s{T + 3}\ns_cselect_b32 s{T + 5}, {4 * ROWB}, s{T + 5}\ns_cselect_b32 s{T + 6}, 8192, s{T + 6}")
    a(f"s_lshl_b32 s{mW}, s{T}, 10\ns_add_u32 s{mW}, s{mW}, s{T + 3}\ns_mul_i32 s{T + 5}, s{T + 5}, s{T + 2}\ns_add_u32 s{sXm}, s{sXm}, s{T + 5}")
    a(f"s_mul_i32 s{T + 6}, s{T + 6}, s{T + 2}\ns_lshl_b32 s{mXm}, s{T + 1}, 10\ns_add_u32 s{mXm}, s{mXm}, s{T + 6}")
    a(f"s_mov_b32 s{S_W + 2}, {WBYTES}\ns_mov_b32 s{S_W + 3}, 0x20000\ns_mov_b32 s{S_X + 2}, {XBYTES}\ns_mov_b32 s{S_X + 3}, 0x20000")
    H = Loader(A(), cfg, pu); H.w(0); H.x(0, 0)
    for x in H.a.L[:2]: a(x)
    a("s_waitcnt lgkmcnt(0)")
    if cfg.stamps: Loader(a, cfg, pu).lstamp()
    for x in H.a.L[2:]: a(x)
    a(f"s_cmp_eq_u32 s{S_SP}, 1\ns_cbranch_scc1 L_sp_ld")
    body = A(); compute_pure(body, cfg, pu)
    far = A()
    loader_pure(a, cfg, pu, H.seq, far)
    a(f";@block pu\nL_comp:\ns_cmp_eq_u32 s{S_SP}, 1\ns_cbranch_scc1 L_sp_comp")
    compute_setup(a, cfg, pu)
    a(";@touch pu wave\n;@region pu")
    if cfg.align is not None:
        import align
        a(".p2align 3")
        t = A(); stamp(t, cfg, 1); t("s_barrier"); stamp(t, cfg, 2)
        a.L += align.run(t.L + body.L, cfg.align, lambda x: x if x.startswith('s_waitcnt') else 's_nop 0')
    else:
        stamp(a, cfg, 1); a("s_barrier"); stamp(a, cfg, 2)
        a.L += body.L
    finish_head(a, cfg)
    a("s_branch L_fin" if cfg.stamps or cfg.echo else "s_endpgm")
    a(";@at pu")
    a.L += far.L
    if cfg.pad_sp: a(f".fill {cfg.pad_sp // 4}, 4, 0xbf810000")
    a(";@block spld\n;@at spld\nL_sp_ld:")
    loader_special(a, cfg, sp, H.seq)
    a(";@block sp0\nL_sp_comp:")
    compute_setup(a, cfg, sp)
    for wv in range(1, 4): a(f"s_cmp_eq_u32 s{S_WAVE}, {wv}\ns_cbranch_scc1 L_sp{wv}_go")
    for wv in range(4):
        if wv: a(f";@block sp{wv}")
        a(f"L_sp{wv}_go:\n;@touch sp{wv} seq")
        stamp(a, cfg, 1); a("s_barrier"); stamp(a, cfg, 2)
        compute_special(a, cfg, sp, wv)
        finish_head(a, cfg)
        a("s_branch L_fin" if cfg.stamps or cfg.echo else "s_endpgm")
        if cfg.sp4: a(f";@at sp{wv}")
    a(";@block end")
    if cfg.stamps or cfg.echo: finish(a, cfg)
    a("L_end:\ns_endpgm")
    a.L = layout(a.L, cfg)
    a(f""".section .rodata,"a"
.p2align 6
.amdhsa_kernel {KNAME}
  .amdhsa_next_free_vgpr 256
  .amdhsa_next_free_sgpr 102
  .amdhsa_accum_offset 256
  .amdhsa_group_segment_fixed_size 0
  .amdhsa_kernarg_size 72
  .amdhsa_user_sgpr_count 2
  .amdhsa_user_sgpr_kernarg_segment_ptr 1
  .amdhsa_system_sgpr_workgroup_id_x 1
  .amdhsa_float_denorm_mode_32 3
.end_amdhsa_kernel""")
    return a.text() + '\n'

if __name__ == '__main__':
    ap = argparse.ArgumentParser()
    ap.add_argument('-o', default='k.s')
    ap.add_argument('opts', nargs='*')
    args = ap.parse_args()
    kw = {}
    for o in args.opts:
        k, v = o.split('=', 1)
        try: v = eval(v)
        except Exception: pass
        kw[k] = v
    open(args.o, 'w').write(gen(Cfg(**kw)))
```
